```python
import torch

def _softmax(x, axis=-1):
    return torch.softmax(x, dim=axis)
def _gelu(x):
    return torch.nn.functional.gelu(x, approximate="tanh")
def _silu(x):
    return torch.nn.functional.silu(x)
def _sigmoid(x):
    return torch.sigmoid(x)
def _layernorm(x, axis=-1, eps=1e-5):
    m = x.mean(dim=axis, keepdim=True)
    v = x.var(dim=axis, keepdim=True, unbiased=False)
    return (x - m) / torch.sqrt(v + eps)
def _scatter_add(tgt, idx, src, axis=0):
    return tgt.clone().index_add_(axis, idx, src)
def _segment_sum(src, seg, n):
    out = torch.zeros((n,) + src.shape[1:], dtype=src.dtype)
    return out.index_add_(0, seg, src)
def _pad(x, pw):
    flat = tuple(v for pair in reversed(pw) for v in pair)
    return torch.nn.functional.pad(x, flat)

kernel_name = 'concat_heads__mha_block_cached__mha_block_cached__near_ridge'

def setup_inputs():

    _w = (lambda a: (lambda t: t.to(torch.bfloat16) if t.is_floating_point() else t)(torch.as_tensor(a)))
    def _A_setup():
        B, Sq, D = 8, 160, 448
        H, Sk, Dh = 16, 512, 256
        return {
            "x": _w((lambda *s: torch.randn(*s, dtype=torch.bfloat16) * 0.8)(B, Sq, D)),
            "k_cache": _w((lambda *s: torch.randn(*s, dtype=torch.bfloat16) * 0.8)(B, H, Sk, Dh)),
            "v_cache": _w((lambda *s: torch.randn(*s, dtype=torch.bfloat16) * 0.05)(B, H, Sk, Dh)),
            "wq": _w((lambda *s: torch.randn(*s, dtype=torch.bfloat16) * 0.8)(D, H * Dh) * (D ** -0.5)),
            "wo": _w((lambda *s: torch.randn(*s, dtype=torch.bfloat16) * 0.05)(H * Dh, D) * ((H * Dh) ** -0.5)),
        }
    _A_in = _A_setup()

    def _B_setup():
        B, Sq, D = 8, 160, 448
        H, Sk, Dh = 16, 512, 256
        return {
            "x": _w((lambda *s: torch.randn(*s, dtype=torch.bfloat16) * 0.8)(B, Sq, D)),
            "k_cache": _w((lambda *s: torch.randn(*s, dtype=torch.bfloat16) * 0.8)(B, H, Sk, Dh)),
            "v_cache": _w((lambda *s: torch.randn(*s, dtype=torch.bfloat16) * 0.05)(B, H, Sk, Dh)),
            "wq": _w((lambda *s: torch.randn(*s, dtype=torch.bfloat16) * 0.8)(D, H * Dh) * (D ** -0.5)),
            "wo": _w((lambda *s: torch.randn(*s, dtype=torch.bfloat16) * 0.05)(H * Dh, D) * ((H * Dh) ** -0.5)),
        }
    _B_in = _B_setup()

    return {
        "A_x": _A_in["x"],
        "A_k_cache": _A_in["k_cache"],
        "A_v_cache": _A_in["v_cache"],
        "A_wq": _A_in["wq"],
        "A_wo": _A_in["wo"],
        "B_x": _B_in["x"],
        "B_k_cache": _B_in["k_cache"],
        "B_v_cache": _B_in["v_cache"],
        "B_wq": _B_in["wq"],
        "B_wo": _B_in["wo"],
    }

def reference(A_x, A_k_cache, A_v_cache, A_wq, A_wo, B_x, B_k_cache, B_v_cache, B_wq, B_wo):
    def _A_ref(x, k_cache, v_cache, wq, wo):
        B, Sq, D = x.shape
        H, Dh = 16, 256
        q = (lambda x, *d: x.permute(*d))((x @ wq).reshape(B, Sq, H, Dh), 0, 2, 1, 3)
        scores = torch.einsum("bhqd,bhkd->bhqk", q, k_cache) * (Dh ** -0.5)
        p = _softmax(scores, axis=-1)
        o = torch.einsum("bhqk,bhkd->bhqd", p, v_cache)
        return (lambda x, *d: x.permute(*d))(o, 0, 2, 1, 3).reshape(B, Sq, H * Dh) @ wo

    def _B_ref(x, k_cache, v_cache, wq, wo):
        B, Sq, D = x.shape
        H, Dh = 16, 256
        q = (lambda x, *d: x.permute(*d))((x @ wq).reshape(B, Sq, H, Dh), 0, 2, 1, 3)
        scores = torch.einsum("bhqd,bhkd->bhqk", q, k_cache) * (Dh ** -0.5)
        p = _softmax(scores, axis=-1)
        o = torch.einsum("bhqk,bhkd->bhqd", p, v_cache)
        return (lambda x, *d: x.permute(*d))(o, 0, 2, 1, 3).reshape(B, Sq, H * Dh) @ wo

    a = _A_ref(A_x, A_k_cache, A_v_cache, A_wq, A_wo)
    b = _B_ref(B_x, B_k_cache, B_v_cache, B_wq, B_wo)
    return torch.concatenate([a, b], axis=-1)
```

```python
class R:
    __slots__ = ('f', 'i', 'n')
    def __init__(self, f, i, n=1):
        self.f = f; self.i = i; self.n = n
    def __str__(self):
        if self.n == 1: return f"{self.f}{self.i}"
        return f"{self.f}[{self.i}:{self.i+self.n-1}]"
    def regs(self):
        return [(self.f, self.i + k) for k in range(self.n)]
    def sub(self, k, n=1):
        assert k + n <= self.n, (self, k, n)
        return R(self.f, self.i + k, n)
    def __getitem__(self, k):
        return self.sub(k, 1)
def V(i, n=1): return R('v', i, n)
def A(i, n=1): return R('a', i, n)
def S(i, n=1): return R('s', i, n)

def regs_of(xs):
    out = []
    for x in xs:
        if isinstance(x, R): out += x.regs()
    return out

class Emit:
    def __init__(self):
        self.lines = []
        self.n = 0
        self.valu_w = {}
        self.trans_w = {}
        self.mfma_w = {}
        self.mfma_c = {}
        self.store_r = {}
        self.sgpr_valu_w = {}
        self.m0_w = -100
        self.lg_issued = 0; self.lg_done = 0
        self.vm_issued = 0; self.vm_done = 0
        self.pend = {}
        self.stats = {}
    def raw(self, text, states=1, kind='other'):
        self.lines.append("    " + text)
        self.n += states
        self.stats[kind] = self.stats.get(kind, 0) + 1
    def comment(self, text): self.lines.append("    ; " + text)
    def label(self, name): self.lines.append(name + ":")
    def nop(self, k):
        while k > 0:
            m = min(k, 16)
            self.raw(f"s_nop {m-1}", states=m, kind='nop'); k -= m
    def need_gap(self, since, gap):
        d = self.n - since - 1
        if d < gap: self.nop(gap - d)
    def wait_lg(self, seq):
        if seq <= self.lg_done: return
        cnt = min(15, self.lg_issued - seq)
        self.raw(f"s_waitcnt lgkmcnt({cnt})", kind='wait')
        self.lg_done = max(self.lg_done, self.lg_issued - cnt)
    def wait_vm(self, seq):
        if seq <= self.vm_done: return
        cnt = min(63, self.vm_issued - seq)
        self.raw(f"s_waitcnt vmcnt({cnt})", kind='wait')
        self.vm_done = max(self.vm_done, self.vm_issued - cnt)
    def wait_lg_all(self): self.wait_lg(self.lg_issued)
    def wait_vm_all(self): self.wait_vm(self.vm_issued)
    def _pend(self, regs):
        lg = 0; vm = 0
        for r in regs:
            p = self.pend.get(r)
            if p:
                if p[0] == 'lg': lg = max(lg, p[1])
                else: vm = max(vm, p[1])
        if lg: self.wait_lg(lg)
        if vm: self.wait_vm(vm)
        for r in regs: self.pend.pop(r, None)
    def _gap_for(self, table, regs, gap):
        m = -100
        for r in regs:
            x = table.get(r)
            if x is not None:
                if isinstance(x, tuple): x = x[0]
                m = max(m, x)
        if m > -100: self.need_gap(m, gap)
    def salu(self, text, w_m0=False, reads=()):
        rr = regs_of(reads)
        self._gap_for(self.sgpr_valu_w, rr, 3)
        self.raw(text, kind='salu')
        if w_m0: self.m0_w = self.n - 1
    def valu(self, text, dst=(), src=(), trans=False, permlane=False, sdst=()):
        d = regs_of(dst); s = regs_of(src)
        self._pend(d + s)
        self._gap_for(self.mfma_w, d + s, 8)
        self._gap_for(self.mfma_c, d, 3)
        self._gap_for(self.trans_w, s, 1)
        self._gap_for(self.store_r, d, 2)
        self._gap_for(self.sgpr_valu_w, [r for r in s if r[0] == 's'], 2)
        if permlane: self._gap_for(self.valu_w, d + s, 2)
        self.raw(text, kind='trans' if trans else 'valu')
        i = self.n - 1
        for r in d:
            self.valu_w[r] = i
            if trans: self.trans_w[r] = i
            else: self.trans_w.pop(r, None)
            self.mfma_w.pop(r, None)
        for r in regs_of(sdst): self.sgpr_valu_w[r] = i
    def readfirstlane(self, sd, v):
        self._pend(v.regs())
        self._gap_for(self.valu_w, v.regs(), 1)
        self._gap_for(self.mfma_w, v.regs(), 8)
        self.raw(f"v_readfirstlane_b32 {sd}, {v}", kind='valu')
        for r in sd.regs(): self.sgpr_valu_w[r] = self.n - 1
    def mfma(self, D, Aop, Bop, C):
        d = D.regs(); ab = Aop.regs() + Bop.regs()
        c = C.regs() if isinstance(C, R) else []
        self._pend(d + ab + c)
        self._gap_for(self.valu_w, ab + c, 2)
        self._gap_for(self.mfma_w, ab, 8)
        key = (D.f, D.i, D.n)
        bad = [r for r in c if r in self.mfma_w and self.mfma_w[r][1] != key]
        self._gap_for(self.mfma_w, bad, 6)
        badd = [r for r in d if r in self.mfma_w and self.mfma_w[r][1] != key]
        self._gap_for(self.mfma_w, badd, 8)
        self._gap_for(self.store_r, d, 2)
        self.raw(f"v_mfma_f32_16x16x32_bf16 {D}, {Aop}, {Bop}, {C}", kind='mfma')
        i = self.n - 1
        for r in d:
            self.mfma_w[r] = (i, key); self.valu_w.pop(r, None); self.trans_w.pop(r, None)
        for r in c: self.mfma_c[r] = i
    def _memsrc(self, regs):
        self._pend(regs)
        self._gap_for(self.mfma_w, regs, 8)
    def ds_read(self, op, dst, addr, offset=0):
        assert 0 <= offset < 65536, offset
        d = dst.regs()
        self._memsrc(addr.regs())
        self._pend(d)
        self._gap_for(self.mfma_w, d, 8)
        self._gap_for(self.mfma_c, d, 3)
        self.raw(f"{op} {dst}, {addr}" + (f" offset:{offset}" if offset else ""), kind='ds_read')
        self.lg_issued += 1
        for r in d:
            self.pend[r] = ('lg', self.lg_issued); self.valu_w.pop(r, None); self.mfma_w.pop(r, None); self.trans_w.pop(r, None)
        return self.lg_issued
    def ds_write(self, op, addr, src, offset=0):
        assert 0 <= offset < 65536, offset
        self._memsrc(addr.regs() + src.regs())
        self.raw(f"{op} {addr}, {src}" + (f" offset:{offset}" if offset else ""), kind='ds_write')
        self.lg_issued += 1
        return self.lg_issued
    def dma(self, voff, srd, soff, offset=0, flags=""):
        assert 0 <= offset < 4096
        self._memsrc(voff.regs())
        self.need_gap(self.m0_w, 1)
        so = soff if soff is not None else 0
        sr = srd.regs() + (soff.regs() if isinstance(soff, R) else [])
        self._gap_for(self.sgpr_valu_w, sr, 5)
        self.raw(f"buffer_load_dwordx4 {voff}, {srd}, {so} offen" + (f" offset:{offset}" if offset else "") + (" " + flags if flags else "") + " lds", kind='dma')
        self.vm_issued += 1
        return self.vm_issued
    def gload(self, op, dst, voff, srd, soff, offset=0, flags=""):
        assert 0 <= offset < 4096
        self._memsrc(voff.regs())
        d = dst.regs(); self._pend(d)
        self._gap_for(self.mfma_w, d, 8); self._gap_for(self.mfma_c, d, 3)
        so = soff if soff is not None else 0
        sr = srd.regs() + (soff.regs() if isinstance(soff, R) else [])
        self._gap_for(self.sgpr_valu_w, sr, 5)
        self.raw(f"{op} {dst}, {voff}, {srd}, {so} offen" + (f" offset:{offset}" if offset else "") + (" " + flags if flags else ""), kind='gload')
        self.vm_issued += 1
        for r in d:
            self.pend[r] = ('vm', self.vm_issued); self.valu_w.pop(r, None); self.mfma_w.pop(r, None)
        return self.vm_issued
    def gstore(self, op, src, voff, srd, soff, offset=0, flags=""):
        assert 0 <= offset < 4096
        self._memsrc(voff.regs() + src.regs())
        so = soff if soff is not None else 0
        sr = srd.regs() + (soff.regs() if isinstance(soff, R) else [])
        self._gap_for(self.sgpr_valu_w, sr, 5)
        self.raw(f"{op} {src}, {voff}, {srd}, {so} offen" + (f" offset:{offset}" if offset else "") + (" " + flags if flags else ""), kind='gstore')
        self.vm_issued += 1
        i = self.n - 1
        for r in src.regs(): self.store_r[r] = i
        return self.vm_issued
    def barrier(self):
        self.raw("s_barrier", kind='barrier')
    def text(self): return "\n".join(self.lines) + "\n"
```

```python
import sys, math, struct
from emit import *

NAME = "concat_heads__mha_block_cached__mha_block_cached__near_ridge"
LDS_M = 0; LDS_A = 16384; LDS_B = 98304; XS = 49152
LDS_TOTAL = 163840
PART_UNIT = 143360
PART_WAVE = 35840

class Opt:
    nt_kv = True
    st_flags = ""
    dump = None
opt = Opt()

def f2u(x): return struct.unpack("<I", struct.pack("<f", x))[0]

sX, sK, sV, sWQ, sWO, sWS = S(4,4), S(8,4), S(12,4), S(16,4), S(20,4), S(24,4)
sW, sRB, sWB, sXD, sO1, sO2, sC = S(28), S(29), S(30), S(31), S(32), S(33), S(34)
sT = [S(36+i) for i in range(28)]

vL   = V(1)
vB0, vB1 = V(2), V(3)
vK0, vK1 = V(4), V(5)
vTv  = [V(6+i) for i in range(4)]
vDK  = [V(10+i) for i in range(4)]
vDV  = [V(14+i) for i in range(4)]
vDWO = [V(18+i) for i in range(4)]
vPW, vOW, vSTW, vSTR, vWS = V(22), V(23), V(24), V(25), V(26)
vM   = [V(28+i) for i in range(10)]
ACC0 = 40
vX0, vX1 = V(200), V(201)
vTq  = [V(202+i) for i in range(4)]
vDX  = [V(206+i) for i in range(5)]
vDWQ = [V(211+i) for i in range(4)]
vQW  = V(215)
vLs  = [V(200+i) for i in range(10)]
vPT  = [V(210, 8), V(218, 8)]
vPO  = [V(228, 4), V(232, 4)]
vTmp = [V(240+i) for i in range(16)]
aB = [A(4*b, 4) for b in range(10)]
aA = [[A(40 + 16*s + 4*t, 4) for t in range(4)] for s in range(2)]
aO = lambda t, b: A(96 + 4*(b*4+t), 4)

def accQ(t, b): return V(ACC0 + 4*(b*4+t), 4)
def accS(t, b): return V(160 + 8*b + 4*t, 4)
def park(p, b): return V((40 + 40*p if p < 3 else 160) + 4*b, 4)

class G:
    def __init__(self):
        self.e = Emit()
    def v2(self, op, d, a, b):
        self.e.valu(f"{op} {d}, {a}, {b}", dst=[d], src=[x for x in (a, b) if isinstance(x, R)])
    def v1(self, op, d, a, trans=False):
        self.e.valu(f"{op} {d}, {a}", dst=[d], src=[a] if isinstance(a, R) else [], trans=trans)
    def v3(self, op, d, a, b, c, neg_c=False):
        cc = f"-{c}" if neg_c else f"{c}"
        self.e.valu(f"{op} {d}, {a}, {b}, {cc}", dst=[d], src=[x for x in (a, b, c) if isinstance(x, R)])
    def s2(self, op, d, a, b):
        self.e.salu(f"{op} {d}, {a}, {b}", reads=[x for x in (a, b) if isinstance(x, R)])
    def s1(self, op, d, a):
        self.e.salu(f"{op} {d}, {a}", reads=[a] if isinstance(a, R) else [])
    def m0(self, sbase, imm):
        self.e.salu(f"s_add_u32 m0, {sbase}, {imm}", w_m0=True, reads=[sbase])

    def dma_group(self, voffs, srd, sbase, ldsoff, soff_imm, sreg, holder, key, flags=""):
        e = self.e
        fs = []
        def head():
            self.m0(sbase, ldsoff)
            self.s1("s_mov_b32", sreg, soff_imm)
        fs.append(head)
        n = len(voffs)
        for i in range(n):
            def f(i=i):
                if i == 4:
                    self.m0(sbase, ldsoff + 4096)
                t = e.dma(voffs[i], srd, sreg, offset=(1024*i if i < 4 else 0), flags=flags)
                holder[key] = t
            fs.append(f)
        return fs

    def run(self, fs):
        for f in fs: f()

    def kstep(self, mf, gaps):
        for i, m in enumerate(mf):
            m()
            for f in gaps.get(i, []): f()

def spread(gaps, fs, start, end):
    n = len(fs)
    if n == 0: return
    span = end - start
    for j, f in enumerate(fs):
        gaps.setdefault(start + (j * span) // n, []).append(f)

def build_k1():
    g = G(); e = g.e
    kvflag = "nt" if opt.nt_kv else ""
    e.raw("s_cmp_ge_u32 s2, 256"); e.raw("s_cbranch_scc1 L_k1_end")
    e.raw("s_load_dwordx16 s[36:51], s[0:1], 0")
    e.raw("s_load_dwordx4 s[52:55], s[0:1], 64")
    e.raw("s_load_dwordx2 s[56:57], s[0:1], 96")
    g.s2("s_and_b32", S(58), S(2), 7)
    g.s2("s_lshr_b32", S(59), S(2), 3)
    g.s2("s_and_b32", S(60), S(58), 3); g.s2("s_lshl_b32", S(60), S(60), 2)
    g.s2("s_and_b32", S(61), S(59), 3); g.s2("s_add_u32", S(60), S(60), S(61))
    g.s2("s_lshr_b32", S(61), S(59), 2)
    g.s2("s_lshr_b32", S(62), S(58), 2)
    sH, sBt, sBr = S(60), S(61), S(62)
    g.v2("v_and_b32", vL, 63, V(0))
    g.v2("v_lshrrev_b32", vTmp[0], 6, V(0))
    e.readfirstlane(sW, vTmp[0])
    e.raw("s_waitcnt lgkmcnt(0)")
    e.raw(f"s_cmp_eq_u32 {sBr}, 0")
    for k, (pa, pb) in enumerate([(36,46),(38,48),(40,50),(42,52),(44,54)]):
        e.raw(f"s_cselect_b32 s{pa}, s{pa}, s{pb}"); e.raw(f"s_cselect_b32 s{pa+1}, s{pa+1}, s{pb+1}")
    def srd(dst, plo, off_sreg, nrec):
        g.s2("s_add_u32", dst[0], S(plo), off_sreg)
        e.salu(f"s_addc_u32 {dst[1]}, s{plo+1}, 0")
        if isinstance(nrec, R): g.s1("s_mov_b32", dst[2], nrec)
        else: g.s1("s_mov_b32", dst[2], nrec)
        g.s1("s_mov_b32", dst[3], "0x00020000")
    t0, t1 = S(63), S(35)
    g.s2("s_mul_i32", t0, sBt, 143360); srd(sX, 36, t0, 143360)
    g.s2("s_lshl_b32", t0, sBt, 4); g.s2("s_add_u32", t0, t0, sH)
    g.s2("s_lshl_b32", t1, t0, 18); srd(sK, 38, t1, 262144); srd(sV, 40, t1, 262144)
    g.s2("s_lshl_b32", t1, sBr, 7); g.s2("s_add_u32", t0, t0, t1)
    g.s2("s_mul_i32", t1, t0, PART_UNIT); srd(sWS, 56, t1, PART_UNIT)
    g.s2("s_lshl_b32", t1, sH, 9); g.s2("s_sub_u32", t0, 3670016, t1); srd(sWQ, 42, t1, t0)
    g.s2("s_mul_i32", t1, sH, 229376); srd(sWO, 44, t1, 229376)
    g.s2("s_lshl_b32", sRB, sW, 14); g.s2("s_add_u32", sRB, sRB, LDS_B)
    g.s2("s_mul_i32", sWB, sW, 12288)
    g.s2("s_mul_i32", sXD, sW, 5120); g.s2("s_add_u32", sXD, sXD, XS)
    g.s1("s_mov_b32", sC, hex(f2u(math.log2(math.e) / 16.0)))
    q16, gg, r4, c4, prow, pg = vTmp[0], vTmp[1], vTmp[2], vTmp[3], vTmp[4], vTmp[5]
    t, u, w_v = vTmp[6], vTmp[7], vTmp[8]
    g.v2("v_and_b32", q16, 15, vL); g.v2("v_lshrrev_b32", gg, 4, vL)
    g.v3("v_bfe_u32", r4, vL, 2, 2); g.v2("v_and_b32", c4, 3, vL)
    g.v2("v_lshrrev_b32", prow, 3, vL); g.v2("v_and_b32", pg, 7, vL)
    g.v1("v_mov_b32", w_v, sW)
    s896, s8192 = S(36), S(37)
    g.s1("s_mov_b32", s896, 896)
    for i in range(5):
        g.v3("v_mad_u32_u24", t, w_v, 5, i)
        g.v2("v_and_b32", u, 1, t); g.v2("v_lshlrev_b32", u, 2, u); g.v2("v_add_u32", u, u, gg)
        g.v2("v_xor_b32", u, u, pg); g.v2("v_lshlrev_b32", u, 4, u)
        g.v3("v_lshl_add_u32", t, t, 3, prow)
        g.v3("v_mad_u32_u24", vDX[i], t, s896, u)
        if i < 4 and i > 0: g.v2("v_subrev_u32", vDX[i], 1024*i, vDX[i])
    for jj in range(4):
        g.v3("v_bfe_u32", u, prow, 1, 1)
        if jj & 1: g.v2("v_or_b32", u, 2, u)
        g.v2("v_lshlrev_b32", u, 1, u); g.v2("v_xor_b32", u, u, pg); g.v2("v_lshlrev_b32", u, 4, u)
        g.v2("v_add_u32", t, 8*jj, prow); g.v2("v_lshlrev_b32", t, 13, t)
        g.v2("v_add_u32", t, t, u)
        g.v3("v_lshl_add_u32", t, w_v, 7, t)
        if jj: g.v2("v_subrev_u32", vDWQ[jj], 1024*jj, t)
        else: g.v1("v_mov_b32", vDWQ[jj], t)
    H = {}
    g.run(g.dma_group(vDX, sX, sXD, 0, 0, sO1, H, ('x', 0)))
    for s in range(3):
        g.run(g.dma_group(vDWQ, sWQ, sWB, 4096*s, 262144*s, sO2, H, ('wq', s)))
    g.run(g.dma_group(vDX, sX, sXD, 20480, 128, sO1, H, ('x', 1)))
    for jj in range(4):
        g.v2("v_add_u32", u, 4*(jj & 1), gg); g.v2("v_xor_b32", u, u, pg); g.v2("v_lshlrev_b32", u, 4, u)
        g.v3("v_lshl_add_u32", t, w_v, 5, prow)
        g.v2("v_add_u32", t, 8*jj, t); g.v2("v_lshlrev_b32", t, 9, t)
        g.v2("v_add_u32", t, t, u)
        if jj: g.v2("v_subrev_u32", vDK[jj], 1024*jj, t)
        else: g.v1("v_mov_b32", vDK[jj], t)
    for cb in range(4):
        g.run(g.dma_group(vDK, sK, sRB, 4096*cb, 128*cb, sO1, H, ('k', 0, cb), flags=kvflag))
    gv = vTmp[9]
    g.v3("v_bfe_u32", u, prow, 1, 2); g.v2("v_lshlrev_b32", u, 1, u); g.v2("v_xor_b32", u, u, pg); g.v2("v_lshlrev_b32", gv, 4, u)
    s224 = S(37); g.s1("s_mov_b32", s224, 224)
    for jj in range(4):
        g.v2("v_add_u32", t, 8*jj, prow)
        g.v2("v_lshlrev_b32", u, 9, t); g.v2("v_add_u32", u, u, gv); g.v3("v_lshl_add_u32", u, w_v, 7, u)
        if jj: g.v2("v_subrev_u32", vDV[jj], 1024*jj, u)
        else: g.v1("v_mov_b32", vDV[jj], u)
        g.v3("v_mad_u32_u24", u, t, s896, gv); g.v3("v_mad_u32_u24", u, w_v, s224, u)
        if jj: g.v2("v_subrev_u32", vDWO[jj], 1024*jj, u)
        else: g.v1("v_mov_b32", vDWO[jj], u)
    g.v2("v_lshlrev_b32", t, 4, vL); g.v2("v_add_u32", vB0, LDS_A, t); g.v2("v_add_u32", vB1, LDS_A + 40960, t)
    g.v2("v_lshrrev_b32", u, 1, q16)
    for sp, (vx, vk) in enumerate([(vX0, vK0), (vX1, vK1)]):
        g.v2("v_add_u32", t, 4*sp, gg); g.v2("v_xor_b32", t, t, u); g.v2("v_lshlrev_b32", t, 4, t)
        g.v3("v_lshl_add_u32", t, q16, 7, t)
        g.v2("v_add_u32", vx, XS, t); g.v2("v_add_u32", vk, sRB, t)
    phq, phv, base = vTmp[10], vTmp[11], vTmp[12]
    g.v2("v_lshrrev_b32", u, 1, r4)
    g.v2("v_and_b32", t, 1, gg); g.v3("v_lshl_or_b32", phq, t, 1, u)
    g.v3("v_lshl_add_u32", phv, gg, 1, u); g.v2("v_and_b32", phv, 3, phv)
    g.v3("v_lshl_add_u32", base, gg, 3, r4); g.v2("v_lshlrev_b32", base, 7, base); g.v3("v_lshl_add_u32", base, c4, 3, base)
    g.v2("v_add_u32", base, sWB, base)
    for tt in range(4):
        g.v2("v_xor_b32", t, tt, phq); g.v3("v_lshl_add_u32", vTq[tt], t, 5, base)
    g.v3("v_lshl_add_u32", base, gg, 2, r4); g.v2("v_lshlrev_b32", base, 7, base); g.v3("v_lshl_add_u32", base, c4, 3, base)
    g.v2("v_add_u32", base, sRB, base)
    for tt in range(4):
        g.v2("v_xor_b32", t, tt, phv); g.v3("v_lshl_add_u32", vTv[tt], t, 5, base)
    sA = S(38); g.s2("s_mul_i32", sA, sW, 20480); g.s2("s_add_u32", sA, sA, LDS_A)
    g.v2("v_lshrrev_b32", t, 1, gg); g.v2("v_lshlrev_b32", t, 8, t); g.v3("v_lshl_add_u32", t, q16, 4, t)
    g.v2("v_and_b32", u, 1, gg); g.v3("v_lshl_add_u32", t, u, 3, t); g.v2("v_add_u32", vQW, sA, t)
    g.v2("v_lshlrev_b32", t, 4, vL); g.v2("v_add_u32", vOW, sA, t)
    g.s2("s_mul_i32", sA, sW, 10240); g.s2("s_add_u32", sA, sA, LDS_A); g.v2("v_add_u32", vPW, sA, t)
    g.s2("s_mul_i32", sA, sW, PART_WAVE); g.v2("v_add_u32", vWS, sA, t)
    g.v2("v_lshlrev_b32", vSTR, 4, q16); g.s2("s_lshl_b32", sA, sW, 2); g.v2("v_add_u32", vSTW, sA, vSTR)
    for b in range(10): g.v1("v_mov_b32", vM[b], "0xff800000")

    def rdA_wq(s):
        fs = []
        for tt in range(4):
            for hf in range(2):
                fs.append(lambda tt=tt, hf=hf: e.ds_read("ds_read_b64_tr_b16", aA[s & 1][tt].sub(2*hf, 2), vTq[tt], 4096*(s % 3) + 512*hf))
        return fs
    def rdB_x(s, b):
        return lambda: e.ds_read("ds_read_b128", aB[b], (vX0, vX1)[s & 1], 20480*((s >> 1) & 1) + 2048*b)
    e.wait_vm(H[('wq', 0)]); e.wait_vm(H[('x', 0)])
    e.barrier()
    g.run(rdA_wq(0))
    for b in range(10): rdB_x(0, b)()
    NQ = 14
    for s in range(NQ):
        e.comment(f"Q step {s}")
        mf = []
        for b in range(10):
            for tt in range(4):
                mf.append(lambda b=b, tt=tt: e.mfma(accQ(tt, b), aA[s & 1][tt], aB[b], accQ(tt, b) if s > 0 else 0))
        gaps = {}
        nxt = s + 1
        if nxt < NQ:
            newchunk = (nxt % 2 == 0)
            fa = [lambda: e.wait_vm(H[('wq', nxt)])] + rdA_wq(nxt)
            spread(gaps, fa, 1, 18)
            if newchunk:
                c = nxt // 2
                def bar(c=c):
                    e.wait_vm(H[('x', c)]); e.wait_lg_all(); e.barrier()
                gaps.setdefault(7, []).insert(0, bar)
                if c + 1 < 7:
                    fx = g.dma_group(vDX, sX, sXD, 20480*((c+1) & 1), 128*(c+1), sO1, H, ('x', c+1))
                    spread(gaps, fx, 8, 20)
                for b in range(10):
                    gi = min(39, 4*(b+2)+3) if b < 8 else 39
                    gaps.setdefault(gi, []).append(rdB_x(nxt, b))
            else:
                for b in range(10): gaps.setdefault(4*b+3, []).append(rdB_x(nxt, b))
        if s + 3 < NQ:
            fw = g.dma_group(vDWQ, sWQ, sWB, 4096*(s % 3), 262144*(s+3), sO2, H, ('wq', s+3))
            spread(gaps, fw, 20, 36)
        g.kstep(mf, gaps)
    for b in range(10):
        for tt in range(4):
            d = accQ(tt, b)
            g.v3c = None
            e.valu(f"v_cvt_pk_bf16_f32 {d[0]}, {d[0]}, {d[1]}", dst=[d[0]], src=[d[0], d[1]])
            e.valu(f"v_cvt_pk_bf16_f32 {d[1]}, {d[2]}, {d[3]}", dst=[d[1]], src=[d[2], d[3]])
    e.wait_lg_all(); e.barrier()
    for b in range(10):
        for tt in range(4):
            e.ds_write("ds_write_b64", vQW, accQ(tt, b).sub(0, 2), (tt >> 1)*10240 + b*1024 + (tt & 1)*512)
    e.wait_lg_all(); e.barrier()
    if opt.dump == 'Q': return finish_dump(g)

    def vBf(f): return (vB0, f*1024) if f < 40 else (vB1, (f-40)*1024)
    def rdB_frag(f, b):
        a, o = vBf(f)
        return lambda: e.ds_read("ds_read_b128", aB[b], a, o)
    def rdA_k(gs):
        s = gs % 8
        return [lambda tt=tt: e.ds_read("ds_read_b128", aA[gs & 1][tt], (vK0, vK1)[s & 1], 4096*(s >> 1) + 2048*tt) for tt in range(2)]
    e.wait_vm(H[('k', 0, 0)])
    g.run(rdA_k(0))
    for b in range(10): rdB_frag(b, b)()
    for p in range(4):
        for s in range(8):
            gs = 8*p + s
            mf = []
            for b in range(10):
                for tt in range(2):
                    mf.append(lambda b=b, tt=tt: e.mfma(accS(tt, b), aA[gs & 1][tt], aB[b], accS(tt, b) if s > 0 else 0))
            gaps = {}
            if gs + 1 < 32:
                n = gs + 1; pn, sn = n // 8, n % 8
                fa = [lambda pn=pn, sn=sn: e.wait_vm(H[('k', pn, sn >> 1)])] + rdA_k(n)
                spread(gaps, fa, 1, 6)
                for b in range(10): gaps.setdefault(2*b+1, []).append(rdB_frag(sn*10 + b, b))
            if s & 1:
                cb = s >> 1
                if p < 3: fd = g.dma_group(vDK, sK, sRB, 4096*cb, 65536*(p+1) + 128*cb, sO1, H, ('k', p+1, cb), flags=kvflag)
                else:     fd = g.dma_group(vDV, sV, sRB, 4096*cb, 16384*cb, sO1, H, ('v', cb), flags=kvflag)
                spread(gaps, fd, 8, 18)
            g.kstep(mf, gaps)
        for b in range(10):
            s0, s1 = accS(0, b), accS(1, b)
            g.v3("v_max3_f32", vM[b], vM[b], s0[0], s0[1]); g.v3("v_max3_f32", vM[b], vM[b], s0[2], s0[3])
            g.v3("v_max3_f32", vM[b], vM[b], s1[0], s1[1]); g.v3("v_max3_f32", vM[b], vM[b], s1[2], s1[3])
            pk = park(p, b)
            for j, (src, o) in enumerate([(s0, 0), (s0, 2), (s1, 0), (s1, 2)]):
                e.valu(f"v_cvt_pk_bf16_f32 {pk[j]}, {src[o]}, {src[o+1]}", dst=[pk[j]], src=[src[o], src[o+1]])
    def xreduce(op, regs, lds_off):
        ta = vTmp
        for b in range(10):
            g.v1("v_mov_b32", ta[b], regs[b])
        for b in range(10):
            e.valu(f"v_permlane32_swap_b32 {ta[b]}, {regs[b]}", dst=[ta[b], regs[b]], src=[ta[b], regs[b]], permlane=True)
        for b in range(10): g.v2(op, regs[b], ta[b], regs[b])
        for b in range(10): g.v1("v_mov_b32", ta[b], regs[b])
        for b in range(10):
            e.valu(f"v_permlane16_swap_b32 {ta[b]}, {regs[b]}", dst=[ta[b], regs[b]], src=[ta[b], regs[b]], permlane=True)
        for b in range(10): g.v2(op, regs[b], ta[b], regs[b])
        for b in range(10): e.ds_write("ds_write_b32", vSTW, regs[b], lds_off + 256*b)
    xreduce("v_max_f32", vM, 0)
    e.wait_lg_all(); e.barrier()
    st = [V(200 + 4*b, 4) for b in range(10)]
    for b in range(10): e.ds_read("ds_read_b128", st[b], vSTR, 256*b)
    for b in range(10):
        g.v3("v_max3_f32", vM[b], st[b][0], st[b][1], st[b][2]); g.v2("v_max_f32", vM[b], vM[b], st[b][3])
        g.v2("v_mul_f32", vM[b], sC, vM[b])
    if opt.dump == 'S': return finish_dump(g)
    for b in range(10): g.v1("v_mov_b32", vLs[b], 0)

    cnt = [0]
    def pprod(c):
        fs = []
        for b in range(10):
            k = cnt[0] & 1; cnt[0] += 1
            T = vPT[k]; O = vPO[k]; pk = park(c, b)
            for j in range(4):
                fs.append(lambda j=j, T=T, pk=pk: g.v2("v_lshlrev_b32", T[2*j], 16, pk[j]))
                fs.append(lambda j=j, T=T, pk=pk: g.v2("v_and_b32", T[2*j+1], "0xffff0000", pk[j]))
            for j in range(8): fs.append(lambda j=j, T=T, b=b: g.v3("v_fma_f32", T[j], T[j], sC, vM[b], neg_c=True))
            for j in range(8): fs.append(lambda j=j, T=T: g.v1("v_exp_f32", T[j], T[j], trans=True))
            for j in range(4):
                fs.append(lambda j=j, T=T, O=O: e.valu(f"v_cvt_pk_bf16_f32 {O[j]}, {T[2*j]}, {T[2*j+1]}", dst=[O[j]], src=[T[2*j], T[2*j+1]]))
            for j in range(8): fs.append(lambda j=j, T=T, b=b: g.v2("v_add_f32", vLs[b], vLs[b], T[j]))
            fs.append(lambda O=O, b=b, c=c: e.ds_write("ds_write_b128", vPW, O, (c & 1)*40960 + b*1024))
        return fs
    g.run(pprod(0))
    e.wait_lg_all(); e.barrier()

    def rdA_v(j, grp, slot):
        fs = []
        for tt in range(4):
            for hf in range(2):
                fs.append(lambda tt=tt, hf=hf: e.ds_read("ds_read_b64_tr_b16", aA[slot][tt].sub(2*hf, 2), vTv[tt], 4096*grp + 2048*hf))
        return fs
    def rdB_p(j, b):
        c, wp = j >> 2, j & 3
        a = vB1 if (c & 1) else vB0
        return lambda: e.ds_read("ds_read_b128", aB[b], a, (wp*10 + b)*1024)
    e.wait_vm(H[('v', 0)])
    g.run(rdA_v(0, 0, 0))
    for b in range(10): rdB_p(0, b)()
    prod = {}
    def split(fs, steps):
        n = len(steps); per = (len(fs) + n - 1) // n
        for i, st_ in enumerate(steps): prod[st_] = fs[i*per:(i+1)*per]
    split(pprod(1), [0, 1, 2]); split(pprod(2), [3, 4, 5, 6]); split(pprod(3), [7, 8, 9, 10])
    for j in range(16):
        e.comment(f"PV step {j}")
        mf = []
        for b in range(10):
            for tt in range(4):
                mf.append(lambda b=b, tt=tt: e.mfma(aO(tt, b), aA[j & 1][tt], aB[b], aO(tt, b) if j > 0 else 0))
        gaps = {}
        n = j + 1
        bar_here = (j % 4 == 3 and j < 15)
        if bar_here:
            def bar():
                e.wait_lg_all(); e.barrier()
            gaps.setdefault(1, []).insert(0, bar)
        if n < 16:
            fa = [lambda n=n: e.wait_vm(H[('v', n)])] + rdA_v(n, n & 3, n & 1)
            spread(gaps, fa, 2, 20)
            for b in range(10): gaps.setdefault(4*b+3, []).append(rdB_p(n, b))
        else:
            pass
        if j + 4 < 16: fd = g.dma_group(vDV, sV, sRB, 4096*(j & 3), 16384*(j+4), sO1, H, ('v', j+4), flags=kvflag)
        else:
            jj = j + 4 - 16
            fd = g.dma_group(vDWO, sWO, sRB, 4096*(j & 3), 28672*jj, sO1, H, ('wo', jj))
        spread(gaps, fd, 21, 38)
        if j in prod: spread(gaps, prod[j], 2 if bar_here else 0, 40)
        if j == 11:
            pass
        if j == 10:
            fs = [lambda: xreduce("v_add_f32", vLs, 4096)]
            gaps.setdefault(39, []).extend(fs)
        if j == 12:
            stl = [V(160 + 4*b, 4) for b in range(10)]
            fs = []
            for b in range(10): fs.append(lambda b=b: e.ds_read("ds_read_b128", stl[b], vSTR, 4096 + 256*b))
            for b in range(10):
                fs.append(lambda b=b: g.v2("v_add_f32", stl[b][0], stl[b][0], stl[b][1]))
                fs.append(lambda b=b: g.v2("v_add_f32", stl[b][2], stl[b][2], stl[b][3]))
                fs.append(lambda b=b: g.v2("v_add_f32", vLs[b], stl[b][0], stl[b][2]))
                fs.append(lambda b=b: g.v1("v_rcp_f32", vLs[b], vLs[b], trans=True))
            spread(gaps, fs, 2, 40)
        g.kstep(mf, gaps)
    ost = lambda u, b: V(40 + 4*(u*10 + b), 4)
    tt8 = [V(120 + 8*k, 8) for k in range(2)]
    kk = 0
    for u in range(2):
        for b in range(10):
            T = tt8[kk & 1]; kk += 1
            for h2 in range(2):
                for r in range(4):
                    e.valu(f"v_accvgpr_read_b32 {T[4*h2+r]}, {aO(2*u+h2, b)[r]}", dst=[T[4*h2+r]], src=[aO(2*u+h2, b)[r]])
            for j in range(8): g.v2("v_mul_f32", T[j], T[j], vLs[b])
            for j in range(4):
                e.valu(f"v_cvt_pk_bf16_f32 {ost(u,b)[j]}, {T[2*j]}, {T[2*j+1]}", dst=[ost(u,b)[j]], src=[T[2*j], T[2*j+1]])
    e.wait_lg_all(); e.barrier()
    for u in range(2):
        for b in range(10): e.ds_write("ds_write_b128", vOW, ost(u, b), u*10240 + b*1024)
    e.wait_lg_all(); e.barrier()
    if opt.dump == 'O': return finish_dump(g)

    def rdA_wo(jj, slot, nt_):
        fs = []
        for tt in range(nt_):
            for hf in range(2):
                fs.append(lambda tt=tt, hf=hf: e.ds_read("ds_read_b64_tr_b16", aA[slot][tt].sub(2*hf, 2), vTv[tt], 4096*(jj & 3) + 2048*hf))
        return fs
    aO2 = lambda t, b: A(96 + 4*(b*4+t), 4)
    vO2 = lambda t, b: V(40 + 4*(b*3+t), 4)
    e.wait_vm(H[('wo', 0)])
    g.run(rdA_wo(0, 0, 4))
    for b in range(10): rdB_frag(b, b)()
    def epi0():
        fs = []; k = 0
        for pp in range(2):
            for b in range(10):
                T = V(160 + 8*(k & 1), 8); O = V(176 + 4*(k & 3), 4); k += 1
                for h2 in range(2):
                    for r in range(4):
                        fs.append(lambda T=T, h2=h2, r=r, pp=pp, b=b: e.valu(f"v_accvgpr_read_b32 {T[4*h2+r]}, {aO2(2*pp+h2, b)[r]}", dst=[T[4*h2+r]], src=[aO2(2*pp+h2, b)[r]]))
                for j in range(4):
                    fs.append(lambda T=T, O=O, j=j: e.valu(f"v_cvt_pk_bf16_f32 {O[j]}, {T[2*j]}, {T[2*j+1]}", dst=[O[j]], src=[T[2*j], T[2*j+1]]))
                ee = pp*10 + b
                def st(O=O, ee=ee):
                    g.s1("s_mov_b32", sO2, (ee >> 2)*4096)
                    e.gstore("buffer_store_dwordx4", O, vWS, sWS, sO2, offset=(ee & 3)*1024, flags=opt.st_flags)
                fs.append(st)
        return fs
    ep0 = epi0()
    for jj in range(16):
        ps, j = jj // 8, jj % 8
        nt_ = 4 if ps == 0 else 3
        mf = []
        for b in range(10):
            for tt in range(nt_):
                acc = aO2(tt, b) if ps == 0 else vO2(tt, b)
                mf.append(lambda b=b, tt=tt, acc=acc: e.mfma(acc, aA[jj & 1][tt], aB[b], acc if j > 0 else 0))
        gaps = {}
        n = jj + 1
        NG = len(mf)
        if n < 16:
            nt_n = 4 if n < 8 else 3
            fa = [lambda n=n: e.wait_vm(H[('wo', n)])] + rdA_wo(n, n & 1, nt_n)
            spread(gaps, fa, 1, NG//2)
            for b in range(10): gaps.setdefault(nt_*b + nt_-1, []).append(rdB_frag((n % 8)*10 + b, b))
        if jj + 4 < 16:
            m = jj + 4
            fd = g.dma_group(vDWO, sWO, sRB, 4096*(jj & 3), 28672*(m % 8) + 128*(m // 8), sO1, H, ('wo', m))
            spread(gaps, fd, NG//2 + 1, NG - 2)
        if ps == 1:
            per = (len(ep0) + 6) // 7
            if j < 7: spread(gaps, ep0[j*per:(j+1)*per], 1, NG)
        g.kstep(mf, gaps)
    k = 0
    for b in range(10):
        O = V(176 + 4*(k & 3), 4); k += 1
        for h2 in range(2):
            d = vO2(h2, b)
            e.valu(f"v_cvt_pk_bf16_f32 {O[2*h2]}, {d[0]}, {d[1]}", dst=[O[2*h2]], src=[d[0], d[1]])
            e.valu(f"v_cvt_pk_bf16_f32 {O[2*h2+1]}, {d[2]}, {d[3]}", dst=[O[2*h2+1]], src=[d[2], d[3]])
        ee = 20 + b
        g.s1("s_mov_b32", sO2, (ee >> 2)*4096)
        e.gstore("buffer_store_dwordx4", O, vWS, sWS, sO2, offset=(ee & 3)*1024, flags=opt.st_flags)
    for kb in range(5):
        O = V(176 + 4*(k & 3), 4); k += 1
        for h2 in range(2):
            d = vO2(2, 2*kb + h2)
            e.valu(f"v_cvt_pk_bf16_f32 {O[2*h2]}, {d[0]}, {d[1]}", dst=[O[2*h2]], src=[d[0], d[1]])
            e.valu(f"v_cvt_pk_bf16_f32 {O[2*h2+1]}, {d[2]}, {d[3]}", dst=[O[2*h2+1]], src=[d[2], d[3]])
        ee = 30 + kb
        g.s1("s_mov_b32", sO2, (ee >> 2)*4096)
        e.gstore("buffer_store_dwordx4", O, vWS, sWS, sO2, offset=(ee & 3)*1024, flags=opt.st_flags)
    e.label("L_k1_end")
    e.raw("s_endpgm")
    return e

def finish_dump(g):
    e = g.e
    e.wait_lg_all(); e.wait_vm_all(); e.barrier()
    t = V(240); u = V(244, 4)
    g.s2("s_mul_i32", S(38), sW, 20480)
    g.v2("v_lshlrev_b32", t, 4, vL); g.v2("v_add_u32", t, S(38), t)
    a = V(241); g.v2("v_add_u32", a, LDS_A, t)
    for i in range(20):
        e.ds_read("ds_read_b128", u, a, i*1024)
        g.s1("s_mov_b32", sO2, i*1024)
        e.gstore("buffer_store_dwordx4", u, t, sWS, sO2)
        e.wait_vm_all()
    if opt.dump == 'S':
        pass
    e.label("L_k1_end")
    e.raw("s_endpgm")
    return e

def build_k2():
    g = G(); e = g.e
    e.raw("s_cmp_ge_u32 s2, 560"); e.raw("s_cbranch_scc1 L_k2_end")
    e.raw("s_load_dwordx2 s[36:37], s[0:1], 96")
    e.raw("s_load_dwordx2 s[38:39], s[0:1], 80")
    g.v2("v_and_b32", vL, 63, V(0)); g.v2("v_lshrrev_b32", V(2), 6, V(0))
    e.readfirstlane(sW, V(2))
    sI, sG, sR, sWp, sE = S(40), S(41), S(42), S(43), S(44)
    g.s2("s_lshl_b32", sI, S(2), 2); g.s2("s_add_u32", sI, sI, sW)
    g.s2("s_mul_hi_u32", sG, sI, 30678338)
    g.s2("s_mul_i32", sR, sG, 140); g.s2("s_sub_u32", sR, sI, sR)
    g.s2("s_mul_hi_u32", sWp, sR, 122713352)
    g.s2("s_mul_i32", sE, sWp, 35); g.s2("s_sub_u32", sE, sR, sE)
    e.raw("s_waitcnt lgkmcnt(0)")
    g.s2("s_mul_i32", S(45), sG, 16*PART_UNIT)
    g.s2("s_add_u32", S(4), S(36), S(45)); e.salu("s_addc_u32 s5, s37, 0")
    g.s1("s_mov_b32", S(6), 16*PART_UNIT); g.s1("s_mov_b32", S(7), "0x00020000")
    g.s2("s_mul_i32", S(45), sWp, PART_WAVE); g.s2("s_lshl_b32", S(46), sE, 10); g.s2("s_add_u32", S(45), S(45), S(46))
    g.v2("v_lshlrev_b32", V(2), 4, vL); g.v2("v_add_u32", V(2), S(45), V(2))
    ld = [V(8 + 4*h, 4) for h in range(16)]
    for h in range(16):
        g.s1("s_mov_b32", S(47), h*PART_UNIT)
        e.gload("buffer_load_dwordx4", ld[h], V(2), S(4, 4), S(47))
    q16, gg, t, u = V(3), V(4), V(5), V(6)
    g.v2("v_and_b32", q16, 15, vL); g.v2("v_lshrrev_b32", gg, 4, vL)
    sPP, sBlk, sBr, sBt = S(48), S(49), S(50), S(51)
    g.s2("s_mul_hi_u32", sPP, sE, 429496730)
    g.s2("s_mul_i32", sBlk, sPP, 10); g.s2("s_sub_u32", sBlk, sE, sBlk)
    g.s2("s_lshr_b32", sBr, sG, 3); g.s2("s_and_b32", sBt, sG, 7)
    g.v2("v_and_b32", t, 1, gg); g.v2("v_lshrrev_b32", u, 1, gg); g.v2("v_lshlrev_b32", u, 3, u)
    e.raw(f"s_cmp_lt_u32 {sE}, 30")
    g.s2("s_sub_u32", S(52), sE, 30); g.s2("s_lshl_b32", S(52), S(52), 1)
    e.raw(f"s_cmp_lt_u32 {sE}, 30")
    e.raw(f"s_cselect_b32 s52, {sBlk}, s52")
    g.s2("s_lshl_b32", S(53), sPP, 5)
    e.raw(f"s_cmp_lt_u32 {sE}, 30")
    e.raw("s_cselect_b32 s53, s53, 96")
    e.raw(f"s_cmp_lt_u32 {sE}, 30")
    e.raw("s_cselect_b32 s54, 16, 0")
    e.raw(f"s_cmp_lt_u32 {sE}, 30")
    e.raw("s_cselect_b32 s55, 0, 16")
    g.s2("s_mul_i32", S(56), sBt, 160); g.s2("s_lshl_b32", S(52), S(52), 4); g.s2("s_add_u32", S(56), S(56), S(52))
    g.s2("s_mul_i32", S(57), sBr, 448); g.s2("s_mul_i32", S(58), sWp, 112); g.s2("s_add_u32", S(57), S(57), S(58)); g.s2("s_add_u32", S(57), S(57), S(53))
    row, col = V(7), V(72)
    g.v3("v_mad_u32_u24", row, t, S(55), q16); g.v2("v_add_u32", row, S(56), row)
    g.v3("v_mad_u32_u24", col, t, S(54), u); g.v2("v_add_u32", col, S(57), col)
    g.s1("s_mov_b32", S(59), 1792)
    g.v2("v_lshlrev_b32", col, 1, col); g.v3("v_mad_u32_u24", row, row, S(59), col)
    g.s1("s_mov_b32", S(8), S(38)); g.s1("s_mov_b32", S(9), S(39)); g.s1("s_mov_b32", S(10), 1280*1792); g.s1("s_mov_b32", S(11), "0x00020000")
    acc = [V(76 + j) for j in range(8)]; tmp = [V(84), V(85)]
    for h in range(16):
        for j in range(4):
            if h == 0:
                g.v2("v_lshlrev_b32", acc[2*j], 16, ld[h][j]); g.v2("v_and_b32", acc[2*j+1], "0xffff0000", ld[h][j])
            else:
                g.v2("v_lshlrev_b32", tmp[0], 16, ld[h][j]); g.v2("v_and_b32", tmp[1], "0xffff0000", ld[h][j])
                g.v2("v_add_f32", acc[2*j], acc[2*j], tmp[0]); g.v2("v_add_f32", acc[2*j+1], acc[2*j+1], tmp[1])
    O = V(88, 4)
    for j in range(4):
        e.valu(f"v_cvt_pk_bf16_f32 {O[j]}, {acc[2*j]}, {acc[2*j+1]}", dst=[O[j]], src=[acc[2*j], acc[2*j+1]])
    e.valu(f"v_permlane16_swap_b32 {O[0]}, {O[2]}", dst=[O[0], O[2]], src=[O[0], O[2]], permlane=True)
    e.valu(f"v_permlane16_swap_b32 {O[1]}, {O[3]}", dst=[O[1], O[3]], src=[O[1], O[3]], permlane=True)
    e.gstore("buffer_store_dwordx4", O, row, S(8, 4), None)
    e.label("L_k2_end")
    e.raw("s_endpgm")
    return e

KD = """.amdhsa_kernel {name}
  .amdhsa_next_free_vgpr {vgpr}
  .amdhsa_next_free_sgpr 96
  .amdhsa_accum_offset {acc}
  .amdhsa_group_segment_fixed_size 0
  .amdhsa_kernarg_size 104
  .amdhsa_user_sgpr_count 2
  .amdhsa_user_sgpr_kernarg_segment_ptr 1
  .amdhsa_system_sgpr_workgroup_id_x 1
.end_amdhsa_kernel
"""
def assemble(path):
    k1 = build_k1(); k2 = build_k2()
    hdr = open("cdna_kernels/" + NAME + ".s.ref").read().split("; Override launch")[0]
    out = hdr
    out += f"; @launch kernel=mha_k1_kernel grid=(256,1,1) block=(256,1,1) lds={LDS_TOTAL}\n"
    out += f"; @launch kernel=mha_k2_kernel grid=(560,1,1) block=(256,1,1) lds=0\n"
    out += '.amdgcn_target "amdgcn-amd-amdhsa--gfx950"\n.text\n'
    for nm, k in (("mha_k1_kernel", k1), ("mha_k2_kernel", k2)):
        out += f".globl {nm}\n.p2align 8\n.type {nm},@function\n{nm}:\n" + k.text()
    out += '.section .rodata,"a"\n.p2align 6\n' + KD.format(name="mha_k1_kernel", vgpr=512, acc=256)
    out += '.p2align 6\n' + KD.format(name="mha_k2_kernel", vgpr=96, acc=96)
    open(path, "w").write(out)
    print("k1 stats", k1.stats, "k2", k2.stats, file=sys.stderr)

if __name__ == "__main__":
    path = sys.argv[1] if len(sys.argv) > 1 else "cdna_kernels/" + NAME + ".s"
    for a in sys.argv[2:]:
        k, v = a.split("=")
        if v in ("True", "False"): v = (v == "True")
        elif v == "None": v = None
        setattr(opt, k, v)
    assemble(path)
```

```python
import sys, math, struct
from emit import *

NAME = "concat_heads__mha_block_cached__mha_block_cached__near_ridge"
LDS_M = 0; LDS_A = 16384; LDS_B = 98304; XS = 49152
LDS_TOTAL = 163840
PART_UNIT = 143360
PART_WAVE = 35840

class Opt:
    nt_kv = True
    st_flags = ""
    dump = None
    stamps = False
    dbgtime = False
    k2_flags = ''
    k2_rep = 1
opt = Opt()

STAMPS = []
def f2u(x): return struct.unpack("<I", struct.pack("<f", x))[0]

sX, sK, sV, sWQ, sWO, sWS = S(4,4), S(8,4), S(12,4), S(16,4), S(20,4), S(24,4)
sW, sRB, sWB, sXD, sO1, sO2, sC = S(28), S(29), S(30), S(31), S(32), S(33), S(34)
sT = [S(36+i) for i in range(28)]

vL   = V(1)
vB0, vB1 = V(2), V(3)
vK0, vK1 = V(4), V(5)
vTv  = [V(6+i) for i in range(4)]
vDK  = [V(10+i) for i in range(4)]
vDV  = [V(14+i) for i in range(4)]
vDWO = [V(18+i) for i in range(4)]
vPW, vOW, vSTW, vSTR, vWS = V(22), V(23), V(24), V(25), V(26)
vM   = [V(28+i) for i in range(10)]
ACC0 = 40
vX0, vX1 = V(200), V(201)
vTq  = [V(202+i) for i in range(4)]
vDX  = [V(206+i) for i in range(5)]
vDWQ = [V(211+i) for i in range(4)]
vQW  = V(215)
vLs  = [V(200+i) for i in range(10)]
vPT  = [V(210, 8), V(218, 8)]
vPO  = [V(228, 4), V(232, 4)]
vTmp = [V(240+i) for i in range(16)]
aB = [A(4*b, 4) for b in range(10)]
aA = [[A(40 + 16*s + 4*t, 4) for t in range(4)] for s in range(2)]
aO = lambda t, b: A(96 + 4*(b*4+t), 4)

def accQ(t, b): return V(ACC0 + 4*(b*4+t), 4)
def accS(t, b): return V(160 + 8*b + 4*t, 4)
def park(p, b): return V((40 + 40*p if p < 3 else 160) + 4*b, 4)

class G:
    def __init__(self):
        self.e = Emit()
    def v2(self, op, d, a, b):
        self.e.valu(f"{op} {d}, {a}, {b}", dst=[d], src=[x for x in (a, b) if isinstance(x, R)])
    def v1(self, op, d, a, trans=False):
        self.e.valu(f"{op} {d}, {a}", dst=[d], src=[a] if isinstance(a, R) else [], trans=trans)
    def v3(self, op, d, a, b, c, neg_c=False):
        cc = f"-{c}" if neg_c else f"{c}"
        self.e.valu(f"{op} {d}, {a}, {b}, {cc}", dst=[d], src=[x for x in (a, b, c) if isinstance(x, R)])
    def s2(self, op, d, a, b):
        self.e.salu(f"{op} {d}, {a}, {b}", reads=[x for x in (a, b) if isinstance(x, R)])
    def s1(self, op, d, a):
        self.e.salu(f"{op} {d}, {a}", reads=[a] if isinstance(a, R) else [])
    def m0(self, sbase, imm):
        self.e.salu(f"s_add_u32 m0, {sbase}, {imm}", w_m0=True, reads=[sbase])

    def dma_group(self, voffs, srd, sbase, ldsoff, soff_imm, sreg, holder, key, flags=""):
        e = self.e
        fs = []
        def head():
            self.m0(sbase, ldsoff)
            self.s1("s_mov_b32", sreg, soff_imm)
        fs.append(head)
        n = len(voffs)
        for i in range(n):
            def f(i=i):
                if i == 4:
                    self.m0(sbase, ldsoff + 4096)
                t = e.dma(voffs[i], srd, sreg, offset=(1024*i if i < 4 else 0), flags=flags)
                holder[key] = t
            fs.append(f)
        return fs

    def run(self, fs):
        for f in fs: f()

    nst = 0
    def stamp(self, name):
        if not opt.stamps: return
        i = self.nst; self.nst += 1
        STAMPS.append(name)
        self.e.raw(f"s_memtime s[{64+2*i}:{65+2*i}]")
        self.e.raw("s_waitcnt lgkmcnt(0)")
        self.e.lg_done = self.e.lg_issued
    def stamp_flush(self):
        if not opt.stamps: return
        e = self.e
        e.raw("s_memrealtime s[94:95]"); e.raw("s_waitcnt lgkmcnt(0)")
        e.raw("s_load_dwordx2 s[36:37], s[0:1], 96"); e.raw("s_waitcnt lgkmcnt(0)")
        e.salu("s_add_u32 s36, s36, 0x4000000"); e.salu("s_addc_u32 s37, s37, 0")
        e.salu("s_mov_b32 s38, 0x100000"); e.salu("s_mov_b32 s39, 0x00020000")
        e.salu("s_lshl_b32 s40, s2, 8"); e.salu(f"s_lshl_b32 s41, {sW}, 6"); e.salu("s_add_u32 s40, s40, s41")
        for i in range(self.nst):
            self.v1("v_mov_b32", V(240), S(64+2*i))
            e.salu(f"s_add_u32 s41, s40, {4*i}")
            e.gstore("buffer_store_dword", V(240), V(241), S(36, 4), S(41))
        self.v1("v_mov_b32", V(240), S(94))
        e.salu(f"s_add_u32 s41, s40, 60")
        e.gstore("buffer_store_dword", V(240), V(241), S(36, 4), S(41))
        self.v1("v_mov_b32", V(240), S(92))
        e.salu(f"s_add_u32 s41, s40, 56")
        e.gstore("buffer_store_dword", V(240), V(241), S(36, 4), S(41))

    def kstep(self, mf, gaps):
        for i, m in enumerate(mf):
            m()
            for f in gaps.get(i, []): f()

def spread(gaps, fs, start, end):
    n = len(fs)
    if n == 0: return
    span = end - start
    for j, f in enumerate(fs):
        gaps.setdefault(start + (j * span) // n, []).append(f)

def build_k1():
    g = G(); e = g.e
    kvflag = "nt" if opt.nt_kv else ""
    e.raw("s_cmp_ge_u32 s2, 256"); e.raw("s_cbranch_scc1 L_k1_end")
    if opt.stamps:
        e.raw("s_memrealtime s[92:93]"); e.raw("s_waitcnt lgkmcnt(0)")
    g.stamp("start")
    if opt.dbgtime:
        e.raw("s_memrealtime s[92:93]"); e.raw("s_memtime s[90:91]"); e.raw("s_waitcnt lgkmcnt(0)")
    e.raw("s_load_dwordx16 s[36:51], s[0:1], 0")
    e.raw("s_load_dwordx4 s[52:55], s[0:1], 64")
    e.raw("s_load_dwordx2 s[56:57], s[0:1], 96")
    g.s2("s_and_b32", S(58), S(2), 7)
    g.s2("s_lshr_b32", S(59), S(2), 3)
    g.s2("s_and_b32", S(60), S(58), 3); g.s2("s_lshl_b32", S(60), S(60), 2)
    g.s2("s_and_b32", S(61), S(59), 3); g.s2("s_add_u32", S(60), S(60), S(61))
    g.s2("s_lshr_b32", S(61), S(59), 2)
    g.s2("s_lshr_b32", S(62), S(58), 2)
    sH, sBt, sBr = S(60), S(61), S(62)
    g.v2("v_and_b32", vL, 63, V(0))
    g.v2("v_lshrrev_b32", vTmp[0], 6, V(0))
    e.readfirstlane(sW, vTmp[0])
    e.raw("s_waitcnt lgkmcnt(0)")
    e.raw(f"s_cmp_eq_u32 {sBr}, 0")
    for k, (pa, pb) in enumerate([(36,46),(38,48),(40,50),(42,52),(44,54)]):
        e.raw(f"s_cselect_b32 s{pa}, s{pa}, s{pb}"); e.raw(f"s_cselect_b32 s{pa+1}, s{pa+1}, s{pb+1}")
    def srd(dst, plo, off_sreg, nrec):
        g.s2("s_add_u32", dst[0], S(plo), off_sreg)
        e.salu(f"s_addc_u32 {dst[1]}, s{plo+1}, 0")
        if isinstance(nrec, R): g.s1("s_mov_b32", dst[2], nrec)
        else: g.s1("s_mov_b32", dst[2], nrec)
        g.s1("s_mov_b32", dst[3], "0x00020000")
    t0, t1 = S(63), S(35)
    g.s2("s_mul_i32", t0, sBt, 143360); srd(sX, 36, t0, 143360)
    g.s2("s_lshl_b32", t0, sBt, 4); g.s2("s_add_u32", t0, t0, sH)
    g.s2("s_lshl_b32", t1, t0, 18); srd(sK, 38, t1, 262144); srd(sV, 40, t1, 262144)
    g.s2("s_lshl_b32", t1, sBr, 7); g.s2("s_add_u32", t0, t0, t1)
    g.s2("s_mul_i32", t1, t0, PART_UNIT); srd(sWS, 56, t1, PART_UNIT)
    g.s2("s_lshl_b32", t1, sH, 9); g.s2("s_sub_u32", t0, 3670016, t1); srd(sWQ, 42, t1, t0)
    g.s2("s_mul_i32", t1, sH, 229376); srd(sWO, 44, t1, 229376)
    g.s2("s_lshl_b32", sRB, sW, 14); g.s2("s_add_u32", sRB, sRB, LDS_B)
    g.s2("s_mul_i32", sWB, sW, 12288)
    g.s2("s_mul_i32", sXD, sW, 5120); g.s2("s_add_u32", sXD, sXD, XS)
    g.s1("s_mov_b32", sC, hex(f2u(math.log2(math.e) / 16.0)))
    q16, gg, r4, c4, prow, pg = vTmp[0], vTmp[1], vTmp[2], vTmp[3], vTmp[4], vTmp[5]
    t, u, w_v = vTmp[6], vTmp[7], vTmp[8]
    g.v2("v_and_b32", q16, 15, vL); g.v2("v_lshrrev_b32", gg, 4, vL)
    g.v3("v_bfe_u32", r4, vL, 2, 2); g.v2("v_and_b32", c4, 3, vL)
    g.v2("v_lshrrev_b32", prow, 3, vL); g.v2("v_and_b32", pg, 7, vL)
    g.v1("v_mov_b32", w_v, sW)
    s896, s8192 = S(36), S(37)
    g.s1("s_mov_b32", s896, 896)
    for i in range(5):
        g.v3("v_mad_u32_u24", t, w_v, 5, i)
        g.v2("v_and_b32", u, 1, t); g.v2("v_lshlrev_b32", u, 2, u); g.v2("v_add_u32", u, u, gg)
        g.v2("v_xor_b32", u, u, pg); g.v2("v_lshlrev_b32", u, 4, u)
        g.v3("v_lshl_add_u32", t, t, 3, prow)
        g.v3("v_mad_u32_u24", vDX[i], t, s896, u)
        if i < 4 and i > 0: g.v2("v_subrev_u32", vDX[i], 1024*i, vDX[i])
    for jj in range(4):
        g.v3("v_bfe_u32", u, prow, 1, 1)
        if jj & 1: g.v2("v_or_b32", u, 2, u)
        g.v2("v_lshlrev_b32", u, 1, u); g.v2("v_xor_b32", u, u, pg); g.v2("v_lshlrev_b32", u, 4, u)
        g.v2("v_add_u32", t, 8*jj, prow); g.v2("v_lshlrev_b32", t, 13, t)
        g.v2("v_add_u32", t, t, u)
        g.v3("v_lshl_add_u32", t, w_v, 7, t)
        if jj: g.v2("v_subrev_u32", vDWQ[jj], 1024*jj, t)
        else: g.v1("v_mov_b32", vDWQ[jj], t)
    H = {}
    g.run(g.dma_group(vDX, sX, sXD, 0, 0, sO1, H, ('x', 0)))
    for s in range(3):
        g.run(g.dma_group(vDWQ, sWQ, sWB, 4096*s, 262144*s, sO2, H, ('wq', s)))
    g.run(g.dma_group(vDX, sX, sXD, 20480, 128, sO1, H, ('x', 1)))
    for jj in range(4):
        g.v2("v_add_u32", u, 4*(jj & 1), gg); g.v2("v_xor_b32", u, u, pg); g.v2("v_lshlrev_b32", u, 4, u)
        g.v3("v_lshl_add_u32", t, w_v, 5, prow)
        g.v2("v_add_u32", t, 8*jj, t); g.v2("v_lshlrev_b32", t, 9, t)
        g.v2("v_add_u32", t, t, u)
        if jj: g.v2("v_subrev_u32", vDK[jj], 1024*jj, t)
        else: g.v1("v_mov_b32", vDK[jj], t)
    for cb in range(4):
        g.run(g.dma_group(vDK, sK, sRB, 4096*cb, 128*cb, sO1, H, ('k', 0, cb), flags=kvflag))
    gv = vTmp[9]
    g.v3("v_bfe_u32", u, prow, 1, 2); g.v2("v_lshlrev_b32", u, 1, u); g.v2("v_xor_b32", u, u, pg); g.v2("v_lshlrev_b32", gv, 4, u)
    s224 = S(37); g.s1("s_mov_b32", s224, 224)
    for jj in range(4):
        g.v2("v_add_u32", t, 8*jj, prow)
        g.v2("v_lshlrev_b32", u, 9, t); g.v2("v_add_u32", u, u, gv); g.v3("v_lshl_add_u32", u, w_v, 7, u)
        if jj: g.v2("v_subrev_u32", vDV[jj], 1024*jj, u)
        else: g.v1("v_mov_b32", vDV[jj], u)
        g.v3("v_mad_u32_u24", u, t, s896, gv); g.v3("v_mad_u32_u24", u, w_v, s224, u)
        if jj: g.v2("v_subrev_u32", vDWO[jj], 1024*jj, u)
        else: g.v1("v_mov_b32", vDWO[jj], u)
    g.v2("v_lshlrev_b32", t, 4, vL); g.v2("v_add_u32", vB0, LDS_A, t); g.v2("v_add_u32", vB1, LDS_A + 40960, t)
    g.v2("v_lshrrev_b32", u, 1, q16)
    for sp, (vx, vk) in enumerate([(vX0, vK0), (vX1, vK1)]):
        g.v2("v_add_u32", t, 4*sp, gg); g.v2("v_xor_b32", t, t, u); g.v2("v_lshlrev_b32", t, 4, t)
        g.v3("v_lshl_add_u32", t, q16, 7, t)
        g.v2("v_add_u32", vx, XS, t); g.v2("v_add_u32", vk, sRB, t)
    phq, phv, base = vTmp[10], vTmp[11], vTmp[12]
    g.v2("v_lshrrev_b32", u, 1, r4)
    g.v2("v_and_b32", t, 1, gg); g.v3("v_lshl_or_b32", phq, t, 1, u)
    g.v3("v_lshl_add_u32", phv, gg, 1, u); g.v2("v_and_b32", phv, 3, phv)
    g.v3("v_lshl_add_u32", base, gg, 3, r4); g.v2("v_lshlrev_b32", base, 7, base); g.v3("v_lshl_add_u32", base, c4, 3, base)
    g.v2("v_add_u32", base, sWB, base)
    for tt in range(4):
        g.v2("v_xor_b32", t, tt, phq); g.v3("v_lshl_add_u32", vTq[tt], t, 5, base)
    g.v3("v_lshl_add_u32", base, gg, 2, r4); g.v2("v_lshlrev_b32", base, 7, base); g.v3("v_lshl_add_u32", base, c4, 3, base)
    g.v2("v_add_u32", base, sRB, base)
    for tt in range(4):
        g.v2("v_xor_b32", t, tt, phv); g.v3("v_lshl_add_u32", vTv[tt], t, 5, base)
    sA = S(38); g.s2("s_mul_i32", sA, sW, 20480); g.s2("s_add_u32", sA, sA, LDS_A)
    g.v2("v_lshrrev_b32", t, 1, gg); g.v2("v_lshlrev_b32", t, 8, t); g.v3("v_lshl_add_u32", t, q16, 4, t)
    g.v2("v_and_b32", u, 1, gg); g.v3("v_lshl_add_u32", t, u, 3, t); g.v2("v_add_u32", vQW, sA, t)
    g.v2("v_lshlrev_b32", t, 4, vL); g.v2("v_add_u32", vOW, sA, t)
    g.s2("s_mul_i32", sA, sW, 10240); g.s2("s_add_u32", sA, sA, LDS_A); g.v2("v_add_u32", vPW, sA, t)
    g.s2("s_mul_i32", sA, sW, PART_WAVE); g.v2("v_add_u32", vWS, sA, t)
    g.v2("v_lshlrev_b32", vSTR, 4, q16); g.s2("s_lshl_b32", sA, sW, 2); g.v2("v_add_u32", vSTW, sA, vSTR)
    for b in range(10): g.v1("v_mov_b32", vM[b], "0xff800000")

    def rdA_wq(s):
        fs = []
        for tt in range(4):
            for hf in range(2):
                fs.append(lambda tt=tt, hf=hf: e.ds_read("ds_read_b64_tr_b16", aA[s & 1][tt].sub(2*hf, 2), vTq[tt], 4096*(s % 3) + 512*hf))
        return fs
    def rdB_x(s, b):
        return lambda: e.ds_read("ds_read_b128", aB[b], (vX0, vX1)[s & 1], 20480*((s >> 1) & 1) + 2048*b)
    g.stamp("prolog")
    e.wait_vm(H[('wq', 0)]); e.wait_vm(H[('x', 0)])
    e.barrier()
    g.stamp("firstdata")
    g.run(rdA_wq(0))
    for b in range(10): rdB_x(0, b)()
    NQ = 14
    for s in range(NQ):
        e.comment(f"Q step {s}")
        mf = []
        for b in range(10):
            for tt in range(4):
                mf.append(lambda b=b, tt=tt: e.mfma(accQ(tt, b), aA[s & 1][tt], aB[b], accQ(tt, b) if s > 0 else 0))
        gaps = {}
        nxt = s + 1
        if nxt < NQ:
            newchunk = (nxt % 2 == 0)
            fa = [lambda: e.wait_vm(H[('wq', nxt)])] + rdA_wq(nxt)
            spread(gaps, fa, 1, 18)
            if newchunk:
                c = nxt // 2
                def bar(c=c):
                    e.wait_vm(H[('x', c)]); e.wait_lg_all(); e.barrier()
                gaps.setdefault(7, []).insert(0, bar)
                if c + 1 < 7:
                    fx = g.dma_group(vDX, sX, sXD, 20480*((c+1) & 1), 128*(c+1), sO1, H, ('x', c+1))
                    spread(gaps, fx, 8, 20)
                for b in range(10):
                    gi = min(39, 4*(b+2)+3) if b < 8 else 39
                    gaps.setdefault(gi, []).append(rdB_x(nxt, b))
            else:
                for b in range(10): gaps.setdefault(4*b+3, []).append(rdB_x(nxt, b))
        if s + 3 < NQ:
            fw = g.dma_group(vDWQ, sWQ, sWB, 4096*(s % 3), 262144*(s+3), sO2, H, ('wq', s+3))
            spread(gaps, fw, 20, 36)
        g.kstep(mf, gaps)
    g.stamp("Qdone")
    for b in range(10):
        for tt in range(4):
            d = accQ(tt, b)
            g.v3c = None
            e.valu(f"v_cvt_pk_bf16_f32 {d[0]}, {d[0]}, {d[1]}", dst=[d[0]], src=[d[0], d[1]])
            e.valu(f"v_cvt_pk_bf16_f32 {d[1]}, {d[2]}, {d[3]}", dst=[d[1]], src=[d[2], d[3]])
    e.wait_lg_all(); e.barrier()
    for b in range(10):
        for tt in range(4):
            e.ds_write("ds_write_b64", vQW, accQ(tt, b).sub(0, 2), (tt >> 1)*10240 + b*1024 + (tt & 1)*512)
    e.wait_lg_all(); e.barrier()
    if opt.dump == 'Q': return finish_dump(g)

    g.stamp("Qepi")
    def vBf(f): return (vB0, f*1024) if f < 40 else (vB1, (f-40)*1024)
    def rdB_frag(f, b):
        a, o = vBf(f)
        return lambda: e.ds_read("ds_read_b128", aB[b], a, o)
    def rdA_k(gs):
        s = gs % 8
        return [lambda tt=tt: e.ds_read("ds_read_b128", aA[gs & 1][tt], (vK0, vK1)[s & 1], 4096*(s >> 1) + 2048*tt) for tt in range(2)]
    e.wait_vm(H[('k', 0, 0)])
    g.run(rdA_k(0))
    for b in range(10): rdB_frag(b, b)()
    for p in range(4):
        for s in range(8):
            gs = 8*p + s
            mf = []
            for b in range(10):
                for tt in range(2):
                    mf.append(lambda b=b, tt=tt: e.mfma(accS(tt, b), aA[gs & 1][tt], aB[b], accS(tt, b) if s > 0 else 0))
            gaps = {}
            if gs + 1 < 32:
                n = gs + 1; pn, sn = n // 8, n % 8
                fa = [lambda pn=pn, sn=sn: e.wait_vm(H[('k', pn, sn >> 1)])] + rdA_k(n)
                spread(gaps, fa, 1, 6)
                for b in range(10): gaps.setdefault(2*b+1, []).append(rdB_frag(sn*10 + b, b))
            if s & 1:
                cb = s >> 1
                if p < 3: fd = g.dma_group(vDK, sK, sRB, 4096*cb, 65536*(p+1) + 128*cb, sO1, H, ('k', p+1, cb), flags=kvflag)
                else:     fd = g.dma_group(vDV, sV, sRB, 4096*cb, 16384*cb, sO1, H, ('v', cb), flags=kvflag)
                spread(gaps, fd, 8, 18)
            g.kstep(mf, gaps)
        for b in range(10):
            s0, s1 = accS(0, b), accS(1, b)
            g.v3("v_max3_f32", vM[b], vM[b], s0[0], s0[1]); g.v3("v_max3_f32", vM[b], vM[b], s0[2], s0[3])
            g.v3("v_max3_f32", vM[b], vM[b], s1[0], s1[1]); g.v3("v_max3_f32", vM[b], vM[b], s1[2], s1[3])
            pk = park(p, b)
            for j, (src, o) in enumerate([(s0, 0), (s0, 2), (s1, 0), (s1, 2)]):
                e.valu(f"v_cvt_pk_bf16_f32 {pk[j]}, {src[o]}, {src[o+1]}", dst=[pk[j]], src=[src[o], src[o+1]])
    def xreduce(op, regs, lds_off):
        ta = vTmp
        for b in range(10):
            g.v1("v_mov_b32", ta[b], regs[b])
        for b in range(10):
            e.valu(f"v_permlane32_swap_b32 {ta[b]}, {regs[b]}", dst=[ta[b], regs[b]], src=[ta[b], regs[b]], permlane=True)
        for b in range(10): g.v2(op, regs[b], ta[b], regs[b])
        for b in range(10): g.v1("v_mov_b32", ta[b], regs[b])
        for b in range(10):
            e.valu(f"v_permlane16_swap_b32 {ta[b]}, {regs[b]}", dst=[ta[b], regs[b]], src=[ta[b], regs[b]], permlane=True)
        for b in range(10): g.v2(op, regs[b], ta[b], regs[b])
        for b in range(10): e.ds_write("ds_write_b32", vSTW, regs[b], lds_off + 256*b)
    g.stamp("Sdone")
    xreduce("v_max_f32", vM, 0)
    e.wait_lg_all(); e.barrier()
    st = [V(200 + 4*b, 4) for b in range(10)]
    for b in range(10): e.ds_read("ds_read_b128", st[b], vSTR, 256*b)
    for b in range(10):
        g.v3("v_max3_f32", vM[b], st[b][0], st[b][1], st[b][2]); g.v2("v_max_f32", vM[b], vM[b], st[b][3])
        g.v2("v_mul_f32", vM[b], sC, vM[b])
    if opt.dump == 'S': return finish_dump(g)
    for b in range(10): g.v1("v_mov_b32", vLs[b], 0)

    cnt = [0]
    def pprod(c):
        fs = []
        for b in range(10):
            k = cnt[0] & 1; cnt[0] += 1
            T = vPT[k]; O = vPO[k]; pk = park(c, b)
            for j in range(4):
                fs.append(lambda j=j, T=T, pk=pk: g.v2("v_lshlrev_b32", T[2*j], 16, pk[j]))
                fs.append(lambda j=j, T=T, pk=pk: g.v2("v_and_b32", T[2*j+1], "0xffff0000", pk[j]))
            for j in range(8): fs.append(lambda j=j, T=T, b=b: g.v3("v_fma_f32", T[j], T[j], sC, vM[b], neg_c=True))
            for j in range(8): fs.append(lambda j=j, T=T: g.v1("v_exp_f32", T[j], T[j], trans=True))
            for j in range(4):
                fs.append(lambda j=j, T=T, O=O: e.valu(f"v_cvt_pk_bf16_f32 {O[j]}, {T[2*j]}, {T[2*j+1]}", dst=[O[j]], src=[T[2*j], T[2*j+1]]))
            for j in range(8): fs.append(lambda j=j, T=T, b=b: g.v2("v_add_f32", vLs[b], vLs[b], T[j]))
            fs.append(lambda O=O, b=b, c=c: e.ds_write("ds_write_b128", vPW, O, (c & 1)*40960 + b*1024))
        return fs
    g.run(pprod(0))
    e.wait_lg_all(); e.barrier()

    g.stamp("P0")
    def rdA_v(j, grp, slot):
        fs = []
        for tt in range(4):
            for hf in range(2):
                fs.append(lambda tt=tt, hf=hf: e.ds_read("ds_read_b64_tr_b16", aA[slot][tt].sub(2*hf, 2), vTv[tt], 4096*grp + 2048*hf))
        return fs
    def rdB_p(j, b):
        c, wp = j >> 2, j & 3
        a = vB1 if (c & 1) else vB0
        return lambda: e.ds_read("ds_read_b128", aB[b], a, (wp*10 + b)*1024)
    e.wait_vm(H[('v', 0)])
    g.run(rdA_v(0, 0, 0))
    for b in range(10): rdB_p(0, b)()
    prod = {}
    def split(fs, steps):
        n = len(steps); per = (len(fs) + n - 1) // n
        for i, st_ in enumerate(steps): prod[st_] = fs[i*per:(i+1)*per]
    split(pprod(1), [0, 1, 2]); split(pprod(2), [3, 4, 5, 6]); split(pprod(3), [7, 8, 9, 10])
    for j in range(16):
        e.comment(f"PV step {j}")
        mf = []
        for b in range(10):
            for tt in range(4):
                mf.append(lambda b=b, tt=tt: e.mfma(aO(tt, b), aA[j & 1][tt], aB[b], aO(tt, b) if j > 0 else 0))
        gaps = {}
        n = j + 1
        bar_here = (j % 4 == 3 and j < 15)
        if bar_here:
            def bar():
                e.wait_lg_all(); e.barrier()
            gaps.setdefault(1, []).insert(0, bar)
        if n < 16:
            fa = [lambda n=n: e.wait_vm(H[('v', n)])] + rdA_v(n, n & 3, n & 1)
            spread(gaps, fa, 2, 20)
            for b in range(10): gaps.setdefault(4*b+3, []).append(rdB_p(n, b))
        else:
            pass
        if j + 4 < 16: fd = g.dma_group(vDV, sV, sRB, 4096*(j & 3), 16384*(j+4), sO1, H, ('v', j+4), flags=kvflag)
        else:
            jj = j + 4 - 16
            fd = g.dma_group(vDWO, sWO, sRB, 4096*(j & 3), 28672*jj, sO1, H, ('wo', jj))
        spread(gaps, fd, 21, 38)
        if j in prod: spread(gaps, prod[j], 2 if bar_here else 0, 40)
        if j == 11:
            pass
        if j == 10:
            fs = [lambda: xreduce("v_add_f32", vLs, 4096)]
            gaps.setdefault(39, []).extend(fs)
        if j == 12:
            stl = [V(160 + 4*b, 4) for b in range(10)]
            fs = []
            for b in range(10): fs.append(lambda b=b: e.ds_read("ds_read_b128", stl[b], vSTR, 4096 + 256*b))
            for b in range(10):
                fs.append(lambda b=b: g.v2("v_add_f32", stl[b][0], stl[b][0], stl[b][1]))
                fs.append(lambda b=b: g.v2("v_add_f32", stl[b][2], stl[b][2], stl[b][3]))
                fs.append(lambda b=b: g.v2("v_add_f32", vLs[b], stl[b][0], stl[b][2]))
                fs.append(lambda b=b: g.v1("v_rcp_f32", vLs[b], vLs[b], trans=True))
            spread(gaps, fs, 2, 40)
        g.kstep(mf, gaps)
    g.stamp("PVdone")
    ost = lambda u, b: V(40 + 4*(u*10 + b), 4)
    tt8 = [V(120 + 8*k, 8) for k in range(2)]
    kk = 0
    for u in range(2):
        for b in range(10):
            T = tt8[kk & 1]; kk += 1
            for h2 in range(2):
                for r in range(4):
                    e.valu(f"v_accvgpr_read_b32 {T[4*h2+r]}, {aO(2*u+h2, b)[r]}", dst=[T[4*h2+r]], src=[aO(2*u+h2, b)[r]])
            for j in range(8): g.v2("v_mul_f32", T[j], T[j], vLs[b])
            for j in range(4):
                e.valu(f"v_cvt_pk_bf16_f32 {ost(u,b)[j]}, {T[2*j]}, {T[2*j+1]}", dst=[ost(u,b)[j]], src=[T[2*j], T[2*j+1]])
    e.wait_lg_all(); e.barrier()
    for u in range(2):
        for b in range(10): e.ds_write("ds_write_b128", vOW, ost(u, b), u*10240 + b*1024)
    e.wait_lg_all(); e.barrier()
    if opt.dump == 'O': return finish_dump(g)

    g.stamp("Opost")
    def rdA_wo(jj, slot, nt_):
        fs = []
        for tt in range(nt_):
            for hf in range(2):
                fs.append(lambda tt=tt, hf=hf: e.ds_read("ds_read_b64_tr_b16", aA[slot][tt].sub(2*hf, 2), vTv[tt], 4096*(jj & 3) + 2048*hf))
        return fs
    aO2 = lambda t, b: A(96 + 4*(b*4+t), 4)
    vO2 = lambda t, b: V(40 + 4*(b*3+t), 4)
    e.wait_vm(H[('wo', 0)])
    g.run(rdA_wo(0, 0, 4))
    for b in range(10): rdB_frag(b, b)()
    def epi0():
        fs = []; k = 0
        for pp in range(2):
            for b in range(10):
                T = V(160 + 8*(k & 1), 8); O = V(176 + 4*(k & 3), 4); k += 1
                for h2 in range(2):
                    for r in range(4):
                        fs.append(lambda T=T, h2=h2, r=r, pp=pp, b=b: e.valu(f"v_accvgpr_read_b32 {T[4*h2+r]}, {aO2(2*pp+h2, b)[r]}", dst=[T[4*h2+r]], src=[aO2(2*pp+h2, b)[r]]))
                for j in range(4):
                    fs.append(lambda T=T, O=O, j=j: e.valu(f"v_cvt_pk_bf16_f32 {O[j]}, {T[2*j]}, {T[2*j+1]}", dst=[O[j]], src=[T[2*j], T[2*j+1]]))
                ee = pp*10 + b
                def st(O=O, ee=ee):
                    g.s1("s_mov_b32", sO2, (ee >> 2)*4096)
                    e.gstore("buffer_store_dwordx4", O, vWS, sWS, sO2, offset=(ee & 3)*1024, flags=opt.st_flags)
                fs.append(st)
        return fs
    ep0 = epi0()
    for jj in range(16):
        ps, j = jj // 8, jj % 8
        nt_ = 4 if ps == 0 else 3
        mf = []
        for b in range(10):
            for tt in range(nt_):
                acc = aO2(tt, b) if ps == 0 else vO2(tt, b)
                mf.append(lambda b=b, tt=tt, acc=acc: e.mfma(acc, aA[jj & 1][tt], aB[b], acc if j > 0 else 0))
        gaps = {}
        n = jj + 1
        NG = len(mf)
        if n < 16:
            nt_n = 4 if n < 8 else 3
            fa = [lambda n=n: e.wait_vm(H[('wo', n)])] + rdA_wo(n, n & 1, nt_n)
            spread(gaps, fa, 1, NG//2)
            for b in range(10): gaps.setdefault(nt_*b + nt_-1, []).append(rdB_frag((n % 8)*10 + b, b))
        if jj + 4 < 16:
            m = jj + 4
            fd = g.dma_group(vDWO, sWO, sRB, 4096*(jj & 3), 28672*(m % 8) + 128*(m // 8), sO1, H, ('wo', m))
            spread(gaps, fd, NG//2 + 1, NG - 2)
        if ps == 1:
            per = (len(ep0) + 6) // 7
            if j < 7: spread(gaps, ep0[j*per:(j+1)*per], 1, NG)
        g.kstep(mf, gaps)
    g.stamp("outdone")
    k = 0
    for b in range(10):
        O = V(176 + 4*(k & 3), 4); k += 1
        for h2 in range(2):
            d = vO2(h2, b)
            e.valu(f"v_cvt_pk_bf16_f32 {O[2*h2]}, {d[0]}, {d[1]}", dst=[O[2*h2]], src=[d[0], d[1]])
            e.valu(f"v_cvt_pk_bf16_f32 {O[2*h2+1]}, {d[2]}, {d[3]}", dst=[O[2*h2+1]], src=[d[2], d[3]])
        ee = 20 + b
        g.s1("s_mov_b32", sO2, (ee >> 2)*4096)
        e.gstore("buffer_store_dwordx4", O, vWS, sWS, sO2, offset=(ee & 3)*1024, flags=opt.st_flags)
    for kb in range(5):
        O = V(176 + 4*(k & 3), 4); k += 1
        for h2 in range(2):
            d = vO2(2, 2*kb + h2)
            e.valu(f"v_cvt_pk_bf16_f32 {O[2*h2]}, {d[0]}, {d[1]}", dst=[O[2*h2]], src=[d[0], d[1]])
            e.valu(f"v_cvt_pk_bf16_f32 {O[2*h2+1]}, {d[2]}, {d[3]}", dst=[O[2*h2+1]], src=[d[2], d[3]])
        ee = 30 + kb
        g.s1("s_mov_b32", sO2, (ee >> 2)*4096)
        e.gstore("buffer_store_dwordx4", O, vWS, sWS, sO2, offset=(ee & 3)*1024, flags=opt.st_flags)
    if opt.stamps:
        e.wait_vm_all()
        g.stamp("end")
        g.v1("v_mov_b32", V(241), 0)
        g.stamp_flush()
    if opt.dbgtime:
        e.wait_vm_all()
        dbg_tail(g, 0, 0)
    e.label("L_k1_end")
    e.raw("s_endpgm")
    return e

def dbg_tail(g, word, back):
    e = g.e
    e.raw("s_memrealtime s[94:95]"); e.raw("s_memtime s[88:89]"); e.raw("s_load_dwordx2 s[36:37], s[0:1], 88"); e.raw("s_waitcnt lgkmcnt(0)")
    if back:
        e.salu(f"s_sub_u32 s36, s36, {back}"); e.salu("s_subb_u32 s37, s37, 0")
    e.salu("s_mov_b32 s38, 256"); e.salu("s_mov_b32 s39, 0x00020000")
    e.salu("s_not_b32 s40, s92"); e.salu("s_sub_u32 s41, s88, s90"); e.salu("s_sub_u32 s42, s94, s92")
    g.v1("v_mov_b32", V(2), S(40)); g.v1("v_mov_b32", V(3), S(94)); g.v1("v_mov_b32", V(4), 4*word)
    g.v1("v_mov_b32", V(5), S(41)); g.v1("v_mov_b32", V(6), S(42))
    e.raw("s_mov_b64 exec, 1")
    e.raw("buffer_atomic_umax v2, v4, s[36:39], 0 offen")
    e.raw("buffer_atomic_umax v3, v4, s[36:39], 0 offen offset:4")
    e.raw("buffer_atomic_umax v5, v4, s[36:39], 0 offen offset:8")
    e.raw("buffer_atomic_umax v6, v4, s[36:39], 0 offen offset:12")
    e.raw("s_waitcnt vmcnt(0)")

def finish_dump(g):
    e = g.e
    e.wait_lg_all(); e.wait_vm_all(); e.barrier()
    t = V(240); u = V(244, 4)
    g.s2("s_mul_i32", S(38), sW, 20480)
    g.v2("v_lshlrev_b32", t, 4, vL); g.v2("v_add_u32", t, S(38), t)
    a = V(241); g.v2("v_add_u32", a, LDS_A, t)
    for i in range(20):
        e.ds_read("ds_read_b128", u, a, i*1024)
        g.s1("s_mov_b32", sO2, i*1024)
        e.gstore("buffer_store_dwordx4", u, t, sWS, sO2)
        e.wait_vm_all()
    if opt.dump == 'S':
        pass
    e.label("L_k1_end")
    e.raw("s_endpgm")
    return e

def build_k2():
    g = G(); e = g.e
    e.raw("s_cmp_ge_u32 s2, 560"); e.raw("s_cbranch_scc1 L_k2_end")
    if opt.stamps: e.raw("s_memrealtime s[92:93]")
    if opt.dbgtime:
        e.raw("s_memrealtime s[92:93]"); e.raw("s_memtime s[90:91]"); e.raw("s_waitcnt lgkmcnt(0)")
    e.raw("s_load_dwordx2 s[36:37], s[0:1], 96")
    e.raw("s_load_dwordx2 s[38:39], s[0:1], 80")
    g.v2("v_and_b32", vL, 63, V(0)); g.v2("v_lshrrev_b32", V(2), 6, V(0))
    e.readfirstlane(sW, V(2))
    sI, sG, sR, sWp, sE = S(40), S(41), S(42), S(43), S(44)
    g.s2("s_lshl_b32", sI, S(2), 2); g.s2("s_add_u32", sI, sI, sW)
    g.s2("s_mul_hi_u32", sG, sI, 30678338)
    g.s2("s_mul_i32", sR, sG, 140); g.s2("s_sub_u32", sR, sI, sR)
    g.s2("s_mul_hi_u32", sWp, sR, 122713352)
    g.s2("s_mul_i32", sE, sWp, 35); g.s2("s_sub_u32", sE, sR, sE)
    e.raw("s_waitcnt lgkmcnt(0)")
    g.s2("s_mul_i32", S(45), sG, 16*PART_UNIT)
    g.s2("s_add_u32", S(4), S(36), S(45)); e.salu("s_addc_u32 s5, s37, 0")
    g.s1("s_mov_b32", S(6), 16*PART_UNIT); g.s1("s_mov_b32", S(7), "0x00020000")
    g.s2("s_mul_i32", S(45), sWp, PART_WAVE); g.s2("s_lshl_b32", S(46), sE, 10); g.s2("s_add_u32", S(45), S(45), S(46))
    g.v2("v_lshlrev_b32", V(2), 4, vL); g.v2("v_add_u32", V(2), S(45), V(2))
    ld = [V(8 + 4*h, 4) for h in range(16)]
    for h in range(16):
        g.s1("s_mov_b32", S(47), h*PART_UNIT)
        e.gload("buffer_load_dwordx4", ld[h], V(2), S(4, 4), S(47), flags=opt.k2_flags)
    q16, gg, t, u = V(3), V(4), V(5), V(6)
    g.v2("v_and_b32", q16, 15, vL); g.v2("v_lshrrev_b32", gg, 4, vL)
    sPP, sBlk, sBr, sBt = S(48), S(49), S(50), S(51)
    g.s2("s_mul_hi_u32", sPP, sE, 429496730)
    g.s2("s_mul_i32", sBlk, sPP, 10); g.s2("s_sub_u32", sBlk, sE, sBlk)
    g.s2("s_lshr_b32", sBr, sG, 3); g.s2("s_and_b32", sBt, sG, 7)
    g.v2("v_and_b32", t, 1, gg); g.v2("v_lshrrev_b32", u, 1, gg); g.v2("v_lshlrev_b32", u, 3, u)
    e.raw(f"s_cmp_lt_u32 {sE}, 30")
    g.s2("s_sub_u32", S(52), sE, 30); g.s2("s_lshl_b32", S(52), S(52), 1)
    e.raw(f"s_cmp_lt_u32 {sE}, 30")
    e.raw(f"s_cselect_b32 s52, {sBlk}, s52")
    g.s2("s_lshl_b32", S(53), sPP, 5)
    e.raw(f"s_cmp_lt_u32 {sE}, 30")
    e.raw("s_cselect_b32 s53, s53, 96")
    e.raw(f"s_cmp_lt_u32 {sE}, 30")
    e.raw("s_cselect_b32 s54, 16, 0")
    e.raw(f"s_cmp_lt_u32 {sE}, 30")
    e.raw("s_cselect_b32 s55, 0, 16")
    g.s2("s_mul_i32", S(56), sBt, 160); g.s2("s_lshl_b32", S(52), S(52), 4); g.s2("s_add_u32", S(56), S(56), S(52))
    g.s2("s_mul_i32", S(57), sBr, 448); g.s2("s_mul_i32", S(58), sWp, 112); g.s2("s_add_u32", S(57), S(57), S(58)); g.s2("s_add_u32", S(57), S(57), S(53))
    row, col = V(7), V(72)
    g.v3("v_mad_u32_u24", row, t, S(55), q16); g.v2("v_add_u32", row, S(56), row)
    g.v3("v_mad_u32_u24", col, t, S(54), u); g.v2("v_add_u32", col, S(57), col)
    g.s1("s_mov_b32", S(59), 1792)
    g.v2("v_lshlrev_b32", col, 1, col); g.v3("v_mad_u32_u24", row, row, S(59), col)
    g.s1("s_mov_b32", S(8), S(38)); g.s1("s_mov_b32", S(9), S(39)); g.s1("s_mov_b32", S(10), 1280*1792); g.s1("s_mov_b32", S(11), "0x00020000")
    acc = [V(76 + j) for j in range(8)]; tmp = [V(84), V(85)]
    for h in range(16):
        for j in range(4):
            if h == 0:
                g.v2("v_lshlrev_b32", acc[2*j], 16, ld[h][j]); g.v2("v_and_b32", acc[2*j+1], "0xffff0000", ld[h][j])
            else:
                g.v2("v_lshlrev_b32", tmp[0], 16, ld[h][j]); g.v2("v_and_b32", tmp[1], "0xffff0000", ld[h][j])
                g.v2("v_add_f32", acc[2*j], acc[2*j], tmp[0]); g.v2("v_add_f32", acc[2*j+1], acc[2*j+1], tmp[1])
    O = V(88, 4)
    for j in range(4):
        e.valu(f"v_cvt_pk_bf16_f32 {O[j]}, {acc[2*j]}, {acc[2*j+1]}", dst=[O[j]], src=[acc[2*j], acc[2*j+1]])
    e.valu(f"v_permlane16_swap_b32 {O[0]}, {O[2]}", dst=[O[0], O[2]], src=[O[0], O[2]], permlane=True)
    e.valu(f"v_permlane16_swap_b32 {O[1]}, {O[3]}", dst=[O[1], O[3]], src=[O[1], O[3]], permlane=True)
    e.gstore("buffer_store_dwordx4", O, row, S(8, 4), None)
    if opt.stamps:
        e.wait_vm_all()
        e.raw("s_memrealtime s[94:95]"); e.raw("s_waitcnt lgkmcnt(0)")
        e.salu("s_add_u32 s36, s36, 0x4100000"); e.salu("s_addc_u32 s37, s37, 0")
        e.salu("s_mov_b32 s38, 0x100000"); e.salu("s_mov_b32 s39, 0x00020000")
        e.salu(f"s_lshl_b32 s41, {sI}, 3")
        g.v1("v_mov_b32", V(2), S(92)); g.v1("v_mov_b32", V(3), S(94)); g.v1("v_mov_b32", V(4), 0)
        e.gstore("buffer_store_dwordx2", V(2, 2), V(4), S(36, 4), S(41))
    if opt.dbgtime:
        e.wait_vm_all()
        dbg_tail(g, 4, 512)
    e.label("L_k2_end")
    e.raw("s_endpgm")
    return e

KD = """.amdhsa_kernel {name}
  .amdhsa_next_free_vgpr {vgpr}
  .amdhsa_next_free_sgpr 96
  .amdhsa_accum_offset {acc}
  .amdhsa_group_segment_fixed_size 0
  .amdhsa_kernarg_size 104
  .amdhsa_user_sgpr_count 2
  .amdhsa_user_sgpr_kernarg_segment_ptr 1
  .amdhsa_system_sgpr_workgroup_id_x 1
.end_amdhsa_kernel
"""
def assemble(path):
    k1 = build_k1(); k2 = build_k2()
    hdr = open("cdna_kernels/" + NAME + ".s.ref").read().split("; Override launch")[0]
    out = hdr
    out += f"; @launch kernel=mha_k1_kernel grid=(256,1,1) block=(256,1,1) lds={LDS_TOTAL}\n"
    out += f"; @launch kernel=mha_k2_kernel grid=(560,1,1) block=(256,1,1) lds=0\n" * int(opt.k2_rep)
    out += '.amdgcn_target "amdgcn-amd-amdhsa--gfx950"\n.text\n'
    for nm, k in (("mha_k1_kernel", k1), ("mha_k2_kernel", k2)):
        out += f".globl {nm}\n.p2align 8\n.type {nm},@function\n{nm}:\n" + k.text()
    out += '.section .rodata,"a"\n.p2align 6\n' + KD.format(name="mha_k1_kernel", vgpr=512, acc=256)
    out += '.p2align 6\n' + KD.format(name="mha_k2_kernel", vgpr=96, acc=96)
    open(path, "w").write(out)
    if opt.stamps: print("STAMPS", ",".join(STAMPS))
    print("k1 stats", k1.stats, "k2", k2.stats, file=sys.stderr)

if __name__ == "__main__":
    path = sys.argv[1] if len(sys.argv) > 1 else "cdna_kernels/" + NAME + ".s"
    for a in sys.argv[2:]:
        k, v = a.split("=")
        if v in ("True", "False"): v = (v == "True")
        elif v == "None": v = None
        setattr(opt, k, v)
    assemble(path)
```

```python
class R:
    __slots__ = ('f', 'i', 'n')
    def __init__(self, f, i, n=1):
        self.f = f; self.i = i; self.n = n
    def __str__(self):
        if self.n == 1: return f"{self.f}{self.i}"
        return f"{self.f}[{self.i}:{self.i+self.n-1}]"
    def regs(self):
        return [(self.f, self.i + k) for k in range(self.n)]
    def sub(self, k, n=1):
        assert k + n <= self.n, (self, k, n)
        return R(self.f, self.i + k, n)
    def __getitem__(self, k):
        return self.sub(k, 1)
def V(i, n=1): return R('v', i, n)
def A(i, n=1): return R('a', i, n)
def S(i, n=1): return R('s', i, n)

def regs_of(xs):
    out = []
    for x in xs:
        if isinstance(x, R): out += x.regs()
    return out

class Emit:
    def __init__(self):
        self.lines = []
        self.n = 0
        self.valu_w = {}
        self.trans_w = {}
        self.mfma_w = {}
        self.mfma_c = {}
        self.store_r = {}
        self.sgpr_valu_w = {}
        self.m0_w = -100
        self.lg_issued = 0; self.lg_done = 0
        self.vm_issued = 0; self.vm_done = 0
        self.pend = {}
        self.stats = {}
    def raw(self, text, states=1, kind='other'):
        self.lines.append("    " + text)
        self.n += states
        self.stats[kind] = self.stats.get(kind, 0) + 1
    def comment(self, text): self.lines.append("    ; " + text)
    def label(self, name): self.lines.append(name + ":")
    def nop(self, k):
        while k > 0:
            m = min(k, 16)
            self.raw(f"s_nop {m-1}", states=m, kind='nop'); k -= m
    def need_gap(self, since, gap):
        d = self.n - since - 1
        if d < gap: self.nop(gap - d)
    def wait_lg(self, seq):
        if seq <= self.lg_done: return
        cnt = min(15, self.lg_issued - seq)
        self.raw(f"s_waitcnt lgkmcnt({cnt})", kind='wait')
        self.lg_done = max(self.lg_done, self.lg_issued - cnt)
    def wait_vm(self, seq):
        if seq <= self.vm_done: return
        cnt = min(63, self.vm_issued - seq)
        self.raw(f"s_waitcnt vmcnt({cnt})", kind='wait')
        self.vm_done = max(self.vm_done, self.vm_issued - cnt)
    def wait_lg_all(self): self.wait_lg(self.lg_issued)
    def wait_vm_all(self): self.wait_vm(self.vm_issued)
    def _pend(self, regs):
        lg = 0; vm = 0
        for r in regs:
            p = self.pend.get(r)
            if p:
                if p[0] == 'lg': lg = max(lg, p[1])
                else: vm = max(vm, p[1])
        if lg: self.wait_lg(lg)
        if vm: self.wait_vm(vm)
        for r in regs: self.pend.pop(r, None)
    def _gap_for(self, table, regs, gap):
        m = -100
        for r in regs:
            x = table.get(r)
            if x is not None:
                if isinstance(x, tuple): x = x[0]
                m = max(m, x)
        if m > -100: self.need_gap(m, gap)
    def salu(self, text, w_m0=False, reads=()):
        rr = regs_of(reads)
        self._gap_for(self.sgpr_valu_w, rr, 3)
        self.raw(text, kind='salu')
        if w_m0: self.m0_w = self.n - 1
    def valu(self, text, dst=(), src=(), trans=False, permlane=False, sdst=()):
        d = regs_of(dst); s = regs_of(src)
        self._pend(d + s)
        self._gap_for(self.mfma_w, d + s, 8)
        self._gap_for(self.mfma_c, d, 3)
        self._gap_for(self.trans_w, s, 1)
        self._gap_for(self.store_r, d, 2)
        self._gap_for(self.sgpr_valu_w, [r for r in s if r[0] == 's'], 2)
        if permlane: self._gap_for(self.valu_w, d + s, 2)
        self.raw(text, kind='trans' if trans else 'valu')
        i = self.n - 1
        for r in d:
            self.valu_w[r] = i
            if trans: self.trans_w[r] = i
            else: self.trans_w.pop(r, None)
            self.mfma_w.pop(r, None)
        for r in regs_of(sdst): self.sgpr_valu_w[r] = i
    def readfirstlane(self, sd, v):
        self._pend(v.regs())
        self._gap_for(self.valu_w, v.regs(), 1)
        self._gap_for(self.mfma_w, v.regs(), 8)
        self.raw(f"v_readfirstlane_b32 {sd}, {v}", kind='valu')
        for r in sd.regs(): self.sgpr_valu_w[r] = self.n - 1
    def mfma(self, D, Aop, Bop, C):
        d = D.regs(); ab = Aop.regs() + Bop.regs()
        c = C.regs() if isinstance(C, R) else []
        self._pend(d + ab + c)
        self._gap_for(self.valu_w, ab + c, 2)
        self._gap_for(self.mfma_w, ab, 8)
        key = (D.f, D.i, D.n)
        bad = [r for r in c if r in self.mfma_w and self.mfma_w[r][1] != key]
        self._gap_for(self.mfma_w, bad, 6)
        badd = [r for r in d if r in self.mfma_w and self.mfma_w[r][1] != key]
        self._gap_for(self.mfma_w, badd, 8)
        self._gap_for(self.store_r, d, 2)
        self.raw(f"v_mfma_f32_16x16x32_bf16 {D}, {Aop}, {Bop}, {C}", kind='mfma')
        i = self.n - 1
        for r in d:
            self.mfma_w[r] = (i, key); self.valu_w.pop(r, None); self.trans_w.pop(r, None)
        for r in c: self.mfma_c[r] = i
    def _memsrc(self, regs):
        self._pend(regs)
        self._gap_for(self.mfma_w, regs, 8)
    def ds_read(self, op, dst, addr, offset=0):
        assert 0 <= offset < 65536, offset
        d = dst.regs()
        self._memsrc(addr.regs())
        self._pend(d)
        self._gap_for(self.mfma_w, d, 8)
        self._gap_for(self.mfma_c, d, 3)
        self.raw(f"{op} {dst}, {addr}" + (f" offset:{offset}" if offset else ""), kind='ds_read')
        self.lg_issued += 1
        for r in d:
            self.pend[r] = ('lg', self.lg_issued); self.valu_w.pop(r, None); self.mfma_w.pop(r, None); self.trans_w.pop(r, None)
        return self.lg_issued
    def ds_write(self, op, addr, src, offset=0):
        assert 0 <= offset < 65536, offset
        self._memsrc(addr.regs() + src.regs())
        self.raw(f"{op} {addr}, {src}" + (f" offset:{offset}" if offset else ""), kind='ds_write')
        for r in src.regs(): self.store_r[r] = self.n - 1
        self.lg_issued += 1
        return self.lg_issued
    def dma(self, voff, srd, soff, offset=0, flags=""):
        assert 0 <= offset < 4096
        self._memsrc(voff.regs())
        self.need_gap(self.m0_w, 1)
        so = soff if soff is not None else 0
        sr = srd.regs() + (soff.regs() if isinstance(soff, R) else [])
        self._gap_for(self.sgpr_valu_w, sr, 5)
        self.raw(f"buffer_load_dwordx4 {voff}, {srd}, {so} offen" + (f" offset:{offset}" if offset else "") + (" " + flags if flags else "") + " lds", kind='dma')
        self.vm_issued += 1
        return self.vm_issued
    def gload(self, op, dst, voff, srd, soff, offset=0, flags=""):
        assert 0 <= offset < 4096
        self._memsrc(voff.regs())
        d = dst.regs(); self._pend(d)
        self._gap_for(self.mfma_w, d, 8); self._gap_for(self.mfma_c, d, 3)
        so = soff if soff is not None else 0
        sr = srd.regs() + (soff.regs() if isinstance(soff, R) else [])
        self._gap_for(self.sgpr_valu_w, sr, 5)
        self.raw(f"{op} {dst}, {voff}, {srd}, {so} offen" + (f" offset:{offset}" if offset else "") + (" " + flags if flags else ""), kind='gload')
        self.vm_issued += 1
        for r in d:
            self.pend[r] = ('vm', self.vm_issued); self.valu_w.pop(r, None); self.mfma_w.pop(r, None)
        return self.vm_issued
    def gstore(self, op, src, voff, srd, soff, offset=0, flags=""):
        assert 0 <= offset < 4096
        self._memsrc(voff.regs() + src.regs())
        so = soff if soff is not None else 0
        sr = srd.regs() + (soff.regs() if isinstance(soff, R) else [])
        self._gap_for(self.sgpr_valu_w, sr, 5)
        self.raw(f"{op} {src}, {voff}, {srd}, {so} offen" + (f" offset:{offset}" if offset else "") + (" " + flags if flags else ""), kind='gstore')
        self.vm_issued += 1
        i = self.n - 1
        for r in src.regs(): self.store_r[r] = i
        return self.vm_issued
    def snapshot(self):
        return (self.lg_issued, self.lg_done, self.vm_issued, self.vm_done, dict(self.pend))
    def restore(self, st):
        self.lg_issued, self.lg_done, self.vm_issued, self.vm_done = st[:4]
        self.pend = dict(st[4])
    def barrier(self):
        self.raw("s_barrier", kind='barrier')
    def text(self): return "\n".join(self.lines) + "\n"
```

```python
import sys, math, struct
from emit import *

NAME = "concat_heads__mha_block_cached__mha_block_cached__near_ridge"
LDS_M = 0; LDS_A = 16384; LDS_B = 98304; XS = 49152
LDS_TOTAL = 163840
PART_UNIT = 143360
PART_WAVE = 35840

class Opt:
    nt_kv = True
    st_flags = "sc1"
    k2_flags = ""
    dump = None
    stamps = False
    warm = False
    fallback = True
    force_fb = False
    pstamp = False
    only = None
    skip_dma = ''
    soft_mask = 'feacw'
    wait_batch = 2
    level = 8
    vm_gap = 4
    qstamp = False
    rot = True
    w_flags = ''
    wo_flags = ''
    warm_wo = False
    warm_at = 21
    kread = '{10:0,11:1,12:2,13:3}'
    kfirst = '{2:0,4:1,6:2,8:3}'
    qa_lo = 20
opt = Opt()
STAMPS = []
def f2u(x): return struct.unpack("<I", struct.pack("<f", x))[0]

sX, sK, sV, sWQ, sWO, sWS = S(4,4), S(8,4), S(12,4), S(16,4), S(20,4), S(24,4)
sW, sRB, sWB, sXD, sO1, sO2, sC, sExact = S(28), S(29), S(30), S(31), S(32), S(33), S(34), S(35)
sH, sBt, sBr = S(60), S(61), S(62)
sO3 = S(57)
sXo = [S(64+c) for c in range(7)]
sWo = [S(71+c) for c in range(7)]

vL = V(1)
vB0, vB1, vK0, vK1 = V(2), V(3), V(4), V(5)
vTv = [V(6+i) for i in range(4)]
vD  = [V(10+i) for i in range(4)]
vVb, vWOb, vPW, vSTW, vSTR, vWS = V(14), V(15), V(16), V(18), V(19), V(20)
vM  = [V(21+i) for i in range(10)]
vDum = V(0)
vX0, vX1 = V(152), V(153)
vTq  = [V(154+i) for i in range(4)]
vDX  = [V(158+i) for i in range(5)]
vDWQ = [V(163+i) for i in range(4)]
vQW  = V(167)
vLs = [V(152+i) for i in range(10)]
vDW = [V(172+i) for i in range(4)]
vTmp = [V(162+i) for i in range(10)]
NB = 8
aB = [A(4*i, 4) for i in range(NB)]
aR = [A(32 + 16*i, 16) for i in range(4)]
aWQ = [[A(96 + 16*s + 4*t, 4) for t in range(4)] for s in range(2)]
def park(p, b): return A(96 + 40*p + 4*b, 4)

def accQ(t, b):
    i = b*4 + t
    return V(32 + 4*i, 4) if i < 30 else V(176 + 4*(i-30), 4)
def accS(p, t, b): return V((32 if p % 2 == 0 else 176) + 8*b + 4*t, 4)
def accO(t, b):
    i = b*4 + t
    return V(32 + 4*i, 4) if i < 30 else A(96 + 4*(i-30), 4)
def accP0(t, b): return A(96 + 4*(b*4+t), 4)
def accP1(t, b): return V(32 + 4*(b*3+t), 4)

class G:
    def __init__(self):
        self.e = Emit(); self.nst = 0
    def v2(self, op, d, a, b):
        self.e.valu(f"{op} {d}, {a}, {b}", dst=[d], src=[x for x in (a, b) if isinstance(x, R)])
    def v1(self, op, d, a, trans=False):
        self.e.valu(f"{op} {d}, {a}", dst=[d], src=[a] if isinstance(a, R) else [], trans=trans)
    def v3(self, op, d, a, b, c, neg_c=False):
        cc = f"-{c}" if neg_c else f"{c}"
        self.e.valu(f"{op} {d}, {a}, {b}, {cc}", dst=[d], src=[x for x in (a, b, c) if isinstance(x, R)])
    def cvt(self, d, a, b):
        self.e.valu(f"v_cvt_pk_bf16_f32 {d}, {a}, {b}", dst=[d], src=[a, b])
    def accw(self, d, a):
        self.e.valu(f"v_accvgpr_write_b32 {d}, {a}", dst=[d], src=[a])
    def accr(self, d, a):
        self.e.valu(f"v_accvgpr_read_b32 {d}, {a}", dst=[d], src=[a])
    def s2(self, op, d, a, b):
        self.e.salu(f"{op} {d}, {a}, {b}", reads=[x for x in (a, b) if isinstance(x, R)])
    def s1(self, op, d, a):
        self.e.salu(f"{op} {d}, {a}", reads=[a] if isinstance(a, R) else [])
    def m0(self, sbase, imm):
        self.e.salu(f"s_add_u32 m0, {sbase}, {imm}", w_m0=True, reads=[sbase])
    m0state = None
    sstate = None
    def ensure(self, sbase, ldsoff, sreg, soff_imm):
        if self.sstate is None: self.sstate = {}
        if self.m0state != (str(sbase), ldsoff):
            self.m0(sbase, ldsoff); self.m0state = (str(sbase), ldsoff)
        key = (str(soff_imm[0]), soff_imm[1]) if isinstance(soff_imm, tuple) else soff_imm
        if self.sstate.get(str(sreg)) != key:
            if isinstance(soff_imm, tuple): self.s2("s_add_u32", sreg, soff_imm[0], soff_imm[1])
            else: self.s1("s_mov_b32", sreg, soff_imm)
            self.sstate[str(sreg)] = key
    def forget(self):
        self.m0state = None; self.sstate = {}
    def dma_group(self, voffs, srd, sbase, ldsoff, soff_imm, sreg, holder, key, flags=""):
        e = self.e; fs = []
        for i in range(len(voffs)):
            def f(i=i):
                kind = key[0] if key[0] != 'r' else ('k' if key[1] < 16 else ('v' if key[1] < 32 else 'o'))
                if kind in opt.skip_dma or (kind == 'wq' and 'q' in opt.skip_dma): holder[key] = e.vm_issued; return
                self.ensure(sbase, ldsoff + (4096 if i == 4 else 0), sreg, soff_imm)
                holder[key] = e.dma(voffs[i], srd, sreg, offset=(1024*i if i < 4 else 0), flags=flags)
            f.vm = True
            fs.append(C(f, 12 if i == 0 else 4))
        return fs
    def run(self, fs):
        for f in fs: f()
    def stamp(self, name):
        if not opt.stamps: return
        if opt.only and name not in opt.only.split(","): return
        i = self.nst; self.nst += 1; STAMPS.append(name)
        assert i < 14
        self.e.raw("s_memtime s[94:95]"); self.e.raw("s_waitcnt lgkmcnt(0)"); self.e.raw(f"s_mov_b32 s{80+i}, s94")
        self.e.lg_done = self.e.lg_issued
    def stamp_flush(self):
        e = self.e
        e.raw("s_memrealtime s[94:95]"); e.raw("s_waitcnt lgkmcnt(0)")
        e.raw("s_load_dwordx2 s[36:37], s[0:1], 96"); e.raw("s_waitcnt lgkmcnt(0)")
        e.salu("s_add_u32 s36, s36, 0x4000000"); e.salu("s_addc_u32 s37, s37, 0")
        e.salu("s_mov_b32 s38, 0x100000"); e.salu("s_mov_b32 s39, 0x00020000")
        e.salu("s_lshl_b32 s40, s2, 8"); e.salu(f"s_lshl_b32 s41, {sW}, 6"); e.salu("s_add_u32 s40, s40, s41")
        z = V(170); d = V(171)
        self.v1("v_mov_b32", z, 0)
        for i, src in [(i, S(80+i)) for i in range(self.nst)] + [(15, S(94)), (14, S(78))]:
            self.v1("v_mov_b32", d, src); e.salu(f"s_add_u32 s41, s40, {4*i}")
            e.gstore("buffer_store_dword", d, z, S(36, 4), S(41))

def cost_of(f): return getattr(f, "cost", 4)
def C(f, c):
    f.cost = c; return f

def VM(f):
    f.vm = True; return f

class Gaps:
    def __init__(self):
        self.streams = []; self.fixed = {}
    def setdefault(self, k, d): return self.fixed.setdefault(k, d)

def spread(gaps, fs, start, end):
    if not fs: return
    assert end > start, (start, end)
    gaps.streams.append(dict(ops=list(fs), lo=start, hi=end))

def place(gaps, fs, start, step=None):
    if step is None: step = int(opt.vm_gap)
    pos = start
    for f in fs:
        gaps.setdefault(pos, []).append(f)
        if getattr(f, "vm", False): pos += step

def schedule(N, F, streams, base=8.0):
    out = {}
    for s_ in streams:
        s_["k"] = 0; s_["rem"] = sum(cost_of(f) for f in s_["ops"]); s_["hi"] = min(s_["hi"], N)
    pf = [0]*(N+1)
    for i in range(N): pf[i+1] = pf[i] + F[i]
    carry = 0.0
    last_vm = -100
    VMG = int(opt.vm_gap)
    for i in range(N):
        act = [s_ for s_ in streams if s_["k"] < len(s_["ops"])]
        if not act: break
        L = base
        his = sorted(set(s_["hi"] for s_ in act if s_["hi"] > i))
        for h in his:
            need = pf[h] - pf[i] + sum(s_["rem"] for s_ in act if s_["hi"] <= h and s_["lo"] < h)
            lo = max(i, min(s_["lo"] for s_ in act if s_["hi"] <= h))
            need2 = pf[h] - pf[lo] + sum(s_["rem"] for s_ in act if s_["hi"] <= h)
            if lo <= i: L = max(L, need2 / (h - lo))
        budget = L - F[i] + carry
        placed = 0
        while True:
            cand = [s_ for s_ in streams if s_["k"] < len(s_["ops"]) and s_["lo"] <= i]
            def blocked(x):
                f_ = x["ops"][x["k"]]
                if not getattr(f_, "vm", False) or i - last_vm >= VMG: return False
                nv = sum(1 for q in x["ops"][x["k"]:] if getattr(q, "vm", False))
                return (x["hi"] - i) > nv
            cand = [x for x in cand if not blocked(x)]
            if not cand: break
            cand.sort(key=lambda s_: (s_["hi"] - s_["rem"] / max(L - 2.0, 1.0), s_["hi"]))
            s_ = cand[0]
            f = s_["ops"][s_["k"]]; c = cost_of(f)
            forced = any(x["hi"] - 1 <= i for x in cand)
            if forced:
                s_ = [x for x in cand if x["hi"] - 1 <= i][0]; f = s_["ops"][s_["k"]]; c = cost_of(f)
            elif budget - placed < c - 1.99: break
            out.setdefault(i, []).append(f); s_["k"] += 1; s_["rem"] -= c; placed += c
            if getattr(f, "vm", False): last_vm = i
        carry = max(-6.0, min(2.0, budget - placed))
    for s_ in streams: assert s_["k"] == len(s_["ops"]), (s_["lo"], s_["hi"], s_["k"], len(s_["ops"]))
    return out

class Seg:
    def __init__(self, g):
        self.g = g; self.groups = []
        self.gaps = Gaps()
        self.preB = {}
        self.nm = 0; self.gstart = []
    def add_group(self, mf, bsrc):
        self.gstart.append(self.nm); self.groups.append((mf, bsrc)); self.nm += len(mf)
    def emit(self, wait_batch=None):
        if wait_batch is None: wait_batch = int(opt.wait_batch)
        e = self.g.e; seq = {}
        n = len(self.groups); N = self.nm
        F = [0]*N
        for G in range(n):
            last = self.gstart[G] + len(self.groups[G][0]) - 1
            if G + NB < n: F[last] += 8
            if G % wait_batch == 0 and G > 0: F[self.gstart[G] - 1] += 4
        for k_, v_ in self.gaps.fixed.items(): F[k_] += sum(cost_of(f) for f in v_)
        sched = schedule(N, F, self.gaps.streams, base=float(opt.level))
        def rd(G):
            a, o = self.groups[G][1]
            seq[G] = e.ds_read("ds_read_b128", aB[G % NB], a, o)
        for G in range(min(NB, n)): rd(G)
        idx = 0
        for G, (mf, _) in enumerate(self.groups):
            if G % wait_batch == 0:
                last = min(n-1, G + wait_batch - 1)
                while last not in seq: last -= 1
                e.wait_lg(seq[last])
            for m in mf:
                m(aB[G % NB])
                for f in sched.get(idx, []): f()
                for f in self.gaps.fixed.get(idx, []): f()
                idx += 1
            for f in self.preB.get(G, []): f()
            if G + NB < n: rd(G + NB)

def build_k1():
    g = G(); e = g.e
    kvflag = "nt" if opt.nt_kv else ""
    H = {}
    e.raw("s_cmp_ge_u32 s2, 256"); e.raw("s_cbranch_scc1 L_k1_end")
    if opt.stamps:
        e.raw("s_memrealtime s[78:79]"); e.raw("s_waitcnt lgkmcnt(0)")
    g.stamp("start")
    e.raw("s_load_dwordx16 s[36:51], s[0:1], 0")
    e.raw("s_load_dwordx4 s[52:55], s[0:1], 64")
    e.raw("s_load_dwordx2 s[56:57], s[0:1], 96")
    g.s2("s_and_b32", S(58), S(2), 7); g.s2("s_lshr_b32", S(59), S(2), 3)
    g.s2("s_and_b32", sH, S(58), 3); g.s2("s_lshl_b32", sH, sH, 2)
    g.s2("s_and_b32", sBt, S(59), 3); g.s2("s_add_u32", sH, sH, sBt)
    g.s2("s_lshr_b32", sBt, S(59), 2); g.s2("s_lshr_b32", sBr, S(58), 2)
    if opt.rot:
        g.s2("s_and_b32", S(58), sH, 3); g.s2("s_lshl_b32", S(58), S(58), 1); g.s2("s_add_u32", S(58), S(58), sBt)
        e.raw("s_cmp_ge_u32 s58, 7"); e.raw("s_cselect_b32 s59, 7, 0"); g.s2("s_sub_u32", S(58), S(58), S(59))
    else:
        g.s1("s_mov_b32", S(58), 0)
    for c in range(7):
        g.s2("s_add_u32", S(59), S(58), c)
        e.raw("s_cmp_ge_u32 s59, 7"); e.raw("s_cselect_b32 s63, 7, 0"); g.s2("s_sub_u32", S(59), S(59), S(63))
        g.s2("s_lshl_b32", sXo[c], S(59), 7); g.s2("s_lshl_b32", sWo[c], S(59), 19)
    g.v2("v_lshrrev_b32", V(32), 6, V(0))
    e.readfirstlane(sW, V(32))
    g.s1("s_mov_b32", sExact, 0)
    g.s2("s_lshl_b32", sRB, sW, 14); g.s2("s_add_u32", sRB, sRB, LDS_B)
    g.s2("s_mul_i32", sWB, sW, 12288)
    g.s2("s_mul_i32", sXD, sW, 5120); g.s2("s_add_u32", sXD, sXD, XS)
    g.s1("s_mov_b32", sC, hex(f2u(math.log2(math.e) / 16.0)))
    g.v2("v_and_b32", vL, 63, V(0))
    P = [V(32+i) for i in range(16)]
    q16, gg, r4, c4, prow, pg, t, u, w_v = P[0], P[1], P[2], P[3], P[4], P[5], P[6], P[7], P[8]
    def lanefields():
        g.v2("v_and_b32", q16, 15, vL); g.v2("v_lshrrev_b32", gg, 4, vL)
        g.v3("v_bfe_u32", r4, vL, 2, 2); g.v2("v_and_b32", c4, 3, vL)
        g.v2("v_lshrrev_b32", prow, 3, vL); g.v2("v_and_b32", pg, 7, vL)
        g.v1("v_mov_b32", w_v, sW)
    s896 = S(63)
    def xwq_offsets():
        g.s1("s_mov_b32", s896, 896)
        for i in range(5):
            g.v3("v_mad_u32_u24", t, w_v, 5, i)
            g.v2("v_and_b32", u, 1, t); g.v3("v_lshl_add_u32", u, u, 2, gg)
            g.v2("v_xor_b32", u, u, pg); g.v2("v_lshlrev_b32", u, 4, u)
            g.v3("v_lshl_add_u32", t, t, 3, prow)
            g.v3("v_mad_u32_u24", vDX[i], t, s896, u)
            if 0 < i < 4: g.v2("v_subrev_u32", vDX[i], 1024*i, vDX[i])
        for par in range(2):
            g.v3("v_bfe_u32", u, prow, 1, 1)
            if par: g.v2("v_or_b32", u, 2, u)
            g.v2("v_lshlrev_b32", u, 1, u); g.v2("v_xor_b32", u, u, pg); g.v2("v_lshlrev_b32", u, 4, u)
            g.v3("v_lshl_add_u32", u, w_v, 7, u)
            g.v2("v_lshlrev_b32", t, 13, prow); g.v2("v_add_u32", vDWQ[par], t, u)
        for jj in (2, 3): g.v2("v_add_u32", vDWQ[jj], 64512*jj, vDWQ[jj & 1])
        g.v2("v_add_u32", vDWQ[1], 64512, vDWQ[1])
    lanefields(); xwq_offsets()
    e.raw("s_waitcnt lgkmcnt(0)")
    if opt.pstamp: g.stamp("karg")
    e.raw(f"s_cmp_eq_u32 {sBr}, 0")
    for (pa, pb) in [(36,46),(38,48),(40,50),(42,52),(44,54)]:
        e.raw(f"s_cselect_b32 s{pa}, s{pa}, s{pb}"); e.raw(f"s_cselect_b32 s{pa+1}, s{pa+1}, s{pb+1}")
    def srd(dst, plo, off_sreg, nrec):
        g.s2("s_add_u32", dst[0], S(plo), off_sreg); e.salu(f"s_addc_u32 {dst[1]}, s{plo+1}, 0")
        g.s1("s_mov_b32", dst[2], nrec); g.s1("s_mov_b32", dst[3], "0x00020000")
    t0, t1 = S(58), S(59)
    g.s2("s_mul_i32", t0, sBt, 143360); srd(sX, 36, t0, 143360)
    g.s2("s_lshl_b32", t1, sH, 9); g.s2("s_sub_u32", t0, 3670016, t1); srd(sWQ, 42, t1, t0)
    g.s2("s_lshl_b32", t0, sBt, 4); g.s2("s_add_u32", t0, t0, sH)
    g.s2("s_lshl_b32", t1, t0, 18); srd(sK, 38, t1, 262144); srd(sV, 40, t1, 262144)
    g.s2("s_lshl_b32", t1, sBr, 7); g.s2("s_add_u32", t0, t0, t1)
    g.s2("s_mul_i32", t1, t0, PART_UNIT); srd(sWS, 56, t1, PART_UNIT)
    g.s2("s_mul_i32", t1, sH, 229376); srd(sWO, 44, t1, 229376)
    e.raw("s_branch L_first")
    e.label("L_restart")
    lanefields(); xwq_offsets()
    e.label("L_first")
    g.forget()
    g.run(g.dma_group(vDX, sX, sXD, 0, (sXo[0], 0), sO1, H, ('x', 0), flags=opt.w_flags))
    if opt.pstamp: g.stamp("x0")
    g.run(g.dma_group(vDWQ, sWQ, sWB, 0, (sWo[0], 0), sO2, H, ('wq', 0), flags=opt.w_flags))
    if opt.pstamp: g.stamp("wq0")
    if opt.warm:
        g.s2("s_mul_i32", t0, sBt, 56); g.s2("s_mul_i32", t1, sW, 14); g.s2("s_add_u32", t0, t0, t1)
        g.v2("v_lshrrev_b32", t, 2, vL); g.v2("v_add_u32", t, t0, t); g.v2("v_lshlrev_b32", t, 13, t)
        g.v3("v_lshl_add_u32", t, c4, 7, t)
        e.raw(f"buffer_load_dword {vDum}, {t}, {sWQ}, 0 offen"); e.vm_issued += 1
        g.s2("s_and_b32", t0, sH, 3); g.s2("s_mul_i32", t0, t0, 280); g.s2("s_mul_i32", t1, sW, 70); g.s2("s_add_u32", t0, t0, t1)
        g.v2("v_add_u32", u, t0, vL); g.v2("v_lshlrev_b32", u, 7, u)
        e.raw(f"buffer_load_dword {vDum}, {u}, {sX}, 0 offen"); e.vm_issued += 1
    if opt.pstamp: g.stamp("warm")
    g.run(g.dma_group(vDWQ, sWQ, sWB, 4096, (sWo[0], 262144), sO2, H, ('wq', 1), flags=opt.w_flags))
    if opt.pstamp: g.stamp("wq12")
    for par in range(2):
        g.v2("v_add_u32", u, 4*par, gg); g.v2("v_xor_b32", u, u, pg); g.v2("v_lshlrev_b32", u, 4, u)
        g.v3("v_lshl_add_u32", t, w_v, 5, prow); g.v2("v_lshlrev_b32", t, 9, t)
        g.v2("v_add_u32", vD[par], t, u)
    for jj in (2, 3): g.v2("v_add_u32", vD[jj], 3072*jj, vD[jj & 1])
    g.v2("v_add_u32", vD[1], 3072, vD[1])
    SLOT = {n: n & 3 for n in range(22)}
    SLOT.update({n: n & 3 for n in range(22, 48)})
    def dma_n(n):
        if n < 16:   return g.dma_group(vD, sK, sRB, 4096*SLOT[n], 65536*(n >> 2) + 128*(n & 3), sO1, H, ('r', n), flags=kvflag)
        if n < 32:   return g.dma_group(vD, sV, sRB, 4096*SLOT[n], 16384*(n-16), sO1, H, ('r', n), flags=kvflag)
        i = n - 32
        return g.dma_group(vDW, sWO, sRB, 4096*SLOT[n], 28672*(i % 8) + 128*(i // 8), sO2, H, ('r', n), flags=opt.wo_flags)
    def switchD(base):
        return [lambda jj=jj: (g.v1("v_mov_b32", vD[0], base) if jj == 0 else g.v2("v_add_u32", vD[jj], base[1]*jj, base[0])) for jj in range(4)]
    gv = P[9]
    g.v3("v_bfe_u32", u, prow, 1, 2); g.v2("v_lshlrev_b32", u, 1, u); g.v2("v_xor_b32", u, u, pg); g.v2("v_lshlrev_b32", gv, 4, u)
    g.v2("v_lshlrev_b32", u, 9, prow); g.v2("v_add_u32", u, u, gv); g.v3("v_lshl_add_u32", vVb, w_v, 7, u)
    s224 = S(58); g.s1("s_mov_b32", s224, 224)
    g.v3("v_mad_u32_u24", u, prow, s896, gv); g.v3("v_mad_u32_u24", vWOb, w_v, s224, u)
    g.v2("v_lshlrev_b32", t, 4, vL); g.v2("v_add_u32", vB0, LDS_A, t); g.v2("v_add_u32", vB1, LDS_A + 40960, t)
    g.v2("v_lshrrev_b32", u, 1, q16)
    for sp, (vx, vk) in enumerate([(vX0, vK0), (vX1, vK1)]):
        g.v2("v_add_u32", t, 4*sp, gg); g.v2("v_xor_b32", t, t, u); g.v2("v_lshlrev_b32", t, 4, t)
        g.v3("v_lshl_add_u32", t, q16, 7, t)
        g.v2("v_add_u32", vx, XS, t); g.v2("v_add_u32", vk, sRB, t)
    phq, phv, base = P[10], P[11], P[12]
    g.v2("v_lshrrev_b32", u, 1, r4)
    g.v2("v_and_b32", t, 1, gg); g.v3("v_lshl_or_b32", phq, t, 1, u)
    g.v3("v_lshl_add_u32", phv, gg, 1, u); g.v2("v_and_b32", phv, 3, phv)
    g.v3("v_lshl_add_u32", base, gg, 3, r4); g.v2("v_lshlrev_b32", base, 7, base); g.v3("v_lshl_add_u32", base, c4, 3, base)
    g.v2("v_add_u32", base, sWB, base)
    for tt in range(4):
        g.v2("v_xor_b32", t, tt, phq); g.v3("v_lshl_add_u32", vTq[tt], t, 5, base)
    g.v3("v_lshl_add_u32", base, gg, 2, r4); g.v2("v_lshlrev_b32", base, 7, base); g.v3("v_lshl_add_u32", base, c4, 3, base)
    g.v2("v_add_u32", base, sRB, base)
    for tt in range(4):
        g.v2("v_xor_b32", t, tt, phv); g.v3("v_lshl_add_u32", vTv[tt], t, 5, base)
    sA = S(59); g.s2("s_mul_i32", sA, sW, 20480); g.s2("s_add_u32", sA, sA, LDS_A)
    g.v2("v_lshrrev_b32", t, 1, gg); g.v2("v_lshlrev_b32", t, 8, t); g.v3("v_lshl_add_u32", t, q16, 4, t)
    g.v2("v_and_b32", u, 1, gg); g.v3("v_lshl_add_u32", t, u, 3, t); g.v2("v_add_u32", vQW, sA, t)
    g.v2("v_lshlrev_b32", t, 4, vL)
    g.s2("s_mul_i32", sA, sW, 10240); g.s2("s_add_u32", sA, sA, LDS_A); g.v2("v_add_u32", vPW, sA, t)
    g.s2("s_mul_i32", sA, sW, PART_WAVE); g.v2("v_add_u32", vWS, sA, t)
    g.v2("v_lshlrev_b32", vSTR, 4, q16); g.s2("s_lshl_b32", sA, sW, 2); g.v2("v_add_u32", vSTW, sA, vSTR)
    for b in range(10): g.v1("v_mov_b32", vM[b], "0xff800000")

    def rdR(n):
        slot = n & 3; ls = SLOT[n]; fs = []
        if n < 16:
            for sp in range(2):
                for tt in range(2):
                    fs.append(lambda sp=sp, tt=tt: e.ds_read("ds_read_b128", aR[slot].sub(8*sp + 4*tt, 4), (vK0, vK1)[sp], 4096*ls + 2048*tt))
        else:
            for tt in range(4):
                for hf in range(2):
                    fs.append(lambda tt=tt, hf=hf: e.ds_read("ds_read_b64_tr_b16", aR[slot].sub(4*tt + 2*hf, 2), vTv[tt], 4096*ls + 2048*hf))
        return [lambda: e.wait_vm(H[('r', n)])] + fs
    RSEQ = {}
    def rdR_mark(n):
        fs = rdR(n)
        def mark(): RSEQ[n] = e.lg_issued
        return fs + [mark]
    def dma_after(n_read, n_dma):
        return [lambda: e.wait_lg(RSEQ[n_read])] + dma_n(n_dma)

    g.stamp("prolog")
    def rdA_wq(s):
        fs = []
        for tt in range(4):
            for hf in range(2):
                fs.append(lambda tt=tt, hf=hf: e.ds_read("ds_read_b64_tr_b16", aWQ[s & 1][tt].sub(2*hf, 2), vTq[tt], 4096*(s % 3) + 512*hf))
        return fs
    e.wait_vm(H[('wq', 0)])
    e.barrier()
    g.stamp("firstdata")
    g.run(rdA_wq(0))
    sg = Seg(g)
    NQ = 14
    for s in range(NQ):
        for b in range(10):
            mf = [lambda B, b=b, tt=tt, s=s: e.mfma(accQ(tt, b), aWQ[s & 1][tt], B, accQ(tt, b) if s > 0 else 0) for tt in range(4)]
            sg.add_group(mf, ((vX0, vX1)[s & 1], 20480*((s >> 1) & 1) + 2048*b))
    kread = eval(str(opt.kread))
    kfirst = eval(str(opt.kfirst))
    for s in range(NQ):
        o = 40*s; nxt = s + 1
        if s == 0:
            place(sg.gaps, g.dma_group(vDWQ, sWQ, sWB, 4096*2, (sWo[1], 0), sO2, H, ('wq', 2), flags=opt.w_flags), o + 0, 2)
            place(sg.gaps, g.dma_group(vDX, sX, sXD, 20480, (sXo[1], 0), sO1, H, ('x', 1), flags=opt.w_flags), o + 8, 3)
        if nxt < NQ:
            spread(sg.gaps, [lambda nxt=nxt: e.wait_vm(H[('wq', nxt)])] + [C(f, 8) for f in rdA_wq(nxt)], o + int(opt.qa_lo), o + 38)
            if nxt % 2 == 0:
                c = nxt // 2
                def bar(c=c):
                    e.wait_vm(H[('x', c)]); e.wait_lg_all(); e.barrier()
                sg.preB.setdefault(10*s + 2, []).append(bar)
                if c + 1 < 7:
                    place(sg.gaps, g.dma_group(vDX, sX, sXD, 20480*((c+1) & 1), (sXo[c+1], 0), sO1, H, ('x', c+1), flags=opt.w_flags), o + 19)
        if s + 3 < NQ:
            lo = 24 if s == 0 else 3
            place(sg.gaps, g.dma_group(vDWQ, sWQ, sWB, 4096*(s % 3), (sWo[(s+3) >> 1], 262144*((s+3) & 1)), sO2, H, ('wq', s+3), flags=opt.w_flags), o + lo)
        if s in kfirst:
            assert s % 2 == 0 or s >= 11
            place(sg.gaps, dma_n(kfirst[s]), o + 22)
        if s in kread:
            n = kread[s]
            spread(sg.gaps, [C(f, 8) for f in rdR_mark(n)], o + 2, o + 18)
            place(sg.gaps, dma_after(n, n + 4), o + 22)
    if opt.qstamp:
        for s_ in range(1, 14): sg.gaps.setdefault(40*s_ - 1, []).append(lambda s_=s_: g.stamp(f"q{s_-1}"))
    sg.emit()
    g.stamp("Qdone")
    for b in range(10):
        for tt in range(4):
            d = accQ(tt, b); g.cvt(d[0], d[0], d[1]); g.cvt(d[1], d[2], d[3])
    e.wait_lg_all(); e.barrier()
    for b in range(10):
        for tt in range(4):
            e.ds_write("ds_write_b64", vQW, accQ(tt, b).sub(0, 2), (tt >> 1)*10240 + b*1024 + (tt & 1)*512)
    for b in range(10): g.v1("v_mov_b32", vLs[b], 0)
    e.wait_lg_all(); e.barrier()
    if opt.dump == 'Q': return finish_dump(g)
    def vBf(f): return (vB0, f*1024) if f < 40 else (vB1, (f-40)*1024)

    if opt.fallback:
        e.raw(f"s_cmp_eq_u32 {sExact}, 0"); e.raw("s_cbranch_scc1 L_nosweep")
        snap = e.snapshot()
        e.wait_vm_all(); e.wait_lg_all()
        sp_, ka = S(36), V(172)
        kq = V(173)
        g.v2("v_and_b32", kq, 15, vL); g.v2("v_lshlrev_b32", kq, 9, kq)
        g.v2("v_lshrrev_b32", ka, 4, vL); g.v3("v_lshl_add_u32", ka, ka, 4, kq)
        g.s2("s_lshl_b32", S(37), sW, 14); g.v2("v_add_u32", ka, S(37), ka)
        g.s1("s_mov_b32", sp_, 0)
        e.label("L_sweep")
        fa = [V(112, 4), V(116, 4)]; fb = V(120, 4)
        for s in range(8):
            for tt in range(2):
                g.s2("s_add_u32", S(38), sp_, 8192*tt)
                e.gload("buffer_load_dwordx4", fa[tt], ka, sK, S(38), offset=64*s)
            for b in range(10):
                a_, o_ = vBf(s*10 + b)
                e.ds_read("ds_read_b128", fb, a_, o_)
                for tt in range(2):
                    e.mfma(accS(0, tt, b), fa[tt], fb, accS(0, tt, b) if s > 0 else 0)
                e.nop(4)
        for b in range(10):
            s0, s1 = accS(0, 0, b), accS(0, 1, b)
            g.v3("v_max3_f32", vM[b], vM[b], s0[0], s0[1]); g.v3("v_max3_f32", vM[b], vM[b], s0[2], s0[3])
            g.v3("v_max3_f32", vM[b], vM[b], s1[0], s1[1]); g.v3("v_max3_f32", vM[b], vM[b], s1[2], s1[3])
        e.wait_lg_all(); e.wait_vm_all()
        g.s2("s_add_u32", sp_, sp_, 65536); e.raw(f"s_cmp_lt_u32 {sp_}, 0x40000"); e.raw("s_cbranch_scc1 L_sweep")
        e.nop(8)
        e.restore(snap)
        e.label("L_nosweep")
    g.stamp("Qepi")

    sg = Seg(g)
    mstart = {}
    gstart = {}
    for n in range(16):
        p, cb = n >> 2, n & 3
        mstart[n] = sg.nm; gstart[n] = len(sg.groups)
        for sp in range(2):
            s = 2*cb + sp
            for b in range(10):
                mf = [lambda B, b=b, tt=tt, p=p, s=s, sp=sp, cb=cb: e.mfma(accS(p, tt, b), aR[cb].sub(8*sp + 4*tt, 4), B, accS(p, tt, b) if s > 0 else 0) for tt in range(2)]
                sg.add_group(mf, vBf(s*10 + b))
    for j in range(16):
        n = 16 + j; c, wp = j >> 2, j & 3
        mstart[n] = sg.nm; gstart[n] = len(sg.groups)
        for b in range(10):
            mf = [lambda B, b=b, tt=tt, j=j, n=n: e.mfma(accO(tt, b), aR[n & 3].sub(4*tt, 4), B, accO(tt, b) if j > 0 else 0) for tt in range(4)]
            sg.add_group(mf, ((vB1 if (c & 1) else vB0), (wp*10 + b)*1024))
    gp = sg.gaps
    for n in range(32):
        o = mstart[n]
        if n >= 1:
            if n + 3 < 32: spread(gp, [C(f, 8) for f in rdR_mark(n + 3)], o + 1, o + 20)
            nd = n + 7; pre = []
            if nd == 16: pre = [lambda: g.v1("v_mov_b32", vD[0], vVb)] + [lambda jj=jj: g.v2("v_add_u32", vD[jj], 3072*jj, vVb) for jj in (1, 2, 3)]
            if nd == 32: pre = [lambda: g.v1("v_mov_b32", vDW[0], vWOb)] + [lambda jj=jj: g.v2("v_add_u32", vDW[jj], 6144*jj, vWOb) for jj in (1, 2, 3)]
            if nd <= 35: place(gp, pre + dma_after(n + 3, nd), o + 22)
    def Wreg(i):
        if i < 2: return A(136 + 16*i, 16)
        if i < 7: return V(176 + 16*(i-2), 16)
        if i == 7: return A(168, 16)
        if i < 14: return A(184 + 12*(i-8), 12)
        return aR[i-14].sub(0, 12)
    def rdW(i):
        n = 32 + i; nt_ = 4 if i < 8 else 3; W = Wreg(i); fs = [lambda: e.wait_vm(H[('r', n)])]
        for tt in range(nt_):
            for hf in range(2):
                fs.append(C(lambda tt=tt, hf=hf: e.ds_read("ds_read_b64_tr_b16", W.sub(4*tt + 2*hf, 2), vTv[tt], 4096*SLOT[n] + 2048*hf), 8))
        def mark(): RSEQ[n] = e.lg_issued
        return fs + [C(mark, 0)]
    ms = mstart
    spread(gp, rdW(0), ms[29] + 1, ms[29] + 16)
    place(gp, dma_after(32, 36), ms[29] + 17, 2)
    spread(gp, rdW(1), ms[29] + 24, ms[29] + 40)
    place(gp, dma_after(33, 37), ms[30] + 1, 2)
    spread(gp, rdW(2), ms[30] + 10, ms[30] + 26)
    place(gp, dma_after(34, 38), ms[30] + 27, 2)
    spread(gp, rdW(3), ms[31] + 1, ms[31] + 14)
    place(gp, dma_after(35, 39), ms[31] + 15, 2)
    spread(gp, rdW(4), ms[31] + 22, ms[31] + 36)
    place(gp, dma_after(36, 40), ms[31] + 36, 1)
    def max_ops():
        fs = []
        for b in range(10):
            s0, s1 = accS(0, 0, b), accS(0, 1, b)
            for (x, y) in ((s0[0], s0[1]), (s0[2], s0[3]), (s1[0], s1[1]), (s1[2], s1[3])):
                fs.append(lambda b=b, x=x, y=y: g.v3("v_max3_f32", vM[b], vM[b], x, y))
        return fs
    def xreduce_ops(op, regs, lds_off):
        ta = vTmp; fs = []
        for sw in ("v_permlane32_swap_b32", "v_permlane16_swap_b32"):
            for b in range(10): fs.append(lambda b=b: g.v1("v_mov_b32", ta[b], regs[b]))
            for b in range(10):
                fs.append(lambda b=b, sw=sw: e.valu(f"{sw} {ta[b]}, {regs[b]}", dst=[ta[b], regs[b]], src=[ta[b], regs[b]], permlane=True))
            for b in range(10): fs.append(lambda b=b: g.v2(op, regs[b], ta[b], regs[b]))
        for b in range(10): fs.append(lambda b=b: e.ds_write("ds_write_b32", vSTW, regs[b], lds_off + 256*b))
        return fs
    def soft_ops(p):
        fs = []
        for b in range(10):
            z = [accS(p, tt, b)[r] for tt in range(2) for r in range(4)]
            mk = opt.soft_mask
            if 'f' in mk:
                for j in range(8): fs.append(lambda z=z, j=j, b=b: g.v3("v_fma_f32", z[j], z[j], sC, vM[b], neg_c=True))
            if 'e' in mk:
                for j in range(8): fs.append(C(lambda z=z, j=j: g.v1("v_exp_f32", z[j], z[j], trans=True), 8))
            if 'a' in mk:
                for j in range(8): fs.append(lambda z=z, j=j, b=b: g.v2("v_add_f32", vLs[b], vLs[b], z[j]))
            if 'c' in mk:
                for j in range(4): fs.append(lambda z=z, j=j: g.cvt(z[2*j], z[2*j], z[2*j+1]))
            if 'w' in mk:
                for j in range(4): fs.append(lambda z=z, j=j, b=b, p=p: g.accw(park(p, b)[j], z[2*j]))
        return fs
    def spread_steps(fs, steps, lo=0, hi=40, first_lo=None):
        l = first_lo if first_lo is not None else lo
        spread(gp, fs, mstart[steps[0]] + l, mstart[steps[-1]] + hi)
    spread(gp, max_ops() + xreduce_ops("v_max_f32", vM, 0), mstart[4] + 2, mstart[4] + 38)
    def bar_max():
        e.wait_lg_all(); e.barrier()
    gp.setdefault(mstart[4] + 39, []).append(bar_max)
    st = [V(112 + 4*b, 4) for b in range(10)]
    fs = [lambda b=b: e.ds_read("ds_read_b128", st[b], vSTR, 256*b) for b in range(10)]
    for b in range(10):
        fs.append(lambda b=b: g.v3("v_max3_f32", vM[b], st[b][0], st[b][1], st[b][2]))
        fs.append(lambda b=b: g.v2("v_max_f32", vM[b], vM[b], st[b][3]))
        fs.append(lambda b=b: g.v2("v_mul_f32", vM[b], sC, vM[b]))
    spread(gp, fs, mstart[5] + 0, mstart[5] + 14)
    spread_steps(soft_ops(0), [5, 6, 7], first_lo=14)
    spread_steps(soft_ops(1), [8, 9, 10, 11])
    spread_steps(soft_ops(2), [12, 13, 14, 15])
    spread_steps(soft_ops(3), [16, 17, 18])
    def pwrite(c): return [lambda b=b, c=c: e.ds_write("ds_write_b128", vPW, park(c, b), (c & 1)*40960 + b*1024) for b in range(10)]
    def bar():
        e.wait_lg_all(); e.barrier()
    sg.preB.setdefault(gstart[14] + 0, []).append(bar)
    spread(gp, pwrite(0), mstart[14] + 4, mstart[15] + 16)
    sg.preB.setdefault(gstart[15] + 11, []).append(bar)
    sg.preB.setdefault(gstart[16] + 1, []).append(bar)
    spread(gp, pwrite(1), mstart[16] + 10, mstart[18] + 30)
    spread(gp, xreduce_ops("v_add_f32", vLs, 4096), mstart[18] + 39, mstart[19] + 11)
    sg.preB.setdefault(gstart[19] + 2, []).append(bar)
    spread(gp, pwrite(2), mstart[20] + 4, mstart[22] + 30)
    sg.preB.setdefault(gstart[23] + 2, []).append(bar)
    spread(gp, pwrite(3), mstart[24] + 4, mstart[26] + 30)
    sg.preB.setdefault(gstart[27] + 2, []).append(bar)
    stl = [V(176 + 4*b, 4) for b in range(10)]
    fs = [lambda b=b: e.ds_read("ds_read_b128", stl[b], vSTR, 4096 + 256*b) for b in range(10)]
    for b in range(10):
        fs.append(lambda b=b: g.v2("v_add_f32", stl[b][0], stl[b][0], stl[b][1]))
        fs.append(lambda b=b: g.v2("v_add_f32", stl[b][2], stl[b][2], stl[b][3]))
        fs.append(lambda b=b: g.v2("v_add_f32", vLs[b], stl[b][0], stl[b][2]))
    if opt.fallback:
        ts = vTmp[1]
        fs.append(lambda: g.v2("v_add_f32", ts, vLs[0], vLs[1]))
        for b in range(2, 10): fs.append(lambda b=b: g.v2("v_add_f32", ts, ts, vLs[b]))
        def check():
            thr = 0.0 if opt.force_fb else 2.0**24
            g.s1("s_mov_b32", S(36), hex(f2u(thr)))
            e.valu(f"v_cmp_nge_f32 vcc, {S(36)}, {ts}", src=[S(36), ts])
            e.nop(4)
            e.raw("s_cmp_lg_u64 vcc, 0")
            e.raw(f"s_cselect_b32 s37, 1, 0")
            e.raw(f"s_andn2_b32 s37, s37, {sExact}")
            e.raw("s_cmp_lg_u32 s37, 0")
            e.raw("s_cbranch_scc1 L_fallback")
        fs.append(check)
    for b in range(10): fs.append(lambda b=b: g.v1("v_rcp_f32", vLs[b], vLs[b], trans=True))
    spread(gp, fs, mstart[20] + 0, mstart[21] + 20)
    if opt.warm_wo:
        def warm_wo():
            t_, s_ = vTmp[9], S(36)
            g.s2("s_mul_i32", s_, sBt, 224); g.s2("s_mul_i32", S(37), sW, 56); g.s2("s_add_u32", s_, s_, S(37))
            g.v2("v_add_u32", t_, s_, vL); g.v2("v_lshlrev_b32", t_, 7, t_)
            e.raw(f"buffer_load_dword {vDum}, {t_}, {sWO}, 0 offen"); e.vm_issued += 1
        gp.setdefault(mstart[int(opt.warm_at)] + 30, []).append(warm_wo)
    vOW0, vOW1 = V(17), V(31)
    otmp = V(164, 8)
    def opost(b):
        fs = []
        for u in range(2):
            tl = [accO(2*u + h2, b) for h2 in range(2)]
            if tl[0].f == 'a':
                z = [otmp[j] for j in range(8)]
                for h2 in range(2):
                    for r in range(4): fs.append(lambda h2=h2, r=r, tl=tl, z=z: g.accr(z[4*h2 + r], tl[h2][r]))
            else:
                z = [tl[h2][r] for h2 in range(2) for r in range(4)]
            for j in range(8): fs.append(lambda j=j, z=z, b=b: g.v2("v_mul_f32", z[j], z[j], vLs[b]))
            o4 = V(z[0].i, 4)
            for j in range(4): fs.append(lambda j=j, z=z, o4=o4: g.cvt(o4[j], z[2*j], z[2*j+1]))
            fs.append(C(lambda o4=o4, u=u, b=b: e.ds_write("ds_write_b128", vOW0 if b < 5 else vOW1, o4, (b % 5)*8192 + u*1024), 8))
        return fs
    def setup_ow():
        g.s2("s_lshl_b32", S(36), sW, 11); g.s2("s_add_u32", S(36), S(36), LDS_A)
        g.v2("v_lshlrev_b32", vOW0, 4, vL); g.v2("v_add_u32", vOW0, S(36), vOW0); g.v2("v_add_u32", vOW1, 40960, vOW0)
    gp.setdefault(mstart[26] + 2, []).append(C(setup_ow, 20))
    o31 = mstart[31]
    ptail = []
    for b in range(5):
        lo = o31 + 4*(b+1) + 3
        if b < 3: spread(gp, opost(b), lo, min(o31 + 40, lo + 12))
        else: ptail += opost(b)
    if opt.stamps:
        for n_, nm_ in ((4, "S0"), (8, "S1"), (12, "S2"), (16, "S3"), (20, "PV0"), (24, "PV1"), (28, "PV2")):
            gp.setdefault(mstart[n_] - 1, []).append(lambda nm_=nm_: g.stamp(nm_))
    sg.emit()
    g.stamp("PVdone")
    g.run(ptail)
    e.wait_lg_all(); e.barrier()
    if opt.dump == 'O':
        for b in range(5, 10): g.run(opost(b))
        return finish_dump(g)
    g.stamp("Opost")

    sg = Seg(g); gp = sg.gaps
    accA = lambda b, t: V(32 + 16*(b & 1) + 4*t, 4)
    accB = lambda b, t: V(80 + 12*(b & 1) + 4*t, 4)
    bst = {}
    def Bsrc(b, j): return (vB0, (b*8 + j)*1024) if b < 5 else (vB1, ((b-5)*8 + j)*1024)
    for st in range(2):
        nt_ = 4 if st == 0 else 3; acc = accA if st == 0 else accB
        order = [(b, j) for b in range(10) for j in range(8)]
        if st == 0:
            order = [(0, j) for j in range(5)] + [(1, j) for j in range(5)] + [(0, j) for j in range(5, 8)] + [(1, j) for j in range(5, 8)] + order[16:]
        for (b, j) in order:
            if (st, b) not in bst: bst[(st, b)] = sg.nm
            W = Wreg(8*st + j)
            mf = [lambda B, b=b, tt=tt, j=j, W=W, acc=acc: e.mfma(acc(b, tt), W.sub(4*tt, 4), B, acc(b, tt) if j > 0 else 0) for tt in range(nt_)]
            sg.add_group(mf, Bsrc(b, j))
    bend = {(0, 0): 13*4, (0, 1): 16*4}
    for b in range(2, 10): bend[(0, b)] = bst[(0, b)] + 32
    for b in range(10): bend[(1, b)] = bst[(1, b)] + 24
    spread(gp, rdW(5), 0, 12)
    place(gp, dma_after(37, 41), 12, 3)
    spread(gp, rdW(6), 14, 30)
    spread(gp, rdW(7), 24, 42)
    place(gp, dma_after(38, 42), 31, 3)
    place(gp, dma_after(39, 43), 43, 3)
    for i in range(8, 16):
        lo = bst[(0, i - 6)] + 2
        spread(gp, rdW(i), lo, lo + 20)
        if 32 + i + 4 < 48: place(gp, dma_after(32 + i, 32 + i + 4), lo + 21, 3)
    u1 = []
    for b in range(5, 10): u1 += opost(b)
    spread(gp, u1, 0, bst[(0, 4)] - 1)
    sg.preB.setdefault(31, []).append(bar)
    def store_e(O, ee):
        g.s1("s_mov_b32", sO3, (ee >> 2)*4096)
        e.gstore("buffer_store_dwordx4", O, vWS, sWS, sO3, offset=(ee & 3)*1024, flags=opt.st_flags)
    kk = [0]
    def pair_epi(x, y, ee):
        O = V(64 + 4*(kk[0] & 3), 4); kk[0] += 1
        return [lambda: g.cvt(O[0], x[0], x[1]), lambda: g.cvt(O[1], x[2], x[3]), lambda: g.cvt(O[2], y[0], y[1]), lambda: g.cvt(O[3], y[2], y[3]),
                VM(C(lambda: store_e(O, ee), 8))]
    def epiA(b): return pair_epi(accA(b, 0), accA(b, 1), b) + pair_epi(accA(b, 2), accA(b, 3), 10 + b)
    def epiB(b):
        fs = pair_epi(accB(b, 0), accB(b, 1), 20 + b)
        O6 = V(104 + 4*((b >> 1) & 1), 4); d = accB(b, 2)
        fs += [lambda: g.cvt(O6[2*(b & 1)], d[0], d[1]), lambda: g.cvt(O6[2*(b & 1) + 1], d[2], d[3])]
        if b & 1: fs.append(VM(C(lambda: store_e(O6, 30 + (b >> 1)), 8)))
        return fs
    for b in range(10):
        nx = bend[(0, b)]
        hi = nx + 22 if b != 0 else 64 - 1
        spread(gp, epiA(b), nx + 3, hi)
    for b in range(9):
        nx = bend[(1, b)]
        spread(gp, epiB(b), nx + 3, nx + 20)
    tail = epiB(9)
    sg.emit()
    g.stamp("outdone")
    g.run(tail)
    if opt.stamps:
        e.wait_vm_all()
        g.stamp("end")
        g.stamp_flush()
    if opt.fallback:
        e.raw("s_endpgm")
        e.label("L_fallback")
        e.raw("s_waitcnt vmcnt(0) lgkmcnt(0)")
        e.raw("s_barrier")
        e.raw(f"s_mov_b32 {sExact}, 1")
        e.raw("s_branch L_restart")
    e.label("L_k1_end")
    e.raw("s_endpgm")
    return e

def finish_dump(g):
    e = g.e
    e.wait_lg_all(); e.wait_vm_all(); e.barrier()
    t = V(240); u = V(244, 4)
    g.s2("s_mul_i32", S(38), sW, 20480)
    g.v2("v_lshlrev_b32", t, 4, vL); g.v2("v_add_u32", t, S(38), t)
    a = V(241); g.v2("v_add_u32", a, LDS_A, t)
    for i in range(20):
        e.ds_read("ds_read_b128", u, a, i*1024)
        g.s1("s_mov_b32", sO2, i*1024)
        e.gstore("buffer_store_dwordx4", u, t, sWS, sO2)
        e.wait_vm_all()
    e.label("L_fallback")
    e.label("L_k1_end")
    e.raw("s_endpgm")
    return e

import gen1
def assemble(path):
    k1 = build_k1()
    gen1.opt.k2_flags = opt.k2_flags; gen1.opt.stamps = opt.stamps
    k2 = gen1.build_k2()
    hdr = open("cdna_kernels/" + NAME + ".s.ref").read().split("; Override launch")[0]
    out = hdr
    out += f"; @launch kernel=mha_k1_kernel grid=(256,1,1) block=(256,1,1) lds={LDS_TOTAL}\n"
    out += f"; @launch kernel=mha_k2_kernel grid=(560,1,1) block=(256,1,1) lds=0\n"
    out += '.amdgcn_target "amdgcn-amd-amdhsa--gfx950"\n.text\n'
    for nm, k in (("mha_k1_kernel", k1), ("mha_k2_kernel", k2)):
        out += f".globl {nm}\n.p2align 8\n.type {nm},@function\n{nm}:\n" + k.text()
    out += '.section .rodata,"a"\n.p2align 6\n' + gen1.KD.format(name="mha_k1_kernel", vgpr=512, acc=256)
    out += '.p2align 6\n' + gen1.KD.format(name="mha_k2_kernel", vgpr=96, acc=96)
    open(path, "w").write(out)
    if opt.stamps: print("STAMPS", ",".join(STAMPS))
    print("k1 stats", k1.stats, file=sys.stderr)

if __name__ == "__main__":
    path = sys.argv[1]
    for a in sys.argv[2:]:
        k, v = a.split("=")
        if v in ("True", "False"): v = (v == "True")
        elif v == "None": v = None
        setattr(opt, k, v)
    assemble(path)
```

```python
import sys, math, struct
from emit import *

NAME = "concat_heads__mha_block_cached__mha_block_cached__near_ridge"
LDS_M = 0; LDS_A = 16384; LDS_B = 98304; XS = 49152
LDS_TOTAL = 163840
PART_UNIT = 143360
PART_WAVE = 35840

class Opt:
    nt_kv = True
    st_flags = "sc1"
    k2_flags = ""
    dump = None
    stamps = False
    warm = False
    fallback = True
    force_fb = False
    pstamp = False
    only = None
    skip_dma = ''
    soft_mask = 'feacw'
    wait_batch = 2
    level = 8
    code_pf = True
    pf_lines = 4
    vm_gap = 4
    qstamp = False
    rot = True
    w_flags = ''
    wo_flags = ''
    warm_wo = False
    warm_at = 21
    kread = '{10:0,11:1,12:2,13:3}'
    kfirst = '{2:0,4:1,6:2,8:3}'
    qa_lo = 20
opt = Opt()
STAMPS = []
def f2u(x): return struct.unpack("<I", struct.pack("<f", x))[0]

sX, sK, sV, sWQ, sWO, sWS = S(4,4), S(8,4), S(12,4), S(16,4), S(20,4), S(24,4)
sW, sRB, sWB, sXD, sO1, sO2, sC, sExact = S(28), S(29), S(30), S(31), S(32), S(33), S(34), S(35)
sH, sBt, sBr = S(60), S(61), S(62)
sO3 = S(57)
sXo = [S(64+c) for c in range(7)]
sWo = [S(71+c) for c in range(7)]

vL = V(1)
vB0, vB1, vK0, vK1 = V(2), V(3), V(4), V(5)
vTv = [V(6+i) for i in range(4)]
vD  = [V(10+i) for i in range(4)]
vVb, vWOb, vPW, vSTW, vSTR, vWS = V(14), V(15), V(16), V(18), V(19), V(20)
vM  = [V(21+i) for i in range(10)]
vDum = V(0)
vX0, vX1 = V(152), V(153)
vTq  = [V(154+i) for i in range(4)]
vDX  = [V(158+i) for i in range(5)]
vDWQ = [V(163+i) for i in range(4)]
vQW  = V(167)
vLs = [V(152+i) for i in range(10)]
vDW = [V(172+i) for i in range(4)]
vTmp = [V(162+i) for i in range(10)]
NB = 8
aB = [A(4*i, 4) for i in range(NB)]
aR = [A(32 + 16*i, 16) for i in range(4)]
aWQ = [[A(96 + 16*s + 4*t, 4) for t in range(4)] for s in range(2)]
def park(p, b): return A(96 + 40*p + 4*b, 4)

def accQ(t, b):
    i = b*4 + t
    return V(32 + 4*i, 4) if i < 30 else V(176 + 4*(i-30), 4)
def accS(p, t, b): return V((32 if p % 2 == 0 else 176) + 8*b + 4*t, 4)
def accO(t, b):
    i = b*4 + t
    return V(32 + 4*i, 4) if i < 30 else A(96 + 4*(i-30), 4)
def accP0(t, b): return A(96 + 4*(b*4+t), 4)
def accP1(t, b): return V(32 + 4*(b*3+t), 4)

class G:
    def __init__(self):
        self.e = Emit(); self.nst = 0
    def v2(self, op, d, a, b):
        self.e.valu(f"{op} {d}, {a}, {b}", dst=[d], src=[x for x in (a, b) if isinstance(x, R)])
    def v1(self, op, d, a, trans=False):
        self.e.valu(f"{op} {d}, {a}", dst=[d], src=[a] if isinstance(a, R) else [], trans=trans)
    def v3(self, op, d, a, b, c, neg_c=False):
        cc = f"-{c}" if neg_c else f"{c}"
        self.e.valu(f"{op} {d}, {a}, {b}, {cc}", dst=[d], src=[x for x in (a, b, c) if isinstance(x, R)])
    def cvt(self, d, a, b):
        self.e.valu(f"v_cvt_pk_bf16_f32 {d}, {a}, {b}", dst=[d], src=[a, b])
    def accw(self, d, a):
        self.e.valu(f"v_accvgpr_write_b32 {d}, {a}", dst=[d], src=[a])
    def accr(self, d, a):
        self.e.valu(f"v_accvgpr_read_b32 {d}, {a}", dst=[d], src=[a])
    def s2(self, op, d, a, b):
        self.e.salu(f"{op} {d}, {a}, {b}", reads=[x for x in (a, b) if isinstance(x, R)])
    def s1(self, op, d, a):
        self.e.salu(f"{op} {d}, {a}", reads=[a] if isinstance(a, R) else [])
    def m0(self, sbase, imm):
        self.e.salu(f"s_add_u32 m0, {sbase}, {imm}", w_m0=True, reads=[sbase])
    m0state = None
    sstate = None
    def ensure(self, sbase, ldsoff, sreg, soff_imm):
        if self.sstate is None: self.sstate = {}
        if self.m0state != (str(sbase), ldsoff):
            self.m0(sbase, ldsoff); self.m0state = (str(sbase), ldsoff)
        key = (str(soff_imm[0]), soff_imm[1]) if isinstance(soff_imm, tuple) else soff_imm
        if self.sstate.get(str(sreg)) != key:
            if isinstance(soff_imm, tuple): self.s2("s_add_u32", sreg, soff_imm[0], soff_imm[1])
            else: self.s1("s_mov_b32", sreg, soff_imm)
            self.sstate[str(sreg)] = key
    def forget(self):
        self.m0state = None; self.sstate = {}
    def dma_group(self, voffs, srd, sbase, ldsoff, soff_imm, sreg, holder, key, flags=""):
        e = self.e; fs = []
        for i in range(len(voffs)):
            def f(i=i):
                kind = key[0] if key[0] != 'r' else ('k' if key[1] < 16 else ('v' if key[1] < 32 else 'o'))
                if kind in opt.skip_dma or (kind == 'wq' and 'q' in opt.skip_dma): holder[key] = e.vm_issued; return
                self.ensure(sbase, ldsoff + (4096 if i == 4 else 0), sreg, soff_imm)
                holder[key] = e.dma(voffs[i], srd, sreg, offset=(1024*i if i < 4 else 0), flags=flags)
            f.vm = True
            fs.append(C(f, 12 if i == 0 else 4))
        return fs
    def run(self, fs):
        for f in fs: f()
    def stamp(self, name):
        if not opt.stamps: return
        if opt.only and name not in opt.only.split(","): return
        i = self.nst; self.nst += 1; STAMPS.append(name)
        assert i < 14
        self.e.raw("s_memtime s[94:95]"); self.e.raw("s_waitcnt lgkmcnt(0)"); self.e.raw(f"s_mov_b32 s{80+i}, s94")
        self.e.lg_done = self.e.lg_issued
    def stamp_flush(self):
        e = self.e
        e.raw("s_memrealtime s[94:95]"); e.raw("s_waitcnt lgkmcnt(0)")
        e.raw("s_load_dwordx2 s[36:37], s[0:1], 96"); e.raw("s_waitcnt lgkmcnt(0)")
        e.salu("s_add_u32 s36, s36, 0x4000000"); e.salu("s_addc_u32 s37, s37, 0")
        e.salu("s_mov_b32 s38, 0x100000"); e.salu("s_mov_b32 s39, 0x00020000")
        e.salu("s_lshl_b32 s40, s2, 8"); e.salu(f"s_lshl_b32 s41, {sW}, 6"); e.salu("s_add_u32 s40, s40, s41")
        z = V(170); d = V(171)
        self.v1("v_mov_b32", z, 0)
        for i, src in [(i, S(80+i)) for i in range(self.nst)] + [(15, S(94)), (14, S(78))]:
            self.v1("v_mov_b32", d, src); e.salu(f"s_add_u32 s41, s40, {4*i}")
            e.gstore("buffer_store_dword", d, z, S(36, 4), S(41))

def cost_of(f): return getattr(f, "cost", 4)
def C(f, c):
    f.cost = c; return f

def VM(f):
    f.vm = True; return f

class Gaps:
    def __init__(self):
        self.streams = []; self.fixed = {}
    def setdefault(self, k, d): return self.fixed.setdefault(k, d)

def spread(gaps, fs, start, end):
    if not fs: return
    assert end > start, (start, end)
    gaps.streams.append(dict(ops=list(fs), lo=start, hi=end))

def place(gaps, fs, start, step=None):
    if step is None: step = int(opt.vm_gap)
    pos = start
    for f in fs:
        gaps.setdefault(pos, []).append(f)
        if getattr(f, "vm", False): pos += step

def schedule(N, F, streams, base=8.0):
    out = {}
    for s_ in streams:
        s_["k"] = 0; s_["rem"] = sum(cost_of(f) for f in s_["ops"]); s_["hi"] = min(s_["hi"], N)
    pf = [0]*(N+1)
    for i in range(N): pf[i+1] = pf[i] + F[i]
    carry = 0.0
    last_vm = -100
    VMG = int(opt.vm_gap)
    for i in range(N):
        act = [s_ for s_ in streams if s_["k"] < len(s_["ops"])]
        if not act: break
        L = base
        his = sorted(set(s_["hi"] for s_ in act if s_["hi"] > i))
        for h in his:
            need = pf[h] - pf[i] + sum(s_["rem"] for s_ in act if s_["hi"] <= h and s_["lo"] < h)
            lo = max(i, min(s_["lo"] for s_ in act if s_["hi"] <= h))
            need2 = pf[h] - pf[lo] + sum(s_["rem"] for s_ in act if s_["hi"] <= h)
            if lo <= i: L = max(L, need2 / (h - lo))
        budget = L - F[i] + carry
        placed = 0
        while True:
            cand = [s_ for s_ in streams if s_["k"] < len(s_["ops"]) and s_["lo"] <= i]
            def blocked(x):
                f_ = x["ops"][x["k"]]
                if not getattr(f_, "vm", False) or i - last_vm >= VMG: return False
                nv = sum(1 for q in x["ops"][x["k"]:] if getattr(q, "vm", False))
                return (x["hi"] - i) > nv
            cand = [x for x in cand if not blocked(x)]
            if not cand: break
            cand.sort(key=lambda s_: (s_["hi"] - s_["rem"] / max(L - 2.0, 1.0), s_["hi"]))
            s_ = cand[0]
            f = s_["ops"][s_["k"]]; c = cost_of(f)
            forced = any(x["hi"] - 1 <= i for x in cand)
            if forced:
                s_ = [x for x in cand if x["hi"] - 1 <= i][0]; f = s_["ops"][s_["k"]]; c = cost_of(f)
            elif budget - placed < c - 1.99: break
            out.setdefault(i, []).append(f); s_["k"] += 1; s_["rem"] -= c; placed += c
            if getattr(f, "vm", False): last_vm = i
        carry = max(-6.0, min(2.0, budget - placed))
    for s_ in streams: assert s_["k"] == len(s_["ops"]), (s_["lo"], s_["hi"], s_["k"], len(s_["ops"]))
    return out

class Seg:
    def __init__(self, g):
        self.g = g; self.groups = []
        self.gaps = Gaps()
        self.preB = {}
        self.nm = 0; self.gstart = []
    def add_group(self, mf, bsrc):
        self.gstart.append(self.nm); self.groups.append((mf, bsrc)); self.nm += len(mf)
    def emit(self, wait_batch=None):
        if wait_batch is None: wait_batch = int(opt.wait_batch)
        e = self.g.e; seq = {}
        n = len(self.groups); N = self.nm
        F = [0]*N
        for G in range(n):
            last = self.gstart[G] + len(self.groups[G][0]) - 1
            if G + NB < n: F[last] += 8
            if G % wait_batch == 0 and G > 0: F[self.gstart[G] - 1] += 4
        for k_, v_ in self.gaps.fixed.items(): F[k_] += sum(cost_of(f) for f in v_)
        sched = schedule(N, F, self.gaps.streams, base=float(opt.level))
        def rd(G):
            a, o = self.groups[G][1]
            seq[G] = e.ds_read("ds_read_b128", aB[G % NB], a, o)
        for G in range(min(NB, n)): rd(G)
        idx = 0
        for G, (mf, _) in enumerate(self.groups):
            if G % wait_batch == 0:
                last = min(n-1, G + wait_batch - 1)
                while last not in seq: last -= 1
                e.wait_lg(seq[last])
            for m in mf:
                m(aB[G % NB])
                for f in sched.get(idx, []): f()
                for f in self.gaps.fixed.get(idx, []): f()
                idx += 1
            for f in self.preB.get(G, []): f()
            if G + NB < n: rd(G + NB)

def build_k1():
    g = G(); e = g.e
    kvflag = "nt" if opt.nt_kv else ""
    H = {}
    e.raw("s_cmp_ge_u32 s2, 256"); e.raw("s_cbranch_scc1 L_k1_end")
    if opt.code_pf:
        nl = int(opt.pf_lines)
        e.raw("s_getpc_b64 s[36:37]")
        e.label("L_pc")
        e.raw("v_lshrrev_b32 v2, 6, v0")
        e.raw("s_lshr_b32 s38, s2, 3"); e.raw("s_lshl_b32 s38, s38, 2")
        e.raw("v_add_u32 v2, s38, v2")
        e.raw(f"v_and_b32 v3, {nl-1}, v0")
        e.raw(f"v_mad_u32_u24 v2, v2, {nl}, v3")
        e.raw("v_lshlrev_b32 v2, 7, v2")
        e.raw("s_mov_b32 s38, L_k1_end-L_pc-4")
        e.raw("v_min_u32 v2, s38, v2")
        e.raw("v_and_b32 v2, -4, v2")
        e.raw("global_load_dword v31, v2, s[36:37]")
        e.vm_issued += 1
    if opt.stamps:
        e.raw("s_memrealtime s[78:79]"); e.raw("s_waitcnt lgkmcnt(0)")
    g.stamp("start")
    e.raw("s_load_dwordx16 s[36:51], s[0:1], 0")
    e.raw("s_load_dwordx4 s[52:55], s[0:1], 64")
    e.raw("s_load_dwordx2 s[56:57], s[0:1], 96")
    g.s2("s_and_b32", S(58), S(2), 7); g.s2("s_lshr_b32", S(59), S(2), 3)
    g.s2("s_and_b32", sH, S(58), 3); g.s2("s_lshl_b32", sH, sH, 2)
    g.s2("s_and_b32", sBt, S(59), 3); g.s2("s_add_u32", sH, sH, sBt)
    g.s2("s_lshr_b32", sBt, S(59), 2); g.s2("s_lshr_b32", sBr, S(58), 2)
    if opt.rot:
        g.s2("s_and_b32", S(58), sH, 3); g.s2("s_lshl_b32", S(58), S(58), 1); g.s2("s_add_u32", S(58), S(58), sBt)
        e.raw("s_cmp_ge_u32 s58, 7"); e.raw("s_cselect_b32 s59, 7, 0"); g.s2("s_sub_u32", S(58), S(58), S(59))
    else:
        g.s1("s_mov_b32", S(58), 0)
    for c in range(7):
        g.s2("s_add_u32", S(59), S(58), c)
        e.raw("s_cmp_ge_u32 s59, 7"); e.raw("s_cselect_b32 s63, 7, 0"); g.s2("s_sub_u32", S(59), S(59), S(63))
        g.s2("s_lshl_b32", sXo[c], S(59), 7); g.s2("s_lshl_b32", sWo[c], S(59), 19)
    g.v2("v_lshrrev_b32", V(32), 6, V(0))
    e.readfirstlane(sW, V(32))
    g.s1("s_mov_b32", sExact, 0)
    g.s2("s_lshl_b32", sRB, sW, 14); g.s2("s_add_u32", sRB, sRB, LDS_B)
    g.s2("s_mul_i32", sWB, sW, 12288)
    g.s2("s_mul_i32", sXD, sW, 5120); g.s2("s_add_u32", sXD, sXD, XS)
    g.s1("s_mov_b32", sC, hex(f2u(math.log2(math.e) / 16.0)))
    g.v2("v_and_b32", vL, 63, V(0))
    P = [V(32+i) for i in range(16)]
    q16, gg, r4, c4, prow, pg, t, u, w_v = P[0], P[1], P[2], P[3], P[4], P[5], P[6], P[7], P[8]
    def lanefields():
        g.v2("v_and_b32", q16, 15, vL); g.v2("v_lshrrev_b32", gg, 4, vL)
        g.v3("v_bfe_u32", r4, vL, 2, 2); g.v2("v_and_b32", c4, 3, vL)
        g.v2("v_lshrrev_b32", prow, 3, vL); g.v2("v_and_b32", pg, 7, vL)
        g.v1("v_mov_b32", w_v, sW)
    s896 = S(63)
    def xwq_offsets():
        g.s1("s_mov_b32", s896, 896)
        for i in range(5):
            g.v3("v_mad_u32_u24", t, w_v, 5, i)
            g.v2("v_and_b32", u, 1, t); g.v3("v_lshl_add_u32", u, u, 2, gg)
            g.v2("v_xor_b32", u, u, pg); g.v2("v_lshlrev_b32", u, 4, u)
            g.v3("v_lshl_add_u32", t, t, 3, prow)
            g.v3("v_mad_u32_u24", vDX[i], t, s896, u)
            if 0 < i < 4: g.v2("v_subrev_u32", vDX[i], 1024*i, vDX[i])
        for par in range(2):
            g.v3("v_bfe_u32", u, prow, 1, 1)
            if par: g.v2("v_or_b32", u, 2, u)
            g.v2("v_lshlrev_b32", u, 1, u); g.v2("v_xor_b32", u, u, pg); g.v2("v_lshlrev_b32", u, 4, u)
            g.v3("v_lshl_add_u32", u, w_v, 7, u)
            g.v2("v_lshlrev_b32", t, 13, prow); g.v2("v_add_u32", vDWQ[par], t, u)
        for jj in (2, 3): g.v2("v_add_u32", vDWQ[jj], 64512*jj, vDWQ[jj & 1])
        g.v2("v_add_u32", vDWQ[1], 64512, vDWQ[1])
    lanefields(); xwq_offsets()
    e.raw("s_waitcnt lgkmcnt(0)")
    if opt.pstamp: g.stamp("karg")
    e.raw(f"s_cmp_eq_u32 {sBr}, 0")
    for (pa, pb) in [(36,46),(38,48),(40,50),(42,52),(44,54)]:
        e.raw(f"s_cselect_b32 s{pa}, s{pa}, s{pb}"); e.raw(f"s_cselect_b32 s{pa+1}, s{pa+1}, s{pb+1}")
    def srd(dst, plo, off_sreg, nrec):
        g.s2("s_add_u32", dst[0], S(plo), off_sreg); e.salu(f"s_addc_u32 {dst[1]}, s{plo+1}, 0")
        g.s1("s_mov_b32", dst[2], nrec); g.s1("s_mov_b32", dst[3], "0x00020000")
    t0, t1 = S(58), S(59)
    g.s2("s_mul_i32", t0, sBt, 143360); srd(sX, 36, t0, 143360)
    g.s2("s_lshl_b32", t1, sH, 9); g.s2("s_sub_u32", t0, 3670016, t1); srd(sWQ, 42, t1, t0)
    g.s2("s_lshl_b32", t0, sBt, 4); g.s2("s_add_u32", t0, t0, sH)
    g.s2("s_lshl_b32", t1, t0, 18); srd(sK, 38, t1, 262144); srd(sV, 40, t1, 262144)
    g.s2("s_lshl_b32", t1, sBr, 7); g.s2("s_add_u32", t0, t0, t1)
    g.s2("s_mul_i32", t1, t0, PART_UNIT); srd(sWS, 56, t1, PART_UNIT)
    g.s2("s_mul_i32", t1, sH, 229376); srd(sWO, 44, t1, 229376)
    e.raw("s_branch L_first")
    e.label("L_restart")
    lanefields(); xwq_offsets()
    e.label("L_first")
    g.forget()
    g.run(g.dma_group(vDX, sX, sXD, 0, (sXo[0], 0), sO1, H, ('x', 0), flags=opt.w_flags))
    if opt.pstamp: g.stamp("x0")
    g.run(g.dma_group(vDWQ, sWQ, sWB, 0, (sWo[0], 0), sO2, H, ('wq', 0), flags=opt.w_flags))
    if opt.pstamp: g.stamp("wq0")
    if opt.warm:
        g.s2("s_mul_i32", t0, sBt, 56); g.s2("s_mul_i32", t1, sW, 14); g.s2("s_add_u32", t0, t0, t1)
        g.v2("v_lshrrev_b32", t, 2, vL); g.v2("v_add_u32", t, t0, t); g.v2("v_lshlrev_b32", t, 13, t)
        g.v3("v_lshl_add_u32", t, c4, 7, t)
        e.raw(f"buffer_load_dword {vDum}, {t}, {sWQ}, 0 offen"); e.vm_issued += 1
        g.s2("s_and_b32", t0, sH, 3); g.s2("s_mul_i32", t0, t0, 280); g.s2("s_mul_i32", t1, sW, 70); g.s2("s_add_u32", t0, t0, t1)
        g.v2("v_add_u32", u, t0, vL); g.v2("v_lshlrev_b32", u, 7, u)
        e.raw(f"buffer_load_dword {vDum}, {u}, {sX}, 0 offen"); e.vm_issued += 1
    if opt.pstamp: g.stamp("warm")
    g.run(g.dma_group(vDWQ, sWQ, sWB, 4096, (sWo[0], 262144), sO2, H, ('wq', 1), flags=opt.w_flags))
    if opt.pstamp: g.stamp("wq12")
    for par in range(2):
        g.v2("v_add_u32", u, 4*par, gg); g.v2("v_xor_b32", u, u, pg); g.v2("v_lshlrev_b32", u, 4, u)
        g.v3("v_lshl_add_u32", t, w_v, 5, prow); g.v2("v_lshlrev_b32", t, 9, t)
        g.v2("v_add_u32", vD[par], t, u)
    for jj in (2, 3): g.v2("v_add_u32", vD[jj], 3072*jj, vD[jj & 1])
    g.v2("v_add_u32", vD[1], 3072, vD[1])
    SLOT = {n: n & 3 for n in range(22)}
    SLOT.update({n: n & 3 for n in range(22, 48)})
    def dma_n(n):
        if n < 16:   return g.dma_group(vD, sK, sRB, 4096*SLOT[n], 65536*(n >> 2) + 128*(n & 3), sO1, H, ('r', n), flags=kvflag)
        if n < 32:   return g.dma_group(vD, sV, sRB, 4096*SLOT[n], 16384*(n-16), sO1, H, ('r', n), flags=kvflag)
        i = n - 32
        return g.dma_group(vDW, sWO, sRB, 4096*SLOT[n], 28672*(i % 8) + 128*(i // 8), sO2, H, ('r', n), flags=opt.wo_flags)
    def switchD(base):
        return [lambda jj=jj: (g.v1("v_mov_b32", vD[0], base) if jj == 0 else g.v2("v_add_u32", vD[jj], base[1]*jj, base[0])) for jj in range(4)]
    gv = P[9]
    g.v3("v_bfe_u32", u, prow, 1, 2); g.v2("v_lshlrev_b32", u, 1, u); g.v2("v_xor_b32", u, u, pg); g.v2("v_lshlrev_b32", gv, 4, u)
    g.v2("v_lshlrev_b32", u, 9, prow); g.v2("v_add_u32", u, u, gv); g.v3("v_lshl_add_u32", vVb, w_v, 7, u)
    s224 = S(58); g.s1("s_mov_b32", s224, 224)
    g.v3("v_mad_u32_u24", u, prow, s896, gv); g.v3("v_mad_u32_u24", vWOb, w_v, s224, u)
    g.v2("v_lshlrev_b32", t, 4, vL); g.v2("v_add_u32", vB0, LDS_A, t); g.v2("v_add_u32", vB1, LDS_A + 40960, t)
    g.v2("v_lshrrev_b32", u, 1, q16)
    for sp, (vx, vk) in enumerate([(vX0, vK0), (vX1, vK1)]):
        g.v2("v_add_u32", t, 4*sp, gg); g.v2("v_xor_b32", t, t, u); g.v2("v_lshlrev_b32", t, 4, t)
        g.v3("v_lshl_add_u32", t, q16, 7, t)
        g.v2("v_add_u32", vx, XS, t); g.v2("v_add_u32", vk, sRB, t)
    phq, phv, base = P[10], P[11], P[12]
    g.v2("v_lshrrev_b32", u, 1, r4)
    g.v2("v_and_b32", t, 1, gg); g.v3("v_lshl_or_b32", phq, t, 1, u)
    g.v3("v_lshl_add_u32", phv, gg, 1, u); g.v2("v_and_b32", phv, 3, phv)
    g.v3("v_lshl_add_u32", base, gg, 3, r4); g.v2("v_lshlrev_b32", base, 7, base); g.v3("v_lshl_add_u32", base, c4, 3, base)
    g.v2("v_add_u32", base, sWB, base)
    for tt in range(4):
        g.v2("v_xor_b32", t, tt, phq); g.v3("v_lshl_add_u32", vTq[tt], t, 5, base)
    g.v3("v_lshl_add_u32", base, gg, 2, r4); g.v2("v_lshlrev_b32", base, 7, base); g.v3("v_lshl_add_u32", base, c4, 3, base)
    g.v2("v_add_u32", base, sRB, base)
    for tt in range(4):
        g.v2("v_xor_b32", t, tt, phv); g.v3("v_lshl_add_u32", vTv[tt], t, 5, base)
    sA = S(59); g.s2("s_mul_i32", sA, sW, 20480); g.s2("s_add_u32", sA, sA, LDS_A)
    g.v2("v_lshrrev_b32", t, 1, gg); g.v2("v_lshlrev_b32", t, 8, t); g.v3("v_lshl_add_u32", t, q16, 4, t)
    g.v2("v_and_b32", u, 1, gg); g.v3("v_lshl_add_u32", t, u, 3, t); g.v2("v_add_u32", vQW, sA, t)
    g.v2("v_lshlrev_b32", t, 4, vL)
    g.s2("s_mul_i32", sA, sW, 10240); g.s2("s_add_u32", sA, sA, LDS_A); g.v2("v_add_u32", vPW, sA, t)
    g.s2("s_mul_i32", sA, sW, PART_WAVE); g.v2("v_add_u32", vWS, sA, t)
    g.v2("v_lshlrev_b32", vSTR, 4, q16); g.s2("s_lshl_b32", sA, sW, 2); g.v2("v_add_u32", vSTW, sA, vSTR)
    for b in range(10): g.v1("v_mov_b32", vM[b], "0xff800000")

    def rdR(n):
        slot = n & 3; ls = SLOT[n]; fs = []
        if n < 16:
            for sp in range(2):
                for tt in range(2):
                    fs.append(lambda sp=sp, tt=tt: e.ds_read("ds_read_b128", aR[slot].sub(8*sp + 4*tt, 4), (vK0, vK1)[sp], 4096*ls + 2048*tt))
        else:
            for tt in range(4):
                for hf in range(2):
                    fs.append(lambda tt=tt, hf=hf: e.ds_read("ds_read_b64_tr_b16", aR[slot].sub(4*tt + 2*hf, 2), vTv[tt], 4096*ls + 2048*hf))
        return [lambda: e.wait_vm(H[('r', n)])] + fs
    RSEQ = {}
    def rdR_mark(n):
        fs = rdR(n)
        def mark(): RSEQ[n] = e.lg_issued
        return fs + [mark]
    def dma_after(n_read, n_dma):
        return [lambda: e.wait_lg(RSEQ[n_read])] + dma_n(n_dma)

    g.stamp("prolog")
    def rdA_wq(s):
        fs = []
        for tt in range(4):
            for hf in range(2):
                fs.append(lambda tt=tt, hf=hf: e.ds_read("ds_read_b64_tr_b16", aWQ[s & 1][tt].sub(2*hf, 2), vTq[tt], 4096*(s % 3) + 512*hf))
        return fs
    e.wait_vm(H[('wq', 0)])
    e.barrier()
    g.stamp("firstdata")
    g.run(rdA_wq(0))
    sg = Seg(g)
    NQ = 14
    for s in range(NQ):
        for b in range(10):
            mf = [lambda B, b=b, tt=tt, s=s: e.mfma(accQ(tt, b), aWQ[s & 1][tt], B, accQ(tt, b) if s > 0 else 0) for tt in range(4)]
            sg.add_group(mf, ((vX0, vX1)[s & 1], 20480*((s >> 1) & 1) + 2048*b))
    kread = eval(str(opt.kread))
    kfirst = eval(str(opt.kfirst))
    for s in range(NQ):
        o = 40*s; nxt = s + 1
        if s == 0:
            place(sg.gaps, g.dma_group(vDWQ, sWQ, sWB, 4096*2, (sWo[1], 0), sO2, H, ('wq', 2), flags=opt.w_flags), o + 0, 2)
            place(sg.gaps, g.dma_group(vDX, sX, sXD, 20480, (sXo[1], 0), sO1, H, ('x', 1), flags=opt.w_flags), o + 8, 3)
        if nxt < NQ:
            spread(sg.gaps, [lambda nxt=nxt: e.wait_vm(H[('wq', nxt)])] + [C(f, 8) for f in rdA_wq(nxt)], o + int(opt.qa_lo), o + 38)
            if nxt % 2 == 0:
                c = nxt // 2
                def bar(c=c):
                    e.wait_vm(H[('x', c)]); e.wait_lg_all(); e.barrier()
                sg.preB.setdefault(10*s + 2, []).append(bar)
                if c + 1 < 7:
                    place(sg.gaps, g.dma_group(vDX, sX, sXD, 20480*((c+1) & 1), (sXo[c+1], 0), sO1, H, ('x', c+1), flags=opt.w_flags), o + 19)
        if s + 3 < NQ:
            lo = 24 if s == 0 else 3
            place(sg.gaps, g.dma_group(vDWQ, sWQ, sWB, 4096*(s % 3), (sWo[(s+3) >> 1], 262144*((s+3) & 1)), sO2, H, ('wq', s+3), flags=opt.w_flags), o + lo)
        if s in kfirst:
            assert s % 2 == 0 or s >= 11
            place(sg.gaps, dma_n(kfirst[s]), o + 22)
        if s in kread:
            n = kread[s]
            spread(sg.gaps, [C(f, 8) for f in rdR_mark(n)], o + 2, o + 18)
            place(sg.gaps, dma_after(n, n + 4), o + 22)
    if opt.qstamp:
        for s_ in range(1, 14): sg.gaps.setdefault(40*s_ - 1, []).append(lambda s_=s_: g.stamp(f"q{s_-1}"))
    sg.emit()
    g.stamp("Qdone")
    for b in range(10):
        for tt in range(4):
            d = accQ(tt, b); g.cvt(d[0], d[0], d[1]); g.cvt(d[1], d[2], d[3])
    e.wait_lg_all(); e.barrier()
    for b in range(10):
        for tt in range(4):
            e.ds_write("ds_write_b64", vQW, accQ(tt, b).sub(0, 2), (tt >> 1)*10240 + b*1024 + (tt & 1)*512)
    for b in range(10): g.v1("v_mov_b32", vLs[b], 0)
    e.wait_lg_all(); e.barrier()
    if opt.dump == 'Q': return finish_dump(g)
    def vBf(f): return (vB0, f*1024) if f < 40 else (vB1, (f-40)*1024)

    if opt.fallback:
        e.raw(f"s_cmp_eq_u32 {sExact}, 0"); e.raw("s_cbranch_scc1 L_nosweep")
        snap = e.snapshot()
        e.wait_vm_all(); e.wait_lg_all()
        sp_, ka = S(36), V(172)
        kq = V(173)
        g.v2("v_and_b32", kq, 15, vL); g.v2("v_lshlrev_b32", kq, 9, kq)
        g.v2("v_lshrrev_b32", ka, 4, vL); g.v3("v_lshl_add_u32", ka, ka, 4, kq)
        g.s2("s_lshl_b32", S(37), sW, 14); g.v2("v_add_u32", ka, S(37), ka)
        g.s1("s_mov_b32", sp_, 0)
        e.label("L_sweep")
        fa = [V(112, 4), V(116, 4)]; fb = V(120, 4)
        for s in range(8):
            for tt in range(2):
                g.s2("s_add_u32", S(38), sp_, 8192*tt)
                e.gload("buffer_load_dwordx4", fa[tt], ka, sK, S(38), offset=64*s)
            for b in range(10):
                a_, o_ = vBf(s*10 + b)
                e.ds_read("ds_read_b128", fb, a_, o_)
                for tt in range(2):
                    e.mfma(accS(0, tt, b), fa[tt], fb, accS(0, tt, b) if s > 0 else 0)
                e.nop(4)
        for b in range(10):
            s0, s1 = accS(0, 0, b), accS(0, 1, b)
            g.v3("v_max3_f32", vM[b], vM[b], s0[0], s0[1]); g.v3("v_max3_f32", vM[b], vM[b], s0[2], s0[3])
            g.v3("v_max3_f32", vM[b], vM[b], s1[0], s1[1]); g.v3("v_max3_f32", vM[b], vM[b], s1[2], s1[3])
        e.wait_lg_all(); e.wait_vm_all()
        g.s2("s_add_u32", sp_, sp_, 65536); e.raw(f"s_cmp_lt_u32 {sp_}, 0x40000"); e.raw("s_cbranch_scc1 L_sweep")
        e.nop(8)
        e.restore(snap)
        e.label("L_nosweep")
    g.stamp("Qepi")

    sg = Seg(g)
    mstart = {}
    gstart = {}
    for n in range(16):
        p, cb = n >> 2, n & 3
        mstart[n] = sg.nm; gstart[n] = len(sg.groups)
        for sp in range(2):
            s = 2*cb + sp
            for b in range(10):
                mf = [lambda B, b=b, tt=tt, p=p, s=s, sp=sp, cb=cb: e.mfma(accS(p, tt, b), aR[cb].sub(8*sp + 4*tt, 4), B, accS(p, tt, b) if s > 0 else 0) for tt in range(2)]
                sg.add_group(mf, vBf(s*10 + b))
    for j in range(16):
        n = 16 + j; c, wp = j >> 2, j & 3
        mstart[n] = sg.nm; gstart[n] = len(sg.groups)
        for b in range(10):
            mf = [lambda B, b=b, tt=tt, j=j, n=n: e.mfma(accO(tt, b), aR[n & 3].sub(4*tt, 4), B, accO(tt, b) if j > 0 else 0) for tt in range(4)]
            sg.add_group(mf, ((vB1 if (c & 1) else vB0), (wp*10 + b)*1024))
    gp = sg.gaps
    for n in range(32):
        o = mstart[n]
        if n >= 1:
            if n + 3 < 32: spread(gp, [C(f, 8) for f in rdR_mark(n + 3)], o + 1, o + 20)
            nd = n + 7; pre = []
            if nd == 16: pre = [lambda: g.v1("v_mov_b32", vD[0], vVb)] + [lambda jj=jj: g.v2("v_add_u32", vD[jj], 3072*jj, vVb) for jj in (1, 2, 3)]
            if nd == 32: pre = [lambda: g.v1("v_mov_b32", vDW[0], vWOb)] + [lambda jj=jj: g.v2("v_add_u32", vDW[jj], 6144*jj, vWOb) for jj in (1, 2, 3)]
            if nd <= 35: place(gp, pre + dma_after(n + 3, nd), o + 22)
    def Wreg(i):
        if i < 2: return A(136 + 16*i, 16)
        if i < 7: return V(176 + 16*(i-2), 16)
        if i == 7: return A(168, 16)
        if i < 14: return A(184 + 12*(i-8), 12)
        return aR[i-14].sub(0, 12)
    def rdW(i):
        n = 32 + i; nt_ = 4 if i < 8 else 3; W = Wreg(i); fs = [lambda: e.wait_vm(H[('r', n)])]
        for tt in range(nt_):
            for hf in range(2):
                fs.append(C(lambda tt=tt, hf=hf: e.ds_read("ds_read_b64_tr_b16", W.sub(4*tt + 2*hf, 2), vTv[tt], 4096*SLOT[n] + 2048*hf), 8))
        def mark(): RSEQ[n] = e.lg_issued
        return fs + [C(mark, 0)]
    ms = mstart
    spread(gp, rdW(0), ms[29] + 1, ms[29] + 16)
    place(gp, dma_after(32, 36), ms[29] + 17, 2)
    spread(gp, rdW(1), ms[29] + 24, ms[29] + 40)
    place(gp, dma_after(33, 37), ms[30] + 1, 2)
    spread(gp, rdW(2), ms[30] + 10, ms[30] + 26)
    place(gp, dma_after(34, 38), ms[30] + 27, 2)
    spread(gp, rdW(3), ms[31] + 1, ms[31] + 14)
    place(gp, dma_after(35, 39), ms[31] + 15, 2)
    spread(gp, rdW(4), ms[31] + 22, ms[31] + 36)
    place(gp, dma_after(36, 40), ms[31] + 36, 1)
    def max_ops():
        fs = []
        for b in range(10):
            s0, s1 = accS(0, 0, b), accS(0, 1, b)
            for (x, y) in ((s0[0], s0[1]), (s0[2], s0[3]), (s1[0], s1[1]), (s1[2], s1[3])):
                fs.append(lambda b=b, x=x, y=y: g.v3("v_max3_f32", vM[b], vM[b], x, y))
        return fs
    def xreduce_ops(op, regs, lds_off):
        ta = vTmp; fs = []
        for sw in ("v_permlane32_swap_b32", "v_permlane16_swap_b32"):
            for b in range(10): fs.append(lambda b=b: g.v1("v_mov_b32", ta[b], regs[b]))
            for b in range(10):
                fs.append(lambda b=b, sw=sw: e.valu(f"{sw} {ta[b]}, {regs[b]}", dst=[ta[b], regs[b]], src=[ta[b], regs[b]], permlane=True))
            for b in range(10): fs.append(lambda b=b: g.v2(op, regs[b], ta[b], regs[b]))
        for b in range(10): fs.append(lambda b=b: e.ds_write("ds_write_b32", vSTW, regs[b], lds_off + 256*b))
        return fs
    def soft_ops(p):
        fs = []
        for b in range(10):
            z = [accS(p, tt, b)[r] for tt in range(2) for r in range(4)]
            mk = opt.soft_mask
            if 'f' in mk:
                for j in range(8): fs.append(lambda z=z, j=j, b=b: g.v3("v_fma_f32", z[j], z[j], sC, vM[b], neg_c=True))
            if 'e' in mk:
                for j in range(8): fs.append(C(lambda z=z, j=j: g.v1("v_exp_f32", z[j], z[j], trans=True), 8))
            if 'a' in mk:
                for j in range(8): fs.append(lambda z=z, j=j, b=b: g.v2("v_add_f32", vLs[b], vLs[b], z[j]))
            if 'c' in mk:
                for j in range(4): fs.append(lambda z=z, j=j: g.cvt(z[2*j], z[2*j], z[2*j+1]))
            if 'w' in mk:
                for j in range(4): fs.append(lambda z=z, j=j, b=b, p=p: g.accw(park(p, b)[j], z[2*j]))
        return fs
    def spread_steps(fs, steps, lo=0, hi=40, first_lo=None):
        l = first_lo if first_lo is not None else lo
        spread(gp, fs, mstart[steps[0]] + l, mstart[steps[-1]] + hi)
    spread(gp, max_ops() + xreduce_ops("v_max_f32", vM, 0), mstart[4] + 2, mstart[4] + 38)
    def bar_max():
        e.wait_lg_all(); e.barrier()
    gp.setdefault(mstart[4] + 39, []).append(bar_max)
    st = [V(112 + 4*b, 4) for b in range(10)]
    fs = [lambda b=b: e.ds_read("ds_read_b128", st[b], vSTR, 256*b) for b in range(10)]
    for b in range(10):
        fs.append(lambda b=b: g.v3("v_max3_f32", vM[b], st[b][0], st[b][1], st[b][2]))
        fs.append(lambda b=b: g.v2("v_max_f32", vM[b], vM[b], st[b][3]))
        fs.append(lambda b=b: g.v2("v_mul_f32", vM[b], sC, vM[b]))
    spread(gp, fs, mstart[5] + 0, mstart[5] + 14)
    spread_steps(soft_ops(0), [5, 6, 7], first_lo=14)
    spread_steps(soft_ops(1), [8, 9, 10, 11])
    spread_steps(soft_ops(2), [12, 13, 14, 15])
    spread_steps(soft_ops(3), [16, 17, 18])
    def pwrite(c): return [lambda b=b, c=c: e.ds_write("ds_write_b128", vPW, park(c, b), (c & 1)*40960 + b*1024) for b in range(10)]
    def bar():
        e.wait_lg_all(); e.barrier()
    sg.preB.setdefault(gstart[14] + 0, []).append(bar)
    spread(gp, pwrite(0), mstart[14] + 4, mstart[15] + 16)
    sg.preB.setdefault(gstart[15] + 11, []).append(bar)
    sg.preB.setdefault(gstart[16] + 1, []).append(bar)
    spread(gp, pwrite(1), mstart[16] + 10, mstart[18] + 30)
    spread(gp, xreduce_ops("v_add_f32", vLs, 4096), mstart[18] + 39, mstart[19] + 11)
    sg.preB.setdefault(gstart[19] + 2, []).append(bar)
    spread(gp, pwrite(2), mstart[20] + 4, mstart[22] + 30)
    sg.preB.setdefault(gstart[23] + 2, []).append(bar)
    spread(gp, pwrite(3), mstart[24] + 4, mstart[26] + 30)
    sg.preB.setdefault(gstart[27] + 2, []).append(bar)
    stl = [V(176 + 4*b, 4) for b in range(10)]
    fs = [lambda b=b: e.ds_read("ds_read_b128", stl[b], vSTR, 4096 + 256*b) for b in range(10)]
    for b in range(10):
        fs.append(lambda b=b: g.v2("v_add_f32", stl[b][0], stl[b][0], stl[b][1]))
        fs.append(lambda b=b: g.v2("v_add_f32", stl[b][2], stl[b][2], stl[b][3]))
        fs.append(lambda b=b: g.v2("v_add_f32", vLs[b], stl[b][0], stl[b][2]))
    if opt.fallback:
        ts = vTmp[1]
        fs.append(lambda: g.v2("v_add_f32", ts, vLs[0], vLs[1]))
        for b in range(2, 10): fs.append(lambda b=b: g.v2("v_add_f32", ts, ts, vLs[b]))
        def check():
            thr = 0.0 if opt.force_fb else 2.0**24
            g.s1("s_mov_b32", S(36), hex(f2u(thr)))
            e.valu(f"v_cmp_nge_f32 vcc, {S(36)}, {ts}", src=[S(36), ts])
            e.nop(4)
            e.raw("s_cmp_lg_u64 vcc, 0")
            e.raw(f"s_cselect_b32 s37, 1, 0")
            e.raw(f"s_andn2_b32 s37, s37, {sExact}")
            e.raw("s_cmp_lg_u32 s37, 0")
            e.raw("s_cbranch_scc1 L_fallback")
        fs.append(check)
    for b in range(10): fs.append(lambda b=b: g.v1("v_rcp_f32", vLs[b], vLs[b], trans=True))
    spread(gp, fs, mstart[20] + 0, mstart[21] + 20)
    if opt.warm_wo:
        def warm_wo():
            t_, s_ = vTmp[9], S(36)
            g.s2("s_mul_i32", s_, sBt, 224); g.s2("s_mul_i32", S(37), sW, 56); g.s2("s_add_u32", s_, s_, S(37))
            g.v2("v_add_u32", t_, s_, vL); g.v2("v_lshlrev_b32", t_, 7, t_)
            e.raw(f"buffer_load_dword {vDum}, {t_}, {sWO}, 0 offen"); e.vm_issued += 1
        gp.setdefault(mstart[int(opt.warm_at)] + 30, []).append(warm_wo)
    vOW0, vOW1 = V(17), V(31)
    otmp = V(164, 8)
    def opost(b):
        fs = []
        for u in range(2):
            tl = [accO(2*u + h2, b) for h2 in range(2)]
            if tl[0].f == 'a':
                z = [otmp[j] for j in range(8)]
                for h2 in range(2):
                    for r in range(4): fs.append(lambda h2=h2, r=r, tl=tl, z=z: g.accr(z[4*h2 + r], tl[h2][r]))
            else:
                z = [tl[h2][r] for h2 in range(2) for r in range(4)]
            for j in range(8): fs.append(lambda j=j, z=z, b=b: g.v2("v_mul_f32", z[j], z[j], vLs[b]))
            o4 = V(z[0].i, 4)
            for j in range(4): fs.append(lambda j=j, z=z, o4=o4: g.cvt(o4[j], z[2*j], z[2*j+1]))
            fs.append(C(lambda o4=o4, u=u, b=b: e.ds_write("ds_write_b128", vOW0 if b < 5 else vOW1, o4, (b % 5)*8192 + u*1024), 8))
        return fs
    def setup_ow():
        g.s2("s_lshl_b32", S(36), sW, 11); g.s2("s_add_u32", S(36), S(36), LDS_A)
        g.v2("v_lshlrev_b32", vOW0, 4, vL); g.v2("v_add_u32", vOW0, S(36), vOW0); g.v2("v_add_u32", vOW1, 40960, vOW0)
    gp.setdefault(mstart[26] + 2, []).append(C(setup_ow, 20))
    o31 = mstart[31]
    ptail = []
    for b in range(5):
        lo = o31 + 4*(b+1) + 3
        if b < 3: spread(gp, opost(b), lo, min(o31 + 40, lo + 12))
        else: ptail += opost(b)
    if opt.stamps:
        for n_, nm_ in ((4, "S0"), (8, "S1"), (12, "S2"), (16, "S3"), (20, "PV0"), (24, "PV1"), (28, "PV2")):
            gp.setdefault(mstart[n_] - 1, []).append(lambda nm_=nm_: g.stamp(nm_))
    sg.emit()
    g.stamp("PVdone")
    g.run(ptail)
    e.wait_lg_all(); e.barrier()
    if opt.dump == 'O':
        for b in range(5, 10): g.run(opost(b))
        return finish_dump(g)
    g.stamp("Opost")

    sg = Seg(g); gp = sg.gaps
    accA = lambda b, t: V(32 + 16*(b & 1) + 4*t, 4)
    accB = lambda b, t: V(80 + 12*(b & 1) + 4*t, 4)
    bst = {}
    def Bsrc(b, j): return (vB0, (b*8 + j)*1024) if b < 5 else (vB1, ((b-5)*8 + j)*1024)
    for st in range(2):
        nt_ = 4 if st == 0 else 3; acc = accA if st == 0 else accB
        order = [(b, j) for b in range(10) for j in range(8)]
        if st == 0:
            order = [(0, j) for j in range(5)] + [(1, j) for j in range(5)] + [(0, j) for j in range(5, 8)] + [(1, j) for j in range(5, 8)] + order[16:]
        for (b, j) in order:
            if (st, b) not in bst: bst[(st, b)] = sg.nm
            W = Wreg(8*st + j)
            mf = [lambda B, b=b, tt=tt, j=j, W=W, acc=acc: e.mfma(acc(b, tt), W.sub(4*tt, 4), B, acc(b, tt) if j > 0 else 0) for tt in range(nt_)]
            sg.add_group(mf, Bsrc(b, j))
    bend = {(0, 0): 13*4, (0, 1): 16*4}
    for b in range(2, 10): bend[(0, b)] = bst[(0, b)] + 32
    for b in range(10): bend[(1, b)] = bst[(1, b)] + 24
    spread(gp, rdW(5), 0, 12)
    place(gp, dma_after(37, 41), 12, 3)
    spread(gp, rdW(6), 14, 30)
    spread(gp, rdW(7), 24, 42)
    place(gp, dma_after(38, 42), 31, 3)
    place(gp, dma_after(39, 43), 43, 3)
    for i in range(8, 16):
        lo = bst[(0, i - 6)] + 2
        spread(gp, rdW(i), lo, lo + 20)
        if 32 + i + 4 < 48: place(gp, dma_after(32 + i, 32 + i + 4), lo + 21, 3)
    u1 = []
    for b in range(5, 10): u1 += opost(b)
    spread(gp, u1, 0, bst[(0, 4)] - 1)
    sg.preB.setdefault(31, []).append(bar)
    def store_e(O, ee):
        g.s1("s_mov_b32", sO3, (ee >> 2)*4096)
        e.gstore("buffer_store_dwordx4", O, vWS, sWS, sO3, offset=(ee & 3)*1024, flags=opt.st_flags)
    kk = [0]
    def pair_epi(x, y, ee):
        O = V(64 + 4*(kk[0] & 3), 4); kk[0] += 1
        return [lambda: g.cvt(O[0], x[0], x[1]), lambda: g.cvt(O[1], x[2], x[3]), lambda: g.cvt(O[2], y[0], y[1]), lambda: g.cvt(O[3], y[2], y[3]),
                VM(C(lambda: store_e(O, ee), 8))]
    def epiA(b): return pair_epi(accA(b, 0), accA(b, 1), b) + pair_epi(accA(b, 2), accA(b, 3), 10 + b)
    def epiB(b):
        fs = pair_epi(accB(b, 0), accB(b, 1), 20 + b)
        O6 = V(104 + 4*((b >> 1) & 1), 4); d = accB(b, 2)
        fs += [lambda: g.cvt(O6[2*(b & 1)], d[0], d[1]), lambda: g.cvt(O6[2*(b & 1) + 1], d[2], d[3])]
        if b & 1: fs.append(VM(C(lambda: store_e(O6, 30 + (b >> 1)), 8)))
        return fs
    for b in range(10):
        nx = bend[(0, b)]
        hi = nx + 22 if b != 0 else 64 - 1
        spread(gp, epiA(b), nx + 3, hi)
    for b in range(9):
        nx = bend[(1, b)]
        spread(gp, epiB(b), nx + 3, nx + 20)
    tail = epiB(9)
    sg.emit()
    g.stamp("outdone")
    g.run(tail)
    if opt.stamps:
        e.wait_vm_all()
        g.stamp("end")
        g.stamp_flush()
    if opt.fallback:
        e.raw("s_endpgm")
        e.label("L_fallback")
        e.raw("s_waitcnt vmcnt(0) lgkmcnt(0)")
        e.raw("s_barrier")
        e.raw(f"s_mov_b32 {sExact}, 1")
        e.raw("s_branch L_restart")
    e.label("L_k1_end")
    e.raw("s_endpgm")
    return e

def finish_dump(g):
    e = g.e
    e.wait_lg_all(); e.wait_vm_all(); e.barrier()
    t = V(240); u = V(244, 4)
    g.s2("s_mul_i32", S(38), sW, 20480)
    g.v2("v_lshlrev_b32", t, 4, vL); g.v2("v_add_u32", t, S(38), t)
    a = V(241); g.v2("v_add_u32", a, LDS_A, t)
    for i in range(20):
        e.ds_read("ds_read_b128", u, a, i*1024)
        g.s1("s_mov_b32", sO2, i*1024)
        e.gstore("buffer_store_dwordx4", u, t, sWS, sO2)
        e.wait_vm_all()
    e.label("L_fallback")
    e.label("L_k1_end")
    e.raw("s_endpgm")
    return e

import gen1
def assemble(path):
    k1 = build_k1()
    gen1.opt.k2_flags = opt.k2_flags; gen1.opt.stamps = opt.stamps
    k2 = gen1.build_k2()
    hdr = open("cdna_kernels/" + NAME + ".s.ref").read().split("; Override launch")[0]
    out = hdr
    out += f"; @launch kernel=mha_k1_kernel grid=(256,1,1) block=(256,1,1) lds={LDS_TOTAL}\n"
    out += f"; @launch kernel=mha_k2_kernel grid=(560,1,1) block=(256,1,1) lds=0\n"
    out += '.amdgcn_target "amdgcn-amd-amdhsa--gfx950"\n.text\n'
    for nm, k in (("mha_k1_kernel", k1), ("mha_k2_kernel", k2)):
        out += f".globl {nm}\n.p2align 8\n.type {nm},@function\n{nm}:\n" + k.text()
    out += '.section .rodata,"a"\n.p2align 6\n' + gen1.KD.format(name="mha_k1_kernel", vgpr=512, acc=256)
    out += '.p2align 6\n' + gen1.KD.format(name="mha_k2_kernel", vgpr=96, acc=96)
    open(path, "w").write(out)
    if opt.stamps: print("STAMPS", ",".join(STAMPS))
    print("k1 stats", k1.stats, file=sys.stderr)

if __name__ == "__main__":
    path = sys.argv[1]
    for a in sys.argv[2:]:
        k, v = a.split("=")
        if v in ("True", "False"): v = (v == "True")
        elif v == "None": v = None
        setattr(opt, k, v)
    assemble(path)
```

```python
import sys, math, struct
from emit import *

NAME = "concat_heads__mha_block_cached__mha_block_cached__near_ridge"
LDS_M = 0; LDS_A = 16384; LDS_B = 98304; XS = 49152
LDS_TOTAL = 163840
PART_UNIT = 143360
PART_WAVE = 35840

class Opt:
    nt_kv = True
    st_flags = "sc1"
    k2_flags = ""
    dump = None
    stamps = False
    warm = False
    fallback = True
    force_fb = False
    pstamp = False
    only = None
    skip_dma = ''
    soft_mask = 'feacw'
    wait_batch = 2
    level = 8
    fused = True
    red_flags = 'sc1'
    spin = 20000
    sig0_blk = 6
    sleep = 4
    code_pf = True
    pf_lines = 4
    vm_gap = 4
    qstamp = False
    rot = True
    w_flags = ''
    wo_flags = ''
    warm_wo = False
    warm_at = 21
    kread = '{10:0,11:1,12:2,13:3}'
    kfirst = '{2:0,4:1,6:2,8:3}'
    qa_lo = 20
opt = Opt()
STAMPS = []
def f2u(x): return struct.unpack("<I", struct.pack("<f", x))[0]

sX, sK, sV, sWQ, sWO, sWS = S(4,4), S(8,4), S(12,4), S(16,4), S(20,4), S(24,4)
sW, sRB, sWB, sXD, sO1, sO2, sC, sExact = S(28), S(29), S(30), S(31), S(32), S(33), S(34), S(35)
sH, sBt, sBr = S(60), S(61), S(62)
sO3 = S(57)
sDBG = S(96, 4)
sCnt = S(100)
sT0 = S(78, 2)
sTok = S(92, 2)
sXo = [S(64+c) for c in range(7)]
sWo = [S(71+c) for c in range(7)]

vL = V(1)
vB0, vB1, vK0, vK1 = V(2), V(3), V(4), V(5)
vTv = [V(6+i) for i in range(4)]
vD  = [V(10+i) for i in range(4)]
vVb, vWOb, vPW, vSTW, vSTR, vWS = V(14), V(15), V(16), V(18), V(19), V(20)
vM  = [V(21+i) for i in range(10)]
vDum = V(0)
vX0, vX1 = V(152), V(153)
vTq  = [V(154+i) for i in range(4)]
vDX  = [V(158+i) for i in range(5)]
vDWQ = [V(163+i) for i in range(4)]
vQW  = V(167)
vLs = [V(152+i) for i in range(10)]
vDW = [V(172+i) for i in range(4)]
vTmp = [V(162+i) for i in range(10)]
NB = 8
aB = [A(4*i, 4) for i in range(NB)]
aR = [A(32 + 16*i, 16) for i in range(4)]
aWQ = [[A(96 + 16*s + 4*t, 4) for t in range(4)] for s in range(2)]
def park(p, b): return A(96 + 40*p + 4*b, 4)

def accQ(t, b):
    i = b*4 + t
    return V(32 + 4*i, 4) if i < 30 else V(176 + 4*(i-30), 4)
def accS(p, t, b): return V((32 if p % 2 == 0 else 176) + 8*b + 4*t, 4)
def accO(t, b):
    i = b*4 + t
    return V(32 + 4*i, 4) if i < 30 else A(96 + 4*(i-30), 4)
def accP0(t, b): return A(96 + 4*(b*4+t), 4)
def accP1(t, b): return V(32 + 4*(b*3+t), 4)

class G:
    def __init__(self):
        self.e = Emit(); self.nst = 0
    def v2(self, op, d, a, b):
        self.e.valu(f"{op} {d}, {a}, {b}", dst=[d], src=[x for x in (a, b) if isinstance(x, R)])
    def v1(self, op, d, a, trans=False):
        self.e.valu(f"{op} {d}, {a}", dst=[d], src=[a] if isinstance(a, R) else [], trans=trans)
    def v3(self, op, d, a, b, c, neg_c=False):
        cc = f"-{c}" if neg_c else f"{c}"
        self.e.valu(f"{op} {d}, {a}, {b}, {cc}", dst=[d], src=[x for x in (a, b, c) if isinstance(x, R)])
    def cvt(self, d, a, b):
        self.e.valu(f"v_cvt_pk_bf16_f32 {d}, {a}, {b}", dst=[d], src=[a, b])
    def accw(self, d, a):
        self.e.valu(f"v_accvgpr_write_b32 {d}, {a}", dst=[d], src=[a])
    def accr(self, d, a):
        self.e.valu(f"v_accvgpr_read_b32 {d}, {a}", dst=[d], src=[a])
    def s2(self, op, d, a, b):
        self.e.salu(f"{op} {d}, {a}, {b}", reads=[x for x in (a, b) if isinstance(x, R)])
    def s1(self, op, d, a):
        self.e.salu(f"{op} {d}, {a}", reads=[a] if isinstance(a, R) else [])
    def m0(self, sbase, imm):
        self.e.salu(f"s_add_u32 m0, {sbase}, {imm}", w_m0=True, reads=[sbase])
    m0state = None
    sstate = None
    def ensure(self, sbase, ldsoff, sreg, soff_imm):
        if self.sstate is None: self.sstate = {}
        if self.m0state != (str(sbase), ldsoff):
            self.m0(sbase, ldsoff); self.m0state = (str(sbase), ldsoff)
        key = (str(soff_imm[0]), soff_imm[1]) if isinstance(soff_imm, tuple) else soff_imm
        if self.sstate.get(str(sreg)) != key:
            if isinstance(soff_imm, tuple): self.s2("s_add_u32", sreg, soff_imm[0], soff_imm[1])
            else: self.s1("s_mov_b32", sreg, soff_imm)
            self.sstate[str(sreg)] = key
    def forget(self):
        self.m0state = None; self.sstate = {}
    def dma_group(self, voffs, srd, sbase, ldsoff, soff_imm, sreg, holder, key, flags=""):
        e = self.e; fs = []
        for i in range(len(voffs)):
            def f(i=i):
                kind = key[0] if key[0] != 'r' else ('k' if key[1] < 16 else ('v' if key[1] < 32 else 'o'))
                if kind in opt.skip_dma or (kind == 'wq' and 'q' in opt.skip_dma): holder[key] = e.vm_issued; return
                self.ensure(sbase, ldsoff + (4096 if i == 4 else 0), sreg, soff_imm)
                holder[key] = e.dma(voffs[i], srd, sreg, offset=(1024*i if i < 4 else 0), flags=flags)
            f.vm = True
            fs.append(C(f, 12 if i == 0 else 4))
        return fs
    def run(self, fs):
        for f in fs: f()
    def stamp(self, name):
        if not opt.stamps: return
        if opt.only and name not in opt.only.split(","): return
        i = self.nst; self.nst += 1; STAMPS.append(name)
        assert i < 12
        self.e.raw("s_memtime s[94:95]"); self.e.raw("s_waitcnt lgkmcnt(0)"); self.e.raw(f"s_mov_b32 s{80+i}, s94")
        self.e.lg_done = self.e.lg_issued
    def stamp_flush(self):
        e = self.e
        e.raw("s_memrealtime s[94:95]"); e.raw("s_waitcnt lgkmcnt(0)")
        e.raw("s_load_dwordx2 s[36:37], s[0:1], 96"); e.raw("s_waitcnt lgkmcnt(0)")
        e.salu("s_add_u32 s36, s36, 0x4000000"); e.salu("s_addc_u32 s37, s37, 0")
        e.salu("s_mov_b32 s38, 0x100000"); e.salu("s_mov_b32 s39, 0x00020000")
        e.salu("s_lshl_b32 s40, s2, 8"); e.salu(f"s_lshl_b32 s41, {sW}, 6"); e.salu("s_add_u32 s40, s40, s41")
        z = V(170); d = V(171)
        self.v1("v_mov_b32", z, 0)
        for i, src in [(i, S(80+i)) for i in range(self.nst)] + [(15, S(94)), (14, S(78))]:
            self.v1("v_mov_b32", d, src); e.salu(f"s_add_u32 s41, s40, {4*i}")
            e.gstore("buffer_store_dword", d, z, S(36, 4), S(41))

def cost_of(f): return getattr(f, "cost", 4)
def C(f, c):
    f.cost = c; return f

def VM(f):
    f.vm = True; return f

class Gaps:
    def __init__(self):
        self.streams = []; self.fixed = {}
    def setdefault(self, k, d): return self.fixed.setdefault(k, d)

def spread(gaps, fs, start, end):
    if not fs: return
    assert end > start, (start, end)
    gaps.streams.append(dict(ops=list(fs), lo=start, hi=end))

def place(gaps, fs, start, step=None):
    if step is None: step = int(opt.vm_gap)
    pos = start
    for f in fs:
        gaps.setdefault(pos, []).append(f)
        if getattr(f, "vm", False): pos += step

def schedule(N, F, streams, base=8.0):
    out = {}
    for s_ in streams:
        s_["k"] = 0; s_["rem"] = sum(cost_of(f) for f in s_["ops"]); s_["hi"] = min(s_["hi"], N)
    pf = [0]*(N+1)
    for i in range(N): pf[i+1] = pf[i] + F[i]
    carry = 0.0
    last_vm = -100
    VMG = int(opt.vm_gap)
    for i in range(N):
        act = [s_ for s_ in streams if s_["k"] < len(s_["ops"])]
        if not act: break
        L = base
        his = sorted(set(s_["hi"] for s_ in act if s_["hi"] > i))
        for h in his:
            need = pf[h] - pf[i] + sum(s_["rem"] for s_ in act if s_["hi"] <= h and s_["lo"] < h)
            lo = max(i, min(s_["lo"] for s_ in act if s_["hi"] <= h))
            need2 = pf[h] - pf[lo] + sum(s_["rem"] for s_ in act if s_["hi"] <= h)
            if lo <= i: L = max(L, need2 / (h - lo))
        budget = L - F[i] + carry
        placed = 0
        while True:
            cand = [s_ for s_ in streams if s_["k"] < len(s_["ops"]) and s_["lo"] <= i]
            def blocked(x):
                f_ = x["ops"][x["k"]]
                if not getattr(f_, "vm", False) or i - last_vm >= VMG: return False
                nv = sum(1 for q in x["ops"][x["k"]:] if getattr(q, "vm", False))
                return (x["hi"] - i) > nv
            cand = [x for x in cand if not blocked(x)]
            if not cand: break
            cand.sort(key=lambda s_: (s_["hi"] - s_["rem"] / max(L - 2.0, 1.0), s_["hi"]))
            s_ = cand[0]
            f = s_["ops"][s_["k"]]; c = cost_of(f)
            forced = any(x["hi"] - 1 <= i for x in cand)
            if forced:
                s_ = [x for x in cand if x["hi"] - 1 <= i][0]; f = s_["ops"][s_["k"]]; c = cost_of(f)
            elif budget - placed < c - 1.99: break
            out.setdefault(i, []).append(f); s_["k"] += 1; s_["rem"] -= c; placed += c
            if getattr(f, "vm", False): last_vm = i
        carry = max(-6.0, min(2.0, budget - placed))
    for s_ in streams: assert s_["k"] == len(s_["ops"]), (s_["lo"], s_["hi"], s_["k"], len(s_["ops"]))
    return out

class Seg:
    def __init__(self, g):
        self.g = g; self.groups = []
        self.gaps = Gaps()
        self.preB = {}
        self.nm = 0; self.gstart = []
    def add_group(self, mf, bsrc):
        self.gstart.append(self.nm); self.groups.append((mf, bsrc)); self.nm += len(mf)
    def emit(self, wait_batch=None):
        if wait_batch is None: wait_batch = int(opt.wait_batch)
        e = self.g.e; seq = {}
        n = len(self.groups); N = self.nm
        F = [0]*N
        for G in range(n):
            last = self.gstart[G] + len(self.groups[G][0]) - 1
            if G + NB < n: F[last] += 8
            if G % wait_batch == 0 and G > 0: F[self.gstart[G] - 1] += 4
        for k_, v_ in self.gaps.fixed.items(): F[k_] += sum(cost_of(f) for f in v_)
        sched = schedule(N, F, self.gaps.streams, base=float(opt.level))
        def rd(G):
            a, o = self.groups[G][1]
            seq[G] = e.ds_read("ds_read_b128", aB[G % NB], a, o)
        for G in range(min(NB, n)): rd(G)
        idx = 0
        for G, (mf, _) in enumerate(self.groups):
            if G % wait_batch == 0:
                last = min(n-1, G + wait_batch - 1)
                while last not in seq: last -= 1
                e.wait_lg(seq[last])
            for m in mf:
                m(aB[G % NB])
                for f in sched.get(idx, []): f()
                for f in self.gaps.fixed.get(idx, []): f()
                idx += 1
            for f in self.preB.get(G, []): f()
            if G + NB < n: rd(G + NB)

def build_k1():
    g = G(); e = g.e
    kvflag = "nt" if opt.nt_kv else ""
    H = {}
    e.raw("s_cmp_ge_u32 s2, 256"); e.raw("s_cbranch_scc1 L_k1_end")
    if opt.code_pf:
        nl = int(opt.pf_lines)
        e.raw("s_getpc_b64 s[36:37]")
        e.label("L_pc")
        e.raw("v_lshrrev_b32 v2, 6, v0")
        e.raw("s_lshr_b32 s38, s2, 3"); e.raw("s_lshl_b32 s38, s38, 2")
        e.raw("v_add_u32 v2, s38, v2")
        e.raw(f"v_and_b32 v3, {nl-1}, v0")
        e.raw(f"v_mad_u32_u24 v2, v2, {nl}, v3")
        e.raw("v_lshlrev_b32 v2, 7, v2")
        e.raw("s_mov_b32 s38, L_k1_end-L_pc-4")
        e.raw("v_min_u32 v2, s38, v2")
        e.raw("v_and_b32 v2, -4, v2")
        e.raw("global_load_dword v31, v2, s[36:37]")
        e.vm_issued += 1
    if opt.stamps:
        e.raw("s_memrealtime s[78:79]"); e.raw("s_waitcnt lgkmcnt(0)")
    g.stamp("start")
    e.raw("s_load_dwordx16 s[36:51], s[0:1], 0")
    e.raw("s_load_dwordx4 s[52:55], s[0:1], 64")
    e.raw("s_load_dwordx2 s[56:57], s[0:1], 96")
    if opt.fused and not opt.stamps: e.raw("s_memrealtime s[78:79]")
    g.s2("s_and_b32", S(58), S(2), 7); g.s2("s_lshr_b32", S(59), S(2), 3)
    g.s2("s_and_b32", sH, S(58), 3); g.s2("s_lshl_b32", sH, sH, 2)
    g.s2("s_and_b32", sBt, S(59), 3); g.s2("s_add_u32", sH, sH, sBt)
    g.s2("s_lshr_b32", sBt, S(59), 2); g.s2("s_lshr_b32", sBr, S(58), 2)
    if opt.rot:
        g.s2("s_and_b32", S(58), sH, 3); g.s2("s_lshl_b32", S(58), S(58), 1); g.s2("s_add_u32", S(58), S(58), sBt)
        e.raw("s_cmp_ge_u32 s58, 7"); e.raw("s_cselect_b32 s59, 7, 0"); g.s2("s_sub_u32", S(58), S(58), S(59))
    else:
        g.s1("s_mov_b32", S(58), 0)
    for c in range(7):
        g.s2("s_add_u32", S(59), S(58), c)
        e.raw("s_cmp_ge_u32 s59, 7"); e.raw("s_cselect_b32 s63, 7, 0"); g.s2("s_sub_u32", S(59), S(59), S(63))
        g.s2("s_lshl_b32", sXo[c], S(59), 7); g.s2("s_lshl_b32", sWo[c], S(59), 19)
    g.v2("v_lshrrev_b32", V(32), 6, V(0))
    e.readfirstlane(sW, V(32))
    g.s1("s_mov_b32", sExact, 0)
    g.s2("s_lshl_b32", sRB, sW, 14); g.s2("s_add_u32", sRB, sRB, LDS_B)
    g.s2("s_mul_i32", sWB, sW, 12288)
    g.s2("s_mul_i32", sXD, sW, 5120); g.s2("s_add_u32", sXD, sXD, XS)
    g.s1("s_mov_b32", sC, hex(f2u(math.log2(math.e) / 16.0)))
    g.v2("v_and_b32", vL, 63, V(0))
    P = [V(32+i) for i in range(16)]
    q16, gg, r4, c4, prow, pg, t, u, w_v = P[0], P[1], P[2], P[3], P[4], P[5], P[6], P[7], P[8]
    def lanefields():
        g.v2("v_and_b32", q16, 15, vL); g.v2("v_lshrrev_b32", gg, 4, vL)
        g.v3("v_bfe_u32", r4, vL, 2, 2); g.v2("v_and_b32", c4, 3, vL)
        g.v2("v_lshrrev_b32", prow, 3, vL); g.v2("v_and_b32", pg, 7, vL)
        g.v1("v_mov_b32", w_v, sW)
    s896 = S(63)
    def xwq_offsets():
        g.s1("s_mov_b32", s896, 896)
        for i in range(5):
            g.v3("v_mad_u32_u24", t, w_v, 5, i)
            g.v2("v_and_b32", u, 1, t); g.v3("v_lshl_add_u32", u, u, 2, gg)
            g.v2("v_xor_b32", u, u, pg); g.v2("v_lshlrev_b32", u, 4, u)
            g.v3("v_lshl_add_u32", t, t, 3, prow)
            g.v3("v_mad_u32_u24", vDX[i], t, s896, u)
            if 0 < i < 4: g.v2("v_subrev_u32", vDX[i], 1024*i, vDX[i])
        for par in range(2):
            g.v3("v_bfe_u32", u, prow, 1, 1)
            if par: g.v2("v_or_b32", u, 2, u)
            g.v2("v_lshlrev_b32", u, 1, u); g.v2("v_xor_b32", u, u, pg); g.v2("v_lshlrev_b32", u, 4, u)
            g.v3("v_lshl_add_u32", u, w_v, 7, u)
            g.v2("v_lshlrev_b32", t, 13, prow); g.v2("v_add_u32", vDWQ[par], t, u)
        for jj in (2, 3): g.v2("v_add_u32", vDWQ[jj], 64512*jj, vDWQ[jj & 1])
        g.v2("v_add_u32", vDWQ[1], 64512, vDWQ[1])
    lanefields(); xwq_offsets()
    e.raw("s_waitcnt lgkmcnt(0)")
    if opt.pstamp: g.stamp("karg")
    e.raw(f"s_cmp_eq_u32 {sBr}, 0")
    for (pa, pb) in [(36,46),(38,48),(40,50),(42,52),(44,54)]:
        e.raw(f"s_cselect_b32 s{pa}, s{pa}, s{pb}"); e.raw(f"s_cselect_b32 s{pa+1}, s{pa+1}, s{pb+1}")
    def srd(dst, plo, off_sreg, nrec):
        g.s2("s_add_u32", dst[0], S(plo), off_sreg); e.salu(f"s_addc_u32 {dst[1]}, s{plo+1}, 0")
        g.s1("s_mov_b32", dst[2], nrec); g.s1("s_mov_b32", dst[3], "0x00020000")
    t0, t1 = S(58), S(59)
    g.s2("s_mul_i32", t0, sBt, 143360); srd(sX, 36, t0, 143360)
    g.s2("s_lshl_b32", t1, sH, 9); g.s2("s_sub_u32", t0, 3670016, t1); srd(sWQ, 42, t1, t0)
    g.s2("s_lshl_b32", t0, sBt, 4); g.s2("s_add_u32", t0, t0, sH)
    g.s2("s_lshl_b32", t1, t0, 18); srd(sK, 38, t1, 262144); srd(sV, 40, t1, 262144)
    g.s2("s_lshl_b32", t1, sBr, 7); g.s2("s_add_u32", t0, t0, t1)
    g.s2("s_mul_i32", t1, t0, PART_UNIT); srd(sWS, 56, t1, PART_UNIT)
    g.s2("s_mul_i32", t1, sH, 229376); srd(sWO, 44, t1, 229376)
    if opt.fused:
        g.s2("s_add_u32", sDBG[0], S(56), "0x3000000"); e.salu(f"s_addc_u32 {sDBG[1]}, s57, 0")
        g.s1("s_mov_b32", sDBG[2], 131072); g.s1("s_mov_b32", sDBG[3], "0x00020000")
        g.s2("s_lshl_b32", t1, sBr, 3); g.s2("s_add_u32", t1, t1, sBt); g.s2("s_lshl_b32", sCnt, t1, 13)
    e.raw("s_branch L_first")
    e.label("L_restart")
    lanefields(); xwq_offsets()
    e.label("L_first")
    g.forget()
    g.run(g.dma_group(vDX, sX, sXD, 0, (sXo[0], 0), sO1, H, ('x', 0), flags=opt.w_flags))
    if opt.pstamp: g.stamp("x0")
    g.run(g.dma_group(vDWQ, sWQ, sWB, 0, (sWo[0], 0), sO2, H, ('wq', 0), flags=opt.w_flags))
    if opt.pstamp: g.stamp("wq0")
    if opt.warm:
        g.s2("s_mul_i32", t0, sBt, 56); g.s2("s_mul_i32", t1, sW, 14); g.s2("s_add_u32", t0, t0, t1)
        g.v2("v_lshrrev_b32", t, 2, vL); g.v2("v_add_u32", t, t0, t); g.v2("v_lshlrev_b32", t, 13, t)
        g.v3("v_lshl_add_u32", t, c4, 7, t)
        e.raw(f"buffer_load_dword {vDum}, {t}, {sWQ}, 0 offen"); e.vm_issued += 1
        g.s2("s_and_b32", t0, sH, 3); g.s2("s_mul_i32", t0, t0, 280); g.s2("s_mul_i32", t1, sW, 70); g.s2("s_add_u32", t0, t0, t1)
        g.v2("v_add_u32", u, t0, vL); g.v2("v_lshlrev_b32", u, 7, u)
        e.raw(f"buffer_load_dword {vDum}, {u}, {sX}, 0 offen"); e.vm_issued += 1
    if opt.pstamp: g.stamp("warm")
    g.run(g.dma_group(vDWQ, sWQ, sWB, 4096, (sWo[0], 262144), sO2, H, ('wq', 1), flags=opt.w_flags))
    if opt.pstamp: g.stamp("wq12")
    for par in range(2):
        g.v2("v_add_u32", u, 4*par, gg); g.v2("v_xor_b32", u, u, pg); g.v2("v_lshlrev_b32", u, 4, u)
        g.v3("v_lshl_add_u32", t, w_v, 5, prow); g.v2("v_lshlrev_b32", t, 9, t)
        g.v2("v_add_u32", vD[par], t, u)
    for jj in (2, 3): g.v2("v_add_u32", vD[jj], 3072*jj, vD[jj & 1])
    g.v2("v_add_u32", vD[1], 3072, vD[1])
    SLOT = {n: n & 3 for n in range(22)}
    SLOT.update({n: n & 3 for n in range(22, 48)})
    def dma_n(n):
        if n < 16:   return g.dma_group(vD, sK, sRB, 4096*SLOT[n], 65536*(n >> 2) + 128*(n & 3), sO1, H, ('r', n), flags=kvflag)
        if n < 32:   return g.dma_group(vD, sV, sRB, 4096*SLOT[n], 16384*(n-16), sO1, H, ('r', n), flags=kvflag)
        i = n - 32
        return g.dma_group(vDW, sWO, sRB, 4096*SLOT[n], 28672*(i % 8) + 128*(i // 8), sO2, H, ('r', n), flags=opt.wo_flags)
    def switchD(base):
        return [lambda jj=jj: (g.v1("v_mov_b32", vD[0], base) if jj == 0 else g.v2("v_add_u32", vD[jj], base[1]*jj, base[0])) for jj in range(4)]
    gv = P[9]
    g.v3("v_bfe_u32", u, prow, 1, 2); g.v2("v_lshlrev_b32", u, 1, u); g.v2("v_xor_b32", u, u, pg); g.v2("v_lshlrev_b32", gv, 4, u)
    g.v2("v_lshlrev_b32", u, 9, prow); g.v2("v_add_u32", u, u, gv); g.v3("v_lshl_add_u32", vVb, w_v, 7, u)
    s224 = S(58); g.s1("s_mov_b32", s224, 224)
    g.v3("v_mad_u32_u24", u, prow, s896, gv); g.v3("v_mad_u32_u24", vWOb, w_v, s224, u)
    g.v2("v_lshlrev_b32", t, 4, vL); g.v2("v_add_u32", vB0, LDS_A, t); g.v2("v_add_u32", vB1, LDS_A + 40960, t)
    g.v2("v_lshrrev_b32", u, 1, q16)
    for sp, (vx, vk) in enumerate([(vX0, vK0), (vX1, vK1)]):
        g.v2("v_add_u32", t, 4*sp, gg); g.v2("v_xor_b32", t, t, u); g.v2("v_lshlrev_b32", t, 4, t)
        g.v3("v_lshl_add_u32", t, q16, 7, t)
        g.v2("v_add_u32", vx, XS, t); g.v2("v_add_u32", vk, sRB, t)
    phq, phv, base = P[10], P[11], P[12]
    g.v2("v_lshrrev_b32", u, 1, r4)
    g.v2("v_and_b32", t, 1, gg); g.v3("v_lshl_or_b32", phq, t, 1, u)
    g.v3("v_lshl_add_u32", phv, gg, 1, u); g.v2("v_and_b32", phv, 3, phv)
    g.v3("v_lshl_add_u32", base, gg, 3, r4); g.v2("v_lshlrev_b32", base, 7, base); g.v3("v_lshl_add_u32", base, c4, 3, base)
    g.v2("v_add_u32", base, sWB, base)
    for tt in range(4):
        g.v2("v_xor_b32", t, tt, phq); g.v3("v_lshl_add_u32", vTq[tt], t, 5, base)
    g.v3("v_lshl_add_u32", base, gg, 2, r4); g.v2("v_lshlrev_b32", base, 7, base); g.v3("v_lshl_add_u32", base, c4, 3, base)
    g.v2("v_add_u32", base, sRB, base)
    for tt in range(4):
        g.v2("v_xor_b32", t, tt, phv); g.v3("v_lshl_add_u32", vTv[tt], t, 5, base)
    sA = S(59); g.s2("s_mul_i32", sA, sW, 20480); g.s2("s_add_u32", sA, sA, LDS_A)
    g.v2("v_lshrrev_b32", t, 1, gg); g.v2("v_lshlrev_b32", t, 8, t); g.v3("v_lshl_add_u32", t, q16, 4, t)
    g.v2("v_and_b32", u, 1, gg); g.v3("v_lshl_add_u32", t, u, 3, t); g.v2("v_add_u32", vQW, sA, t)
    g.v2("v_lshlrev_b32", t, 4, vL)
    g.s2("s_mul_i32", sA, sW, 10240); g.s2("s_add_u32", sA, sA, LDS_A); g.v2("v_add_u32", vPW, sA, t)
    g.s2("s_mul_i32", sA, sW, PART_WAVE); g.v2("v_add_u32", vWS, sA, t)
    g.v2("v_lshlrev_b32", vSTR, 4, q16); g.s2("s_lshl_b32", sA, sW, 2); g.v2("v_add_u32", vSTW, sA, vSTR)
    for b in range(10): g.v1("v_mov_b32", vM[b], "0xff800000")

    def rdR(n):
        slot = n & 3; ls = SLOT[n]; fs = []
        if n < 16:
            for sp in range(2):
                for tt in range(2):
                    fs.append(lambda sp=sp, tt=tt: e.ds_read("ds_read_b128", aR[slot].sub(8*sp + 4*tt, 4), (vK0, vK1)[sp], 4096*ls + 2048*tt))
        else:
            for tt in range(4):
                for hf in range(2):
                    fs.append(lambda tt=tt, hf=hf: e.ds_read("ds_read_b64_tr_b16", aR[slot].sub(4*tt + 2*hf, 2), vTv[tt], 4096*ls + 2048*hf))
        return [lambda: e.wait_vm(H[('r', n)])] + fs
    RSEQ = {}
    def rdR_mark(n):
        fs = rdR(n)
        def mark(): RSEQ[n] = e.lg_issued
        return fs + [mark]
    def dma_after(n_read, n_dma):
        return [lambda: e.wait_lg(RSEQ[n_read])] + dma_n(n_dma)

    g.stamp("prolog")
    def rdA_wq(s):
        fs = []
        for tt in range(4):
            for hf in range(2):
                fs.append(lambda tt=tt, hf=hf: e.ds_read("ds_read_b64_tr_b16", aWQ[s & 1][tt].sub(2*hf, 2), vTq[tt], 4096*(s % 3) + 512*hf))
        return fs
    e.wait_vm(H[('wq', 0)])
    e.barrier()
    g.stamp("firstdata")
    g.run(rdA_wq(0))
    sg = Seg(g)
    NQ = 14
    for s in range(NQ):
        for b in range(10):
            mf = [lambda B, b=b, tt=tt, s=s: e.mfma(accQ(tt, b), aWQ[s & 1][tt], B, accQ(tt, b) if s > 0 else 0) for tt in range(4)]
            sg.add_group(mf, ((vX0, vX1)[s & 1], 20480*((s >> 1) & 1) + 2048*b))
    kread = eval(str(opt.kread))
    kfirst = eval(str(opt.kfirst))
    for s in range(NQ):
        o = 40*s; nxt = s + 1
        if s == 0:
            place(sg.gaps, g.dma_group(vDWQ, sWQ, sWB, 4096*2, (sWo[1], 0), sO2, H, ('wq', 2), flags=opt.w_flags), o + 0, 2)
            place(sg.gaps, g.dma_group(vDX, sX, sXD, 20480, (sXo[1], 0), sO1, H, ('x', 1), flags=opt.w_flags), o + 8, 3)
        if nxt < NQ:
            spread(sg.gaps, [lambda nxt=nxt: e.wait_vm(H[('wq', nxt)])] + [C(f, 8) for f in rdA_wq(nxt)], o + int(opt.qa_lo), o + 38)
            if nxt % 2 == 0:
                c = nxt // 2
                def bar(c=c):
                    e.wait_vm(H[('x', c)]); e.wait_lg_all(); e.barrier()
                sg.preB.setdefault(10*s + 2, []).append(bar)
                if c + 1 < 7:
                    place(sg.gaps, g.dma_group(vDX, sX, sXD, 20480*((c+1) & 1), (sXo[c+1], 0), sO1, H, ('x', c+1), flags=opt.w_flags), o + 19)
        if s + 3 < NQ:
            lo = 24 if s == 0 else 3
            place(sg.gaps, g.dma_group(vDWQ, sWQ, sWB, 4096*(s % 3), (sWo[(s+3) >> 1], 262144*((s+3) & 1)), sO2, H, ('wq', s+3), flags=opt.w_flags), o + lo)
        if s in kfirst:
            assert s % 2 == 0 or s >= 11
            place(sg.gaps, dma_n(kfirst[s]), o + 22)
        if s in kread:
            n = kread[s]
            spread(sg.gaps, [C(f, 8) for f in rdR_mark(n)], o + 2, o + 18)
            place(sg.gaps, dma_after(n, n + 4), o + 22)
    if opt.qstamp:
        for s_ in range(1, 14): sg.gaps.setdefault(40*s_ - 1, []).append(lambda s_=s_: g.stamp(f"q{s_-1}"))
    sg.emit()
    g.stamp("Qdone")
    for b in range(10):
        for tt in range(4):
            d = accQ(tt, b); g.cvt(d[0], d[0], d[1]); g.cvt(d[1], d[2], d[3])
    e.wait_lg_all(); e.barrier()
    for b in range(10):
        for tt in range(4):
            e.ds_write("ds_write_b64", vQW, accQ(tt, b).sub(0, 2), (tt >> 1)*10240 + b*1024 + (tt & 1)*512)
    for b in range(10): g.v1("v_mov_b32", vLs[b], 0)
    e.wait_lg_all(); e.barrier()
    if opt.dump == 'Q': return finish_dump(g)
    def vBf(f): return (vB0, f*1024) if f < 40 else (vB1, (f-40)*1024)

    if opt.fallback:
        e.raw(f"s_cmp_eq_u32 {sExact}, 0"); e.raw("s_cbranch_scc1 L_nosweep")
        snap = e.snapshot()
        e.wait_vm_all(); e.wait_lg_all()
        sp_, ka = S(36), V(172)
        kq = V(173)
        g.v2("v_and_b32", kq, 15, vL); g.v2("v_lshlrev_b32", kq, 9, kq)
        g.v2("v_lshrrev_b32", ka, 4, vL); g.v3("v_lshl_add_u32", ka, ka, 4, kq)
        g.s2("s_lshl_b32", S(37), sW, 14); g.v2("v_add_u32", ka, S(37), ka)
        g.s1("s_mov_b32", sp_, 0)
        e.label("L_sweep")
        fa = [V(112, 4), V(116, 4)]; fb = V(120, 4)
        for s in range(8):
            for tt in range(2):
                g.s2("s_add_u32", S(38), sp_, 8192*tt)
                e.gload("buffer_load_dwordx4", fa[tt], ka, sK, S(38), offset=64*s)
            for b in range(10):
                a_, o_ = vBf(s*10 + b)
                e.ds_read("ds_read_b128", fb, a_, o_)
                for tt in range(2):
                    e.mfma(accS(0, tt, b), fa[tt], fb, accS(0, tt, b) if s > 0 else 0)
                e.nop(4)
        for b in range(10):
            s0, s1 = accS(0, 0, b), accS(0, 1, b)
            g.v3("v_max3_f32", vM[b], vM[b], s0[0], s0[1]); g.v3("v_max3_f32", vM[b], vM[b], s0[2], s0[3])
            g.v3("v_max3_f32", vM[b], vM[b], s1[0], s1[1]); g.v3("v_max3_f32", vM[b], vM[b], s1[2], s1[3])
        e.wait_lg_all(); e.wait_vm_all()
        g.s2("s_add_u32", sp_, sp_, 65536); e.raw(f"s_cmp_lt_u32 {sp_}, 0x40000"); e.raw("s_cbranch_scc1 L_sweep")
        e.nop(8)
        e.restore(snap)
        e.label("L_nosweep")
    g.stamp("Qepi")

    sg = Seg(g)
    mstart = {}
    gstart = {}
    for n in range(16):
        p, cb = n >> 2, n & 3
        mstart[n] = sg.nm; gstart[n] = len(sg.groups)
        for sp in range(2):
            s = 2*cb + sp
            for b in range(10):
                mf = [lambda B, b=b, tt=tt, p=p, s=s, sp=sp, cb=cb: e.mfma(accS(p, tt, b), aR[cb].sub(8*sp + 4*tt, 4), B, accS(p, tt, b) if s > 0 else 0) for tt in range(2)]
                sg.add_group(mf, vBf(s*10 + b))
    for j in range(16):
        n = 16 + j; c, wp = j >> 2, j & 3
        mstart[n] = sg.nm; gstart[n] = len(sg.groups)
        for b in range(10):
            mf = [lambda B, b=b, tt=tt, j=j, n=n: e.mfma(accO(tt, b), aR[n & 3].sub(4*tt, 4), B, accO(tt, b) if j > 0 else 0) for tt in range(4)]
            sg.add_group(mf, ((vB1 if (c & 1) else vB0), (wp*10 + b)*1024))
    gp = sg.gaps
    for n in range(32):
        o = mstart[n]
        if n >= 1:
            if n + 3 < 32: spread(gp, [C(f, 8) for f in rdR_mark(n + 3)], o + 1, o + 20)
            nd = n + 7; pre = []
            if nd == 16: pre = [lambda: g.v1("v_mov_b32", vD[0], vVb)] + [lambda jj=jj: g.v2("v_add_u32", vD[jj], 3072*jj, vVb) for jj in (1, 2, 3)]
            if nd == 32: pre = [lambda: g.v1("v_mov_b32", vDW[0], vWOb)] + [lambda jj=jj: g.v2("v_add_u32", vDW[jj], 6144*jj, vWOb) for jj in (1, 2, 3)]
            if nd <= 35: place(gp, pre + dma_after(n + 3, nd), o + 22)
    def Wreg(i):
        if i < 2: return A(136 + 16*i, 16)
        if i < 7: return V(176 + 16*(i-2), 16)
        if i == 7: return A(168, 16)
        if i < 14: return A(184 + 12*(i-8), 12)
        return aR[i-14].sub(0, 12)
    def rdW(i):
        n = 32 + i; nt_ = 4 if i < 8 else 3; W = Wreg(i); fs = [lambda: e.wait_vm(H[('r', n)])]
        for tt in range(nt_):
            for hf in range(2):
                fs.append(C(lambda tt=tt, hf=hf: e.ds_read("ds_read_b64_tr_b16", W.sub(4*tt + 2*hf, 2), vTv[tt], 4096*SLOT[n] + 2048*hf), 8))
        def mark(): RSEQ[n] = e.lg_issued
        return fs + [C(mark, 0)]
    ms = mstart
    spread(gp, rdW(0), ms[29] + 1, ms[29] + 16)
    place(gp, dma_after(32, 36), ms[29] + 17, 2)
    spread(gp, rdW(1), ms[29] + 24, ms[29] + 40)
    place(gp, dma_after(33, 37), ms[30] + 1, 2)
    spread(gp, rdW(2), ms[30] + 10, ms[30] + 26)
    place(gp, dma_after(34, 38), ms[30] + 27, 2)
    spread(gp, rdW(3), ms[31] + 1, ms[31] + 14)
    place(gp, dma_after(35, 39), ms[31] + 15, 2)
    spread(gp, rdW(4), ms[31] + 22, ms[31] + 36)
    place(gp, dma_after(36, 40), ms[31] + 36, 1)
    def max_ops():
        fs = []
        for b in range(10):
            s0, s1 = accS(0, 0, b), accS(0, 1, b)
            for (x, y) in ((s0[0], s0[1]), (s0[2], s0[3]), (s1[0], s1[1]), (s1[2], s1[3])):
                fs.append(lambda b=b, x=x, y=y: g.v3("v_max3_f32", vM[b], vM[b], x, y))
        return fs
    def xreduce_ops(op, regs, lds_off):
        ta = vTmp; fs = []
        for sw in ("v_permlane32_swap_b32", "v_permlane16_swap_b32"):
            for b in range(10): fs.append(lambda b=b: g.v1("v_mov_b32", ta[b], regs[b]))
            for b in range(10):
                fs.append(lambda b=b, sw=sw: e.valu(f"{sw} {ta[b]}, {regs[b]}", dst=[ta[b], regs[b]], src=[ta[b], regs[b]], permlane=True))
            for b in range(10): fs.append(lambda b=b: g.v2(op, regs[b], ta[b], regs[b]))
        for b in range(10): fs.append(lambda b=b: e.ds_write("ds_write_b32", vSTW, regs[b], lds_off + 256*b))
        return fs
    def soft_ops(p):
        fs = []
        for b in range(10):
            z = [accS(p, tt, b)[r] for tt in range(2) for r in range(4)]
            mk = opt.soft_mask
            if 'f' in mk:
                for j in range(8): fs.append(lambda z=z, j=j, b=b: g.v3("v_fma_f32", z[j], z[j], sC, vM[b], neg_c=True))
            if 'e' in mk:
                for j in range(8): fs.append(C(lambda z=z, j=j: g.v1("v_exp_f32", z[j], z[j], trans=True), 8))
            if 'a' in mk:
                for j in range(8): fs.append(lambda z=z, j=j, b=b: g.v2("v_add_f32", vLs[b], vLs[b], z[j]))
            if 'c' in mk:
                for j in range(4): fs.append(lambda z=z, j=j: g.cvt(z[2*j], z[2*j], z[2*j+1]))
            if 'w' in mk:
                for j in range(4): fs.append(lambda z=z, j=j, b=b, p=p: g.accw(park(p, b)[j], z[2*j]))
        return fs
    def spread_steps(fs, steps, lo=0, hi=40, first_lo=None):
        l = first_lo if first_lo is not None else lo
        spread(gp, fs, mstart[steps[0]] + l, mstart[steps[-1]] + hi)
    spread(gp, max_ops() + xreduce_ops("v_max_f32", vM, 0), mstart[4] + 2, mstart[4] + 38)
    def bar_max():
        e.wait_lg_all(); e.barrier()
    gp.setdefault(mstart[4] + 39, []).append(bar_max)
    st = [V(112 + 4*b, 4) for b in range(10)]
    fs = [lambda b=b: e.ds_read("ds_read_b128", st[b], vSTR, 256*b) for b in range(10)]
    for b in range(10):
        fs.append(lambda b=b: g.v3("v_max3_f32", vM[b], st[b][0], st[b][1], st[b][2]))
        fs.append(lambda b=b: g.v2("v_max_f32", vM[b], vM[b], st[b][3]))
        fs.append(lambda b=b: g.v2("v_mul_f32", vM[b], sC, vM[b]))
    spread(gp, fs, mstart[5] + 0, mstart[5] + 14)
    spread_steps(soft_ops(0), [5, 6, 7], first_lo=14)
    spread_steps(soft_ops(1), [8, 9, 10, 11])
    spread_steps(soft_ops(2), [12, 13, 14, 15])
    spread_steps(soft_ops(3), [16, 17, 18])
    def pwrite(c): return [lambda b=b, c=c: e.ds_write("ds_write_b128", vPW, park(c, b), (c & 1)*40960 + b*1024) for b in range(10)]
    def bar():
        e.wait_lg_all(); e.barrier()
    sg.preB.setdefault(gstart[14] + 0, []).append(bar)
    spread(gp, pwrite(0), mstart[14] + 4, mstart[15] + 16)
    sg.preB.setdefault(gstart[15] + 11, []).append(bar)
    sg.preB.setdefault(gstart[16] + 1, []).append(bar)
    spread(gp, pwrite(1), mstart[16] + 10, mstart[18] + 30)
    spread(gp, xreduce_ops("v_add_f32", vLs, 4096), mstart[18] + 39, mstart[19] + 11)
    sg.preB.setdefault(gstart[19] + 2, []).append(bar)
    spread(gp, pwrite(2), mstart[20] + 4, mstart[22] + 30)
    sg.preB.setdefault(gstart[23] + 2, []).append(bar)
    spread(gp, pwrite(3), mstart[24] + 4, mstart[26] + 30)
    sg.preB.setdefault(gstart[27] + 2, []).append(bar)
    stl = [V(176 + 4*b, 4) for b in range(10)]
    fs = [lambda b=b: e.ds_read("ds_read_b128", stl[b], vSTR, 4096 + 256*b) for b in range(10)]
    for b in range(10):
        fs.append(lambda b=b: g.v2("v_add_f32", stl[b][0], stl[b][0], stl[b][1]))
        fs.append(lambda b=b: g.v2("v_add_f32", stl[b][2], stl[b][2], stl[b][3]))
        fs.append(lambda b=b: g.v2("v_add_f32", vLs[b], stl[b][0], stl[b][2]))
    if opt.fallback:
        ts = vTmp[1]
        fs.append(lambda: g.v2("v_add_f32", ts, vLs[0], vLs[1]))
        for b in range(2, 10): fs.append(lambda b=b: g.v2("v_add_f32", ts, ts, vLs[b]))
        def check():
            thr = 0.0 if opt.force_fb else 2.0**24
            g.s1("s_mov_b32", S(36), hex(f2u(thr)))
            e.valu(f"v_cmp_nge_f32 vcc, {S(36)}, {ts}", src=[S(36), ts])
            e.nop(4)
            e.raw("s_cmp_lg_u64 vcc, 0")
            e.raw(f"s_cselect_b32 s37, 1, 0")
            e.raw(f"s_andn2_b32 s37, s37, {sExact}")
            e.raw("s_cmp_lg_u32 s37, 0")
            e.raw("s_cbranch_scc1 L_fallback")
        fs.append(check)
    for b in range(10): fs.append(lambda b=b: g.v1("v_rcp_f32", vLs[b], vLs[b], trans=True))
    spread(gp, fs, mstart[20] + 0, mstart[21] + 20)
    if opt.warm_wo:
        def warm_wo():
            t_, s_ = vTmp[9], S(36)
            g.s2("s_mul_i32", s_, sBt, 224); g.s2("s_mul_i32", S(37), sW, 56); g.s2("s_add_u32", s_, s_, S(37))
            g.v2("v_add_u32", t_, s_, vL); g.v2("v_lshlrev_b32", t_, 7, t_)
            e.raw(f"buffer_load_dword {vDum}, {t_}, {sWO}, 0 offen"); e.vm_issued += 1
        gp.setdefault(mstart[int(opt.warm_at)] + 30, []).append(warm_wo)
    vOW0, vOW1 = V(17), V(31)
    otmp = V(164, 8)
    def opost(b):
        fs = []
        for u in range(2):
            tl = [accO(2*u + h2, b) for h2 in range(2)]
            if tl[0].f == 'a':
                z = [otmp[j] for j in range(8)]
                for h2 in range(2):
                    for r in range(4): fs.append(lambda h2=h2, r=r, tl=tl, z=z: g.accr(z[4*h2 + r], tl[h2][r]))
            else:
                z = [tl[h2][r] for h2 in range(2) for r in range(4)]
            for j in range(8): fs.append(lambda j=j, z=z, b=b: g.v2("v_mul_f32", z[j], z[j], vLs[b]))
            o4 = V(z[0].i, 4)
            for j in range(4): fs.append(lambda j=j, z=z, o4=o4: g.cvt(o4[j], z[2*j], z[2*j+1]))
            fs.append(C(lambda o4=o4, u=u, b=b: e.ds_write("ds_write_b128", vOW0 if b < 5 else vOW1, o4, (b % 5)*8192 + u*1024), 8))
        return fs
    def setup_ow():
        g.s2("s_lshl_b32", S(36), sW, 11); g.s2("s_add_u32", S(36), S(36), LDS_A)
        g.v2("v_lshlrev_b32", vOW0, 4, vL); g.v2("v_add_u32", vOW0, S(36), vOW0); g.v2("v_add_u32", vOW1, 40960, vOW0)
    gp.setdefault(mstart[26] + 2, []).append(C(setup_ow, 20))
    o31 = mstart[31]
    ptail = []
    for b in range(5):
        lo = o31 + 4*(b+1) + 3
        if b < 3: spread(gp, opost(b), lo, min(o31 + 40, lo + 12))
        else: ptail += opost(b)
    if opt.stamps:
        for n_, nm_ in ((4, "S0"), (8, "S1"), (12, "S2"), (16, "S3"), (20, "PV0"), (24, "PV1"), (28, "PV2")):
            gp.setdefault(mstart[n_] - 1, []).append(lambda nm_=nm_: g.stamp(nm_))
    sg.emit()
    g.stamp("PVdone")
    g.run(ptail)
    if opt.fused:
        e.raw("s_memrealtime s[92:93]"); e.raw("s_waitcnt lgkmcnt(0)"); e.lg_done = e.lg_issued
    e.wait_lg_all(); e.barrier()
    if opt.dump == 'O':
        for b in range(5, 10): g.run(opost(b))
        return finish_dump(g)
    g.stamp("Opost")

    sg = Seg(g); gp = sg.gaps
    accA = lambda b, t: V(32 + 16*(b & 1) + 4*t, 4)
    accB = lambda b, t: V(80 + 12*(b & 1) + 4*t, 4)
    bst = {}
    def Bsrc(b, j): return (vB0, (b*8 + j)*1024) if b < 5 else (vB1, ((b-5)*8 + j)*1024)
    for st in range(2):
        nt_ = 4 if st == 0 else 3; acc = accA if st == 0 else accB
        order = [(b, j) for b in range(10) for j in range(8)]
        if st == 0:
            order = [(0, j) for j in range(5)] + [(1, j) for j in range(5)] + [(0, j) for j in range(5, 8)] + [(1, j) for j in range(5, 8)] + order[16:]
        for (b, j) in order:
            if (st, b) not in bst: bst[(st, b)] = sg.nm
            W = Wreg(8*st + j)
            mf = [lambda B, b=b, tt=tt, j=j, W=W, acc=acc: e.mfma(acc(b, tt), W.sub(4*tt, 4), B, acc(b, tt) if j > 0 else 0) for tt in range(nt_)]
            sg.add_group(mf, Bsrc(b, j))
    bend = {(0, 0): 13*4, (0, 1): 16*4}
    for b in range(2, 10): bend[(0, b)] = bst[(0, b)] + 32
    for b in range(10): bend[(1, b)] = bst[(1, b)] + 24
    spread(gp, rdW(5), 0, 12)
    place(gp, dma_after(37, 41), 12, 3)
    spread(gp, rdW(6), 14, 30)
    spread(gp, rdW(7), 24, 42)
    place(gp, dma_after(38, 42), 31, 3)
    place(gp, dma_after(39, 43), 43, 3)
    for i in range(8, 16):
        lo = bst[(0, i - 6)] + 2
        spread(gp, rdW(i), lo, lo + 20)
        if 32 + i + 4 < 48: place(gp, dma_after(32 + i, 32 + i + 4), lo + 21, 3)
    u1 = []
    for b in range(5, 10): u1 += opost(b)
    spread(gp, u1, 0, bst[(0, 4)] - 1)
    sg.preB.setdefault(31, []).append(bar)
    def store_e(O, ee):
        g.s1("s_mov_b32", sO3, (ee >> 2)*4096)
        e.gstore("buffer_store_dwordx4", O, vWS, sWS, sO3, offset=(ee & 3)*1024, flags=opt.st_flags)
    kk = [0]
    def pair_epi(x, y, ee):
        O = V(64 + 4*(kk[0] & 3), 4); kk[0] += 1
        return [lambda: g.cvt(O[0], x[0], x[1]), lambda: g.cvt(O[1], x[2], x[3]), lambda: g.cvt(O[2], y[0], y[1]), lambda: g.cvt(O[3], y[2], y[3]),
                VM(C(lambda: store_e(O, ee), 8))]
    def epiA(b): return pair_epi(accA(b, 0), accA(b, 1), b) + pair_epi(accA(b, 2), accA(b, 3), 10 + b)
    def epiB(b):
        fs = pair_epi(accB(b, 0), accB(b, 1), 20 + b)
        O6 = V(104 + 4*((b >> 1) & 1), 4); d = accB(b, 2)
        fs += [lambda: g.cvt(O6[2*(b & 1)], d[0], d[1]), lambda: g.cvt(O6[2*(b & 1) + 1], d[2], d[3])]
        if b & 1: fs.append(VM(C(lambda: store_e(O6, 30 + (b >> 1)), 8)))
        return fs
    for b in range(10):
        nx = bend[(0, b)]
        hi = nx + 22 if b != 0 else 64 - 1
        spread(gp, epiA(b), nx + 3, hi)
    for b in range(9):
        nx = bend[(1, b)]
        spread(gp, epiB(b), nx + 3, nx + 20)
    tail = epiB(9)
    def signal(gen):
        lab = f"L_sig{gen}"
        e.raw(f"s_cmp_lg_u32 {sW}, 0"); e.raw(f"s_cbranch_scc1 {lab}")
        e.raw("s_mov_b64 exec, 1")
        e.raw(f"v_mov_b32 v30, {sTok[0]}"); e.raw(f"v_mov_b32 v31, {sTok[1]}")
        e.raw(f"s_lshl_b32 s36, {sH}, 3"); e.raw(f"s_add_u32 s36, s36, {sCnt}"); e.raw(f"s_add_u32 s36, s36, {4096*gen}")
        e.raw(f"buffer_store_dwordx2 v[30:31], off, {sDBG}, s36 sc1")
        e.raw("s_mov_b64 exec, -1")
        e.label(lab)
    if opt.fused:
        ST0 = {}
        def mark0(): ST0['seq'] = e.vm_issued
        gp.setdefault(bend[(0, 9)] + 23, []).append(C(mark0, 0))
        def sig0():
            e.wait_vm(ST0['seq']); e.barrier(); signal(0)
        gp.setdefault(bst[(1, int(opt.sig0_blk))] + 4, []).append(C(sig0, 24))
    sg.emit()
    g.stamp("outdone")
    g.run(tail)
    if opt.fused:
        e.wait_vm_all(); e.barrier(); signal(1)
        g.stamp("sig1")
        reduce_tail(g)
    if opt.stamps:
        e.wait_vm_all()
        g.stamp("end")
        g.stamp_flush()
    if opt.fallback:
        e.raw("s_endpgm")
        e.label("L_fallback")
        e.raw("s_waitcnt vmcnt(0) lgkmcnt(0)")
        e.raw("s_barrier")
        e.raw(f"s_mov_b32 {sExact}, 1")
        e.raw("s_branch L_restart")
    e.label("L_k1_end")
    e.raw("s_endpgm")
    return e

def reduce_tail(g):
    e = g.e
    sSlot, sGen, sPi, sWp, sE = S(36), S(37), S(38), S(39), S(40)
    sRS, sOS = S(4, 4), S(8, 4)
    g.s2("s_mul_i32", S(41), sH, PART_UNIT)
    g.s2("s_sub_u32", sRS[0], sWS[0], S(41)); e.salu(f"s_subb_u32 {sRS[1]}, {sWS[1]}, 0")
    g.s1("s_mov_b32", sRS[2], 16*PART_UNIT); g.s1("s_mov_b32", sRS[3], "0x00020000")
    e.raw("s_load_dwordx2 s[8:9], s[0:1], 80"); e.raw("s_waitcnt lgkmcnt(0)")
    g.s1("s_mov_b32", sOS[2], 1280*1792); g.s1("s_mov_b32", sOS[3], "0x00020000")
    q16, gg, t, u, vA, row, col = V(2), V(3), V(4), V(5), V(6), V(7), V(72)
    g.v2("v_and_b32", q16, 15, vL); g.v2("v_lshrrev_b32", gg, 4, vL)
    g.v2("v_and_b32", t, 1, gg); g.v2("v_lshrrev_b32", u, 1, gg); g.v2("v_lshlrev_b32", u, 3, u)
    g.s1("s_mov_b32", sSlot, 0)
    e.label("L_red")
    e.raw(f"s_cmp_eq_u32 {sSlot}, 1"); e.raw("s_cbranch_scc1 L_red_nopoll")
    e.raw(f"s_cmp_lg_u32 {sW}, 0"); e.raw("s_cbranch_scc1 L_red_bar")
    e.raw(f"s_lshl_b32 s41, {sSlot}, 11"); e.raw(f"s_add_u32 s41, s41, {sCnt}")
    e.raw(f"s_mov_b32 s42, {int(opt.spin)}")
    e.raw("v_and_b32 v73, 15, v1"); e.raw("v_lshlrev_b32 v73, 3, v73"); e.raw(f"v_mov_b32 v78, {sT0[1]}")
    e.label("L_poll")
    e.raw(f"buffer_load_dwordx2 v[74:75], v73, {sDBG}, s41 offen sc1")
    e.raw("s_waitcnt vmcnt(0)")
    e.raw(f"v_subrev_co_u32 v76, vcc, {sT0[0]}, v74"); e.raw("s_nop 1")
    e.raw("v_subb_co_u32 v77, vcc, v75, v78, vcc")
    e.raw("v_lshrrev_b32 v76, 24, v76"); e.raw("v_or_b32 v76, v76, v77")
    e.raw("v_cmp_eq_u32 vcc, 0, v76"); e.raw("s_nop 4")
    e.raw("s_cmp_eq_u64 vcc, -1"); e.raw("s_cbranch_scc1 L_red_bar")
    e.raw("s_sub_u32 s42, s42, 1"); e.raw("s_cmp_eq_u32 s42, 0"); e.raw("s_cbranch_scc1 L_red_bar")
    e.raw(f"s_sleep {int(opt.sleep)}")
    e.raw("s_branch L_poll")
    e.label("L_red_bar")
    e.raw("s_barrier")
    e.label("L_red_nopoll")
    e.raw(f"s_lshl_b32 {sPi}, {sH}, 2"); e.raw(f"s_add_u32 {sPi}, {sPi}, {sW}")
    e.raw(f"s_cmp_eq_u32 {sSlot}, 1"); e.raw("s_cbranch_scc0 L_red_p")
    e.raw(f"s_cmp_lg_u32 {sW}, 3"); e.raw("s_cbranch_scc1 L_red_next")
    e.raw(f"s_add_u32 {sPi}, {sH}, 64")
    e.label("L_red_p")
    e.raw(f"s_cmp_eq_u32 {sSlot}, 2"); e.raw("s_cbranch_scc1 L_red_g1")
    e.raw(f"s_mul_hi_u32 {sWp}, {sPi}, 214748365")
    e.raw(f"s_mul_i32 {sE}, {sWp}, 20"); e.raw(f"s_sub_u32 {sE}, {sPi}, {sE}")
    e.raw("s_branch L_red_go")
    e.label("L_red_g1")
    e.raw(f"s_cmp_ge_u32 {sPi}, 60"); e.raw("s_cbranch_scc1 L_red_next")
    e.raw(f"s_mul_hi_u32 {sWp}, {sPi}, 286331154")
    e.raw(f"s_mul_i32 {sE}, {sWp}, 15"); e.raw(f"s_sub_u32 {sE}, {sPi}, {sE}"); e.raw(f"s_add_u32 {sE}, {sE}, 20")
    e.label("L_red_go")
    g.s2("s_mul_i32", S(45), sWp, PART_WAVE); g.s2("s_lshl_b32", S(46), sE, 10); g.s2("s_add_u32", S(45), S(45), S(46))
    g.v2("v_lshlrev_b32", vA, 4, vL); g.v2("v_add_u32", vA, S(45), vA)
    ld = [V(8 + 4*h, 4) for h in range(16)]
    for h in range(16):
        g.s1("s_mov_b32", S(47), h*PART_UNIT)
        e.gload("buffer_load_dwordx4", ld[h], vA, sRS, S(47), flags=opt.red_flags)
    sPP, sBlk = S(48), S(49)
    g.s2("s_mul_hi_u32", sPP, sE, 429496730)
    g.s2("s_mul_i32", sBlk, sPP, 10); g.s2("s_sub_u32", sBlk, sE, sBlk)
    g.s2("s_sub_u32", S(52), sE, 30); g.s2("s_lshl_b32", S(52), S(52), 1)
    g.s2("s_lshl_b32", S(53), sPP, 5)
    e.raw(f"s_cmp_lt_u32 {sE}, 30")
    e.raw(f"s_cselect_b32 s52, {sBlk}, s52"); e.raw("s_cselect_b32 s53, s53, 96")
    e.raw("s_cselect_b32 s54, 16, 0"); e.raw("s_cselect_b32 s55, 0, 16")
    g.s2("s_mul_i32", S(56), sBt, 160); g.s2("s_lshl_b32", S(52), S(52), 4); g.s2("s_add_u32", S(56), S(56), S(52))
    g.s2("s_mul_i32", S(50), sBr, 448); g.s2("s_mul_i32", S(58), sWp, 112); g.s2("s_add_u32", S(50), S(50), S(58)); g.s2("s_add_u32", S(50), S(50), S(53))
    g.v3("v_mad_u32_u24", row, t, S(55), q16); g.v2("v_add_u32", row, S(56), row)
    g.v3("v_mad_u32_u24", col, t, S(54), u); g.v2("v_add_u32", col, S(50), col)
    g.s1("s_mov_b32", S(59), 1792)
    g.v2("v_lshlrev_b32", col, 1, col); g.v3("v_mad_u32_u24", row, row, S(59), col)
    acc = [V(76 + j) for j in range(8)]; tmp = [V(84), V(85), V(86), V(87)]
    for h in range(16):
        for j in range(4):
            if h == 0:
                g.v2("v_lshlrev_b32", acc[2*j], 16, ld[h][j]); g.v2("v_and_b32", acc[2*j+1], "0xffff0000", ld[h][j])
            else:
                a_, b_ = tmp[2*(j & 1)], tmp[2*(j & 1) + 1]
                g.v2("v_lshlrev_b32", a_, 16, ld[h][j]); g.v2("v_and_b32", b_, "0xffff0000", ld[h][j])
                g.v2("v_add_f32", acc[2*j], acc[2*j], a_); g.v2("v_add_f32", acc[2*j+1], acc[2*j+1], b_)
    O = V(88, 4)
    for j in range(4): g.cvt(O[j], acc[2*j], acc[2*j+1])
    e.valu(f"v_permlane16_swap_b32 {O[0]}, {O[2]}", dst=[O[0], O[2]], src=[O[0], O[2]], permlane=True)
    e.valu(f"v_permlane16_swap_b32 {O[1]}, {O[3]}", dst=[O[1], O[3]], src=[O[1], O[3]], permlane=True)
    e.gstore("buffer_store_dwordx4", O, row, sOS, None)
    e.nop(2)
    e.label("L_red_next")
    e.raw(f"s_add_u32 {sSlot}, {sSlot}, 1"); e.raw(f"s_cmp_lt_u32 {sSlot}, 3"); e.raw("s_cbranch_scc1 L_red")

def finish_dump(g):
    e = g.e
    e.wait_lg_all(); e.wait_vm_all(); e.barrier()
    t = V(240); u = V(244, 4)
    g.s2("s_mul_i32", S(38), sW, 20480)
    g.v2("v_lshlrev_b32", t, 4, vL); g.v2("v_add_u32", t, S(38), t)
    a = V(241); g.v2("v_add_u32", a, LDS_A, t)
    for i in range(20):
        e.ds_read("ds_read_b128", u, a, i*1024)
        g.s1("s_mov_b32", sO2, i*1024)
        e.gstore("buffer_store_dwordx4", u, t, sWS, sO2)
        e.wait_vm_all()
    e.label("L_fallback")
    e.label("L_k1_end")
    e.raw("s_endpgm")
    return e

import gen1
def assemble(path):
    k1 = build_k1()
    hdr = open("cdna_kernels/" + NAME + ".s.ref").read().split("; Override launch")[0]
    out = hdr
    KD = gen1.KD.replace("next_free_sgpr 96", "next_free_sgpr 102")
    if opt.fused:
        nm = NAME + "_kernel"
        out += f"; @launch grid=(256,1,1) block=(256,1,1) lds={LDS_TOTAL}\n"
        out += '.amdgcn_target "amdgcn-amd-amdhsa--gfx950"\n.text\n'
        out += f".globl {nm}\n.p2align 8\n.type {nm},@function\n{nm}:\n" + k1.text()
        out += '.section .rodata,"a"\n.p2align 6\n' + KD.format(name=nm, vgpr=512, acc=256)
    else:
        gen1.opt.k2_flags = opt.k2_flags; gen1.opt.stamps = opt.stamps
        k2 = gen1.build_k2()
        out += f"; @launch kernel=mha_k1_kernel grid=(256,1,1) block=(256,1,1) lds={LDS_TOTAL}\n"
        out += f"; @launch kernel=mha_k2_kernel grid=(560,1,1) block=(256,1,1) lds=0\n"
        out += '.amdgcn_target "amdgcn-amd-amdhsa--gfx950"\n.text\n'
        for nm, k in (("mha_k1_kernel", k1), ("mha_k2_kernel", k2)):
            out += f".globl {nm}\n.p2align 8\n.type {nm},@function\n{nm}:\n" + k.text()
        out += '.section .rodata,"a"\n.p2align 6\n' + KD.format(name="mha_k1_kernel", vgpr=512, acc=256)
        out += '.p2align 6\n' + KD.format(name="mha_k2_kernel", vgpr=96, acc=96)
    open(path, "w").write(out)
    if opt.stamps: print("STAMPS", ",".join(STAMPS))
    print("k1 stats", k1.stats, file=sys.stderr)

if __name__ == "__main__":
    path = sys.argv[1]
    for a in sys.argv[2:]:
        k, v = a.split("=")
        if v in ("True", "False"): v = (v == "True")
        elif v == "None": v = None
        setattr(opt, k, v)
    assemble(path)
```

```python
import sys, math, struct
from emit import *

NAME = "concat_heads__mha_block_cached__mha_block_cached__near_ridge"
LDS_M = 0; LDS_A = 16384; LDS_B = 98304; XS = 49152
LDS_TOTAL = 163840
PART_UNIT = 143360
PART_WAVE = 35840

class Opt:
    nt_kv = True
    st_flags = "sc1"
    k2_flags = ""
    dump = None
    stamps = False
    warm = False
    fallback = True
    force_fb = False
    pstamp = False
    only = None
    skip_dma = ''
    soft_mask = 'feacw'
    wait_batch = 2
    level = 8
    ws_off = 0
    late_wq1 = True
    cheap_max = True
    inplace_p = True
    fused = True
    red_flags = 'sc1'
    spin = 20000
    sig0_blk = 3
    poll0_blk = 10
    early0 = True
    epoll_blk = 5
    echeck_d = 2
    sleep = 4
    code_pf = True
    pf_lines = 4
    vm_gap = 4
    qstamp = False
    rot = True
    w_flags = ''
    wo_flags = ''
    warm_wo = False
    warm_at = 21
    kread = '{10:0,11:1,12:2,13:3}'
    kfirst = '{2:0,4:1,6:2,8:3}'
    qa_lo = 20
opt = Opt()
STAMPS = []
def f2u(x): return struct.unpack("<I", struct.pack("<f", x))[0]

sX, sK, sV, sWQ, sWO, sWS = S(4,4), S(8,4), S(12,4), S(16,4), S(20,4), S(24,4)
sW, sRB, sWB, sXD, sO1, sO2, sC, sExact = S(28), S(29), S(30), S(31), S(32), S(33), S(34), S(35)
sH, sBt, sBr = S(60), S(61), S(62)
sO3 = S(57)
sDBG = S(96, 4)
sCnt = S(100)
sT0 = S(78, 2)
sE0, sE1 = S(62+39), S(35)
sTok = S(92, 2)
sXo = [S(64+c) for c in range(7)]
sWo = [S(71+c) for c in range(7)]

vL = V(1)
vB0, vB1, vK0, vK1 = V(2), V(3), V(4), V(5)
vTv = [V(6+i) for i in range(4)]
vD  = [V(10+i) for i in range(4)]
vVb, vWOb, vPW, vSTW, vSTR, vWS = V(14), V(15), V(16), V(18), V(19), V(20)
vM  = [V(21+i) for i in range(10)]
vSTM = V(31)
vDum = V(0)
vX0, vX1 = V(152), V(153)
vTq  = [V(154+i) for i in range(4)]
vDX  = [V(158+i) for i in range(5)]
vDWQ = [V(163+i) for i in range(4)]
vQW  = V(167)
vLs = [V(152+i) for i in range(10)]
vDW = [V(172+i) for i in range(4)]
vTmp = [V(162+i) for i in range(10)]
NB = 8
aB = [A(4*i, 4) for i in range(NB)]
aR = [A(32 + 16*i, 16) for i in range(4)]
aWQ = [[A(96 + 16*s + 4*t, 4) for t in range(4)] for s in range(2)]
def park(p, b):
    if opt.inplace_p and p == 0: return V(112 + 4*b, 4)
    if opt.inplace_p and p == 3: return V(176 + 4*b, 4)
    return A(96 + 40*p + 4*b, 4)

def accQ(t, b):
    i = b*4 + t
    return V(32 + 4*i, 4) if i < 30 else V(176 + 4*(i-30), 4)
def accS(p, t, b): return V((32 if p % 2 == 0 else 176) + 8*b + 4*t, 4)
def accO(t, b):
    i = b*4 + t
    return V(32 + 4*i, 4) if i < 30 else A(96 + 4*(i-30), 4)
def accP0(t, b): return A(96 + 4*(b*4+t), 4)
def accP1(t, b): return V(32 + 4*(b*3+t), 4)

class G:
    def __init__(self):
        self.e = Emit(); self.nst = 0
    def v2(self, op, d, a, b):
        self.e.valu(f"{op} {d}, {a}, {b}", dst=[d], src=[x for x in (a, b) if isinstance(x, R)])
    def v1(self, op, d, a, trans=False):
        self.e.valu(f"{op} {d}, {a}", dst=[d], src=[a] if isinstance(a, R) else [], trans=trans)
    def v3(self, op, d, a, b, c, neg_c=False):
        cc = f"-{c}" if neg_c else f"{c}"
        self.e.valu(f"{op} {d}, {a}, {b}, {cc}", dst=[d], src=[x for x in (a, b, c) if isinstance(x, R)])
    def cvt(self, d, a, b):
        self.e.valu(f"v_cvt_pk_bf16_f32 {d}, {a}, {b}", dst=[d], src=[a, b])
    def accw(self, d, a):
        self.e.valu(f"v_accvgpr_write_b32 {d}, {a}", dst=[d], src=[a])
    def accr(self, d, a):
        self.e.valu(f"v_accvgpr_read_b32 {d}, {a}", dst=[d], src=[a])
    def s2(self, op, d, a, b):
        self.e.salu(f"{op} {d}, {a}, {b}", reads=[x for x in (a, b) if isinstance(x, R)])
    def s1(self, op, d, a):
        self.e.salu(f"{op} {d}, {a}", reads=[a] if isinstance(a, R) else [])
    def m0(self, sbase, imm):
        self.e.salu(f"s_add_u32 m0, {sbase}, {imm}", w_m0=True, reads=[sbase])
    m0state = None
    sstate = None
    def ensure(self, sbase, ldsoff, sreg, soff_imm):
        if self.sstate is None: self.sstate = {}
        if self.m0state != (str(sbase), ldsoff):
            self.m0(sbase, ldsoff); self.m0state = (str(sbase), ldsoff)
        key = (str(soff_imm[0]), soff_imm[1]) if isinstance(soff_imm, tuple) else soff_imm
        if self.sstate.get(str(sreg)) != key:
            if isinstance(soff_imm, tuple): self.s2("s_add_u32", sreg, soff_imm[0], soff_imm[1])
            else: self.s1("s_mov_b32", sreg, soff_imm)
            self.sstate[str(sreg)] = key
    def forget(self):
        self.m0state = None; self.sstate = {}
    def dma_group(self, voffs, srd, sbase, ldsoff, soff_imm, sreg, holder, key, flags=""):
        e = self.e; fs = []
        for i in range(len(voffs)):
            def f(i=i):
                kind = key[0] if key[0] != 'r' else ('k' if key[1] < 16 else ('v' if key[1] < 32 else 'o'))
                if kind in opt.skip_dma or (kind == 'wq' and 'q' in opt.skip_dma): holder[key] = e.vm_issued; return
                self.ensure(sbase, ldsoff + (4096 if i == 4 else 0), sreg, soff_imm)
                holder[key] = e.dma(voffs[i], srd, sreg, offset=(1024*i if i < 4 else 0), flags=flags)
            f.vm = True
            fs.append(C(f, 12 if i == 0 else 4))
        return fs
    def run(self, fs):
        for f in fs: f()
    def stamp(self, name):
        if not opt.stamps: return
        if opt.only and name not in opt.only.split(","): return
        i = self.nst; self.nst += 1; STAMPS.append(name)
        assert i < 12
        self.e.raw("s_memtime s[94:95]"); self.e.raw("s_waitcnt lgkmcnt(0)"); self.e.raw(f"s_mov_b32 s{80+i}, s94")
        self.e.lg_done = self.e.lg_issued
    def stamp_flush(self):
        e = self.e
        e.raw("s_memrealtime s[94:95]"); e.raw("s_waitcnt lgkmcnt(0)")
        e.raw("s_load_dwordx2 s[36:37], s[0:1], 96"); e.raw("s_waitcnt lgkmcnt(0)")
        e.salu("s_add_u32 s36, s36, 0x4000000"); e.salu("s_addc_u32 s37, s37, 0")
        e.salu("s_mov_b32 s38, 0x100000"); e.salu("s_mov_b32 s39, 0x00020000")
        e.salu("s_lshl_b32 s40, s2, 8"); e.salu(f"s_lshl_b32 s41, {sW}, 6"); e.salu("s_add_u32 s40, s40, s41")
        z = V(170); d = V(171)
        self.v1("v_mov_b32", z, 0)
        for i, src in [(i, S(80+i)) for i in range(self.nst)] + [(15, S(94)), (14, S(78))]:
            self.v1("v_mov_b32", d, src); e.salu(f"s_add_u32 s41, s40, {4*i}")
            e.gstore("buffer_store_dword", d, z, S(36, 4), S(41))

def cost_of(f): return getattr(f, "cost", 4)
def C(f, c):
    f.cost = c; return f

def VM(f):
    f.vm = True; return f

class Gaps:
    def __init__(self):
        self.streams = []; self.fixed = {}
    def setdefault(self, k, d): return self.fixed.setdefault(k, d)

def spread(gaps, fs, start, end):
    if not fs: return
    assert end > start, (start, end)
    gaps.streams.append(dict(ops=list(fs), lo=start, hi=end))

def place(gaps, fs, start, step=None):
    if step is None: step = int(opt.vm_gap)
    pos = start
    for f in fs:
        gaps.setdefault(pos, []).append(f)
        if getattr(f, "vm", False): pos += step

def schedule(N, F, streams, base=8.0):
    out = {}
    for s_ in streams:
        s_["k"] = 0; s_["rem"] = sum(cost_of(f) for f in s_["ops"]); s_["hi"] = min(s_["hi"], N)
    pf = [0]*(N+1)
    for i in range(N): pf[i+1] = pf[i] + F[i]
    carry = 0.0
    last_vm = -100
    VMG = int(opt.vm_gap)
    for i in range(N):
        act = [s_ for s_ in streams if s_["k"] < len(s_["ops"])]
        if not act: break
        L = base
        his = sorted(set(s_["hi"] for s_ in act if s_["hi"] > i))
        for h in his:
            need = pf[h] - pf[i] + sum(s_["rem"] for s_ in act if s_["hi"] <= h and s_["lo"] < h)
            lo = max(i, min(s_["lo"] for s_ in act if s_["hi"] <= h))
            need2 = pf[h] - pf[lo] + sum(s_["rem"] for s_ in act if s_["hi"] <= h)
            if lo <= i: L = max(L, need2 / (h - lo))
        budget = L - F[i] + carry
        placed = 0
        while True:
            cand = [s_ for s_ in streams if s_["k"] < len(s_["ops"]) and s_["lo"] <= i]
            def blocked(x):
                f_ = x["ops"][x["k"]]
                if not getattr(f_, "vm", False) or i - last_vm >= VMG: return False
                nv = sum(1 for q in x["ops"][x["k"]:] if getattr(q, "vm", False))
                return (x["hi"] - i) > nv
            cand = [x for x in cand if not blocked(x)]
            if not cand: break
            cand.sort(key=lambda s_: (s_["hi"] - s_["rem"] / max(L - 2.0, 1.0), s_["hi"]))
            s_ = cand[0]
            f = s_["ops"][s_["k"]]; c = cost_of(f)
            forced = any(x["hi"] - 1 <= i for x in cand)
            if forced:
                s_ = [x for x in cand if x["hi"] - 1 <= i][0]; f = s_["ops"][s_["k"]]; c = cost_of(f)
            elif budget - placed < c - 1.99: break
            out.setdefault(i, []).append(f); s_["k"] += 1; s_["rem"] -= c; placed += c
            if getattr(f, "vm", False): last_vm = i
        carry = max(-6.0, min(2.0, budget - placed))
    for s_ in streams: assert s_["k"] == len(s_["ops"]), (s_["lo"], s_["hi"], s_["k"], len(s_["ops"]))
    return out

class Seg:
    def __init__(self, g):
        self.g = g; self.groups = []
        self.gaps = Gaps()
        self.preB = {}
        self.nm = 0; self.gstart = []
    def add_group(self, mf, bsrc):
        self.gstart.append(self.nm); self.groups.append((mf, bsrc)); self.nm += len(mf)
    def emit(self, wait_batch=None):
        if wait_batch is None: wait_batch = int(opt.wait_batch)
        e = self.g.e; seq = {}
        n = len(self.groups); N = self.nm
        F = [0]*N
        for G in range(n):
            last = self.gstart[G] + len(self.groups[G][0]) - 1
            if G + NB < n: F[last] += 8
            if G % wait_batch == 0 and G > 0: F[self.gstart[G] - 1] += 4
        for k_, v_ in self.gaps.fixed.items(): F[k_] += sum(cost_of(f) for f in v_)
        sched = schedule(N, F, self.gaps.streams, base=float(opt.level))
        def rd(G):
            a, o = self.groups[G][1]
            seq[G] = e.ds_read("ds_read_b128", aB[G % NB], a, o)
        for G in range(min(NB, n)): rd(G)
        idx = 0
        for G, (mf, _) in enumerate(self.groups):
            if G % wait_batch == 0:
                last = min(n-1, G + wait_batch - 1)
                while last not in seq: last -= 1
                e.wait_lg(seq[last])
            for m in mf:
                m(aB[G % NB])
                for f in sched.get(idx, []): f()
                for f in self.gaps.fixed.get(idx, []): f()
                idx += 1
            for f in self.preB.get(G, []): f()
            if G + NB < n: rd(G + NB)

def build_k1():
    g = G(); e = g.e
    kvflag = "nt" if opt.nt_kv else ""
    H = {}
    e.raw("s_cmp_ge_u32 s2, 256"); e.raw("s_cbranch_scc1 L_k1_end")
    if opt.code_pf:
        nl = int(opt.pf_lines)
        e.raw("s_getpc_b64 s[36:37]")
        e.label("L_pc")
        e.raw("v_lshrrev_b32 v2, 6, v0")
        e.raw("s_lshr_b32 s38, s2, 3"); e.raw("s_lshl_b32 s38, s38, 2")
        e.raw("v_add_u32 v2, s38, v2")
        e.raw(f"v_and_b32 v3, {nl-1}, v0")
        e.raw(f"v_mad_u32_u24 v2, v2, {nl}, v3")
        e.raw("v_lshlrev_b32 v2, 7, v2")
        e.raw("s_mov_b32 s38, L_k1_end-L_pc-4")
        e.raw("v_min_u32 v2, s38, v2")
        e.raw("v_and_b32 v2, -4, v2")
        e.raw("global_load_dword v17, v2, s[36:37]")
        e.vm_issued += 1
    if opt.stamps:
        e.raw("s_memrealtime s[78:79]"); e.raw("s_waitcnt lgkmcnt(0)")
    g.stamp("start")
    e.raw("s_load_dwordx16 s[36:51], s[0:1], 0")
    e.raw("s_load_dwordx4 s[52:55], s[0:1], 64")
    e.raw("s_load_dwordx2 s[56:57], s[0:1], 96")
    if opt.fused and not opt.stamps: e.raw("s_memrealtime s[78:79]")
    g.s2("s_and_b32", S(58), S(2), 7); g.s2("s_lshr_b32", S(59), S(2), 3)
    g.s2("s_and_b32", sH, S(58), 3); g.s2("s_lshl_b32", sH, sH, 2)
    g.s2("s_and_b32", sBt, S(59), 3); g.s2("s_add_u32", sH, sH, sBt)
    g.s2("s_lshr_b32", sBt, S(59), 2); g.s2("s_lshr_b32", sBr, S(58), 2)
    if opt.rot:
        g.s2("s_and_b32", S(58), sH, 3); g.s2("s_lshl_b32", S(58), S(58), 1); g.s2("s_add_u32", S(58), S(58), sBt)
        e.raw("s_cmp_ge_u32 s58, 7"); e.raw("s_cselect_b32 s59, 7, 0"); g.s2("s_sub_u32", S(58), S(58), S(59))
    else:
        g.s1("s_mov_b32", S(58), 0)
    for c in range(7):
        g.s2("s_add_u32", S(59), S(58), c)
        e.raw("s_cmp_ge_u32 s59, 7"); e.raw("s_cselect_b32 s63, 7, 0"); g.s2("s_sub_u32", S(59), S(59), S(63))
        g.s2("s_lshl_b32", sXo[c], S(59), 7); g.s2("s_lshl_b32", sWo[c], S(59), 19)
    g.v2("v_lshrrev_b32", V(32), 6, V(0))
    e.readfirstlane(sW, V(32))
    g.s1("s_mov_b32", sExact, 0)
    g.s2("s_lshl_b32", sRB, sW, 14); g.s2("s_add_u32", sRB, sRB, LDS_B)
    g.s2("s_mul_i32", sWB, sW, 12288)
    g.s2("s_mul_i32", sXD, sW, 5120); g.s2("s_add_u32", sXD, sXD, XS)
    g.s1("s_mov_b32", sC, hex(f2u(math.log2(math.e) / 16.0)))
    g.v2("v_and_b32", vL, 63, V(0))
    P = [V(32+i) for i in range(16)]
    q16, gg, r4, c4, prow, pg, t, u, w_v = P[0], P[1], P[2], P[3], P[4], P[5], P[6], P[7], P[8]
    def lanefields():
        g.v2("v_and_b32", q16, 15, vL); g.v2("v_lshrrev_b32", gg, 4, vL)
        g.v3("v_bfe_u32", r4, vL, 2, 2); g.v2("v_and_b32", c4, 3, vL)
        g.v2("v_lshrrev_b32", prow, 3, vL); g.v2("v_and_b32", pg, 7, vL)
        g.v1("v_mov_b32", w_v, sW)
    s896 = S(63)
    def xwq_offsets():
        g.s1("s_mov_b32", s896, 896)
        for i in range(5):
            g.v3("v_mad_u32_u24", t, w_v, 5, i)
            g.v2("v_and_b32", u, 1, t); g.v3("v_lshl_add_u32", u, u, 2, gg)
            g.v2("v_xor_b32", u, u, pg); g.v2("v_lshlrev_b32", u, 4, u)
            g.v3("v_lshl_add_u32", t, t, 3, prow)
            g.v3("v_mad_u32_u24", vDX[i], t, s896, u)
            if 0 < i < 4: g.v2("v_subrev_u32", vDX[i], 1024*i, vDX[i])
        for par in range(2):
            g.v3("v_bfe_u32", u, prow, 1, 1)
            if par: g.v2("v_or_b32", u, 2, u)
            g.v2("v_lshlrev_b32", u, 1, u); g.v2("v_xor_b32", u, u, pg); g.v2("v_lshlrev_b32", u, 4, u)
            g.v3("v_lshl_add_u32", u, w_v, 7, u)
            g.v2("v_lshlrev_b32", t, 13, prow); g.v2("v_add_u32", vDWQ[par], t, u)
        for jj in (2, 3): g.v2("v_add_u32", vDWQ[jj], 64512*jj, vDWQ[jj & 1])
        g.v2("v_add_u32", vDWQ[1], 64512, vDWQ[1])
    lanefields(); xwq_offsets()
    e.raw("s_waitcnt lgkmcnt(0)")
    if opt.pstamp: g.stamp("karg")
    e.raw(f"s_cmp_eq_u32 {sBr}, 0")
    for (pa, pb) in [(36,46),(38,48),(40,50),(42,52),(44,54)]:
        e.raw(f"s_cselect_b32 s{pa}, s{pa}, s{pb}"); e.raw(f"s_cselect_b32 s{pa+1}, s{pa+1}, s{pb+1}")
    def srd(dst, plo, off_sreg, nrec):
        g.s2("s_add_u32", dst[0], S(plo), off_sreg); e.salu(f"s_addc_u32 {dst[1]}, s{plo+1}, 0")
        g.s1("s_mov_b32", dst[2], nrec); g.s1("s_mov_b32", dst[3], "0x00020000")
    t0, t1 = S(58), S(59)
    g.s2("s_mul_i32", t0, sBt, 143360); srd(sX, 36, t0, 143360)
    g.s2("s_lshl_b32", t1, sH, 9); g.s2("s_sub_u32", t0, 3670016, t1); srd(sWQ, 42, t1, t0)
    g.s2("s_lshl_b32", t0, sBt, 4); g.s2("s_add_u32", t0, t0, sH)
    g.s2("s_lshl_b32", t1, t0, 18); srd(sK, 38, t1, 262144); srd(sV, 40, t1, 262144)
    g.s2("s_lshl_b32", t1, sBr, 7); g.s2("s_add_u32", t0, t0, t1)
    g.s2("s_mul_i32", t1, t0, PART_UNIT)
    if int(opt.ws_off): g.s2("s_add_u32", t1, t1, hex(int(opt.ws_off) << 20))
    srd(sWS, 56, t1, PART_UNIT)
    g.s2("s_mul_i32", t1, sH, 229376); srd(sWO, 44, t1, 229376)
    if opt.fused:
        g.s2("s_add_u32", sDBG[0], S(56), "0x3000000"); e.salu(f"s_addc_u32 {sDBG[1]}, s57, 0")
        g.s1("s_mov_b32", sDBG[2], 131072); g.s1("s_mov_b32", sDBG[3], "0x00020000")
        g.s2("s_lshl_b32", t1, sBr, 3); g.s2("s_add_u32", t1, t1, sBt); g.s2("s_lshl_b32", sCnt, t1, 13)
    e.raw("s_branch L_first")
    e.label("L_restart")
    lanefields(); xwq_offsets()
    e.label("L_first")
    g.forget()
    g.run(g.dma_group(vDX, sX, sXD, 0, (sXo[0], 0), sO1, H, ('x', 0), flags=opt.w_flags))
    if opt.pstamp: g.stamp("x0")
    g.run(g.dma_group(vDWQ, sWQ, sWB, 0, (sWo[0], 0), sO2, H, ('wq', 0), flags=opt.w_flags))
    if opt.pstamp: g.stamp("wq0")
    if opt.warm:
        g.s2("s_mul_i32", t0, sBt, 56); g.s2("s_mul_i32", t1, sW, 14); g.s2("s_add_u32", t0, t0, t1)
        g.v2("v_lshrrev_b32", t, 2, vL); g.v2("v_add_u32", t, t0, t); g.v2("v_lshlrev_b32", t, 13, t)
        g.v3("v_lshl_add_u32", t, c4, 7, t)
        e.raw(f"buffer_load_dword {vDum}, {t}, {sWQ}, 0 offen"); e.vm_issued += 1
        g.s2("s_and_b32", t0, sH, 3); g.s2("s_mul_i32", t0, t0, 280); g.s2("s_mul_i32", t1, sW, 70); g.s2("s_add_u32", t0, t0, t1)
        g.v2("v_add_u32", u, t0, vL); g.v2("v_lshlrev_b32", u, 7, u)
        e.raw(f"buffer_load_dword {vDum}, {u}, {sX}, 0 offen"); e.vm_issued += 1
    if opt.pstamp: g.stamp("warm")
    if not opt.late_wq1: g.run(g.dma_group(vDWQ, sWQ, sWB, 4096, (sWo[0], 262144), sO2, H, ('wq', 1), flags=opt.w_flags))
    if opt.pstamp: g.stamp("wq12")
    for par in range(2):
        g.v2("v_add_u32", u, 4*par, gg); g.v2("v_xor_b32", u, u, pg); g.v2("v_lshlrev_b32", u, 4, u)
        g.v3("v_lshl_add_u32", t, w_v, 5, prow); g.v2("v_lshlrev_b32", t, 9, t)
        g.v2("v_add_u32", vD[par], t, u)
    for jj in (2, 3): g.v2("v_add_u32", vD[jj], 3072*jj, vD[jj & 1])
    g.v2("v_add_u32", vD[1], 3072, vD[1])
    SLOT = {n: n & 3 for n in range(22)}
    SLOT.update({n: n & 3 for n in range(22, 48)})
    def dma_n(n):
        if n < 16:   return g.dma_group(vD, sK, sRB, 4096*SLOT[n], 65536*(n >> 2) + 128*(n & 3), sO1, H, ('r', n), flags=kvflag)
        if n < 32:   return g.dma_group(vD, sV, sRB, 4096*SLOT[n], 16384*(n-16), sO1, H, ('r', n), flags=kvflag)
        i = n - 32
        return g.dma_group(vDW, sWO, sRB, 4096*SLOT[n], 28672*(i % 8) + 128*(i // 8), sO2, H, ('r', n), flags=opt.wo_flags)
    def switchD(base):
        return [lambda jj=jj: (g.v1("v_mov_b32", vD[0], base) if jj == 0 else g.v2("v_add_u32", vD[jj], base[1]*jj, base[0])) for jj in range(4)]
    gv = P[9]
    g.v3("v_bfe_u32", u, prow, 1, 2); g.v2("v_lshlrev_b32", u, 1, u); g.v2("v_xor_b32", u, u, pg); g.v2("v_lshlrev_b32", gv, 4, u)
    g.v2("v_lshlrev_b32", u, 9, prow); g.v2("v_add_u32", u, u, gv); g.v3("v_lshl_add_u32", vVb, w_v, 7, u)
    s224 = S(58); g.s1("s_mov_b32", s224, 224)
    g.v3("v_mad_u32_u24", u, prow, s896, gv); g.v3("v_mad_u32_u24", vWOb, w_v, s224, u)
    g.v2("v_lshlrev_b32", t, 4, vL); g.v2("v_add_u32", vB0, LDS_A, t); g.v2("v_add_u32", vB1, LDS_A + 40960, t)
    g.v2("v_lshrrev_b32", u, 1, q16)
    for sp, (vx, vk) in enumerate([(vX0, vK0), (vX1, vK1)]):
        g.v2("v_add_u32", t, 4*sp, gg); g.v2("v_xor_b32", t, t, u); g.v2("v_lshlrev_b32", t, 4, t)
        g.v3("v_lshl_add_u32", t, q16, 7, t)
        g.v2("v_add_u32", vx, XS, t); g.v2("v_add_u32", vk, sRB, t)
    phq, phv, base = P[10], P[11], P[12]
    g.v2("v_lshrrev_b32", u, 1, r4)
    g.v2("v_and_b32", t, 1, gg); g.v3("v_lshl_or_b32", phq, t, 1, u)
    g.v3("v_lshl_add_u32", phv, gg, 1, u); g.v2("v_and_b32", phv, 3, phv)
    g.v3("v_lshl_add_u32", base, gg, 3, r4); g.v2("v_lshlrev_b32", base, 7, base); g.v3("v_lshl_add_u32", base, c4, 3, base)
    g.v2("v_add_u32", base, sWB, base)
    for tt in range(4):
        g.v2("v_xor_b32", t, tt, phq); g.v3("v_lshl_add_u32", vTq[tt], t, 5, base)
    g.v3("v_lshl_add_u32", base, gg, 2, r4); g.v2("v_lshlrev_b32", base, 7, base); g.v3("v_lshl_add_u32", base, c4, 3, base)
    g.v2("v_add_u32", base, sRB, base)
    for tt in range(4):
        g.v2("v_xor_b32", t, tt, phv); g.v3("v_lshl_add_u32", vTv[tt], t, 5, base)
    sA = S(59); g.s2("s_mul_i32", sA, sW, 20480); g.s2("s_add_u32", sA, sA, LDS_A)
    g.v2("v_lshrrev_b32", t, 1, gg); g.v2("v_and_b32", u, 1, gg); g.v3("v_lshl_or_b32", t, u, 1, t)
    g.v2("v_lshlrev_b32", t, 8, t); g.v3("v_lshl_add_u32", t, q16, 4, t); g.v2("v_add_u32", vQW, sA, t)
    g.v2("v_lshlrev_b32", t, 4, vL)
    g.s2("s_mul_i32", sA, sW, 10240); g.s2("s_add_u32", sA, sA, LDS_A); g.v2("v_add_u32", vPW, sA, t)
    g.s2("s_mul_i32", sA, sW, PART_WAVE); g.v2("v_add_u32", vWS, sA, t)
    g.v2("v_lshlrev_b32", vSTR, 4, q16); g.s2("s_lshl_b32", sA, sW, 2); g.v2("v_add_u32", vSTW, sA, vSTR)
    g.v2("v_lshlrev_b32", t, 2, vL); g.v2("v_add_u32", t, 8192, t)
    e.valu(f"v_cmp_eq_u32 vcc, 0, {gg}", src=[gg]); e.nop(2)
    e.valu(f"v_cndmask_b32 {vSTM}, {t}, {vSTW}, vcc", dst=[vSTM], src=[t, vSTW])
    for b in range(10): g.v1("v_mov_b32", vM[b], "0xff800000")

    def rdR(n):
        slot = n & 3; ls = SLOT[n]; fs = []
        if n < 16:
            for sp in range(2):
                for tt in range(2):
                    fs.append(lambda sp=sp, tt=tt: e.ds_read("ds_read_b128", aR[slot].sub(8*sp + 4*tt, 4), (vK0, vK1)[sp], 4096*ls + 2048*tt))
        else:
            for tt in range(4):
                for hf in range(2):
                    fs.append(lambda tt=tt, hf=hf: e.ds_read("ds_read_b64_tr_b16", aR[slot].sub(4*tt + 2*hf, 2), vTv[tt], 4096*ls + 2048*hf))
        return [lambda: e.wait_vm(H[('r', n)])] + fs
    RSEQ = {}
    def rdR_mark(n):
        fs = rdR(n)
        def mark(): RSEQ[n] = e.lg_issued
        return fs + [mark]
    def dma_after(n_read, n_dma):
        return [lambda: e.wait_lg(RSEQ[n_read])] + dma_n(n_dma)

    g.stamp("prolog")
    def rdA_wq(s):
        fs = []
        for tt in range(4):
            for hf in range(2):
                fs.append(lambda tt=tt, hf=hf: e.ds_read("ds_read_b64_tr_b16", aWQ[s & 1][tt].sub(2*hf, 2), vTq[tt], 4096*(s % 3) + 512*hf))
        return fs
    if opt.late_wq1:
        W0 = H[('wq', 0)]
        g.run(g.dma_group(vDWQ, sWQ, sWB, 4096, (sWo[0], 262144), sO2, H, ('wq', 1), flags=opt.w_flags))
    e.wait_vm(H[('wq', 0)])
    e.barrier()
    g.stamp("firstdata")
    g.run(rdA_wq(0))
    sg = Seg(g)
    NQ = 14
    for s in range(NQ):
        for b in range(10):
            mf = [lambda B, b=b, tt=tt, s=s: e.mfma(accQ(tt, b), aWQ[s & 1][tt], B, accQ(tt, b) if s > 0 else 0) for tt in range(4)]
            sg.add_group(mf, ((vX0, vX1)[s & 1], 20480*((s >> 1) & 1) + 2048*b))
    kread = eval(str(opt.kread))
    kfirst = eval(str(opt.kfirst))
    for s in range(NQ):
        o = 40*s; nxt = s + 1
        if s == 0:
            place(sg.gaps, g.dma_group(vDWQ, sWQ, sWB, 4096*2, (sWo[1], 0), sO2, H, ('wq', 2), flags=opt.w_flags), o + 0, 2)
            place(sg.gaps, g.dma_group(vDX, sX, sXD, 20480, (sXo[1], 0), sO1, H, ('x', 1), flags=opt.w_flags), o + 8, 3)
        if nxt < NQ:
            spread(sg.gaps, [lambda nxt=nxt: e.wait_vm(H[('wq', nxt)])] + [C(f, 8) for f in rdA_wq(nxt)], o + int(opt.qa_lo), o + 38)
            if nxt % 2 == 0:
                c = nxt // 2
                def bar(c=c):
                    e.wait_vm(H[('x', c)]); e.wait_lg_all(); e.barrier()
                sg.preB.setdefault(10*s + 2, []).append(bar)
                if c + 1 < 7:
                    place(sg.gaps, g.dma_group(vDX, sX, sXD, 20480*((c+1) & 1), (sXo[c+1], 0), sO1, H, ('x', c+1), flags=opt.w_flags), o + 19)
        if s + 3 < NQ:
            lo = 24 if s == 0 else 3
            place(sg.gaps, g.dma_group(vDWQ, sWQ, sWB, 4096*(s % 3), (sWo[(s+3) >> 1], 262144*((s+3) & 1)), sO2, H, ('wq', s+3), flags=opt.w_flags), o + lo)
        if s in kfirst:
            assert s % 2 == 0 or s >= 11
            place(sg.gaps, dma_n(kfirst[s]), o + 22)
        if s in kread:
            n = kread[s]
            spread(sg.gaps, [C(f, 8) for f in rdR_mark(n)], o + 2, o + 18)
            place(sg.gaps, dma_after(n, n + 4), o + 22)
    if opt.qstamp:
        for s_ in range(1, 14): sg.gaps.setdefault(40*s_ - 1, []).append(lambda s_=s_: g.stamp(f"q{s_-1}"))
    def qcvt(b):
        fs = []
        for u in range(2):
            d, d2 = accQ(2*u, b), accQ(2*u + 1, b)
            fs.append(lambda d=d: g.cvt(d[0], d[0], d[1])); fs.append(lambda d=d: g.cvt(d[1], d[2], d[3]))
            fs.append(lambda d=d, d2=d2: g.cvt(d[2], d2[0], d2[1])); fs.append(lambda d=d, d2=d2: g.cvt(d[3], d2[2], d2[3]))
            fs.append(lambda d=d: e.valu(f"v_permlane16_swap_b32 {d[0]}, {d[2]}", dst=[d[0], d[2]], src=[d[0], d[2]], permlane=True))
            fs.append(lambda d=d: e.valu(f"v_permlane16_swap_b32 {d[1]}, {d[3]}", dst=[d[1], d[3]], src=[d[1], d[3]], permlane=True))
        return fs
    o13 = 40*(NQ - 1); qtail = []
    for b in range(10):
        lo = o13 + 4*(b+1) + 3
        if b < 8: spread(sg.gaps, qcvt(b), lo, min(o13 + 40, lo + 8))
        else: qtail += qcvt(b)
    sg.emit()
    g.stamp("Qdone")
    g.run(qtail)
    e.wait_lg_all(); e.barrier()
    for b in range(10):
        for u in range(2):
            e.ds_write("ds_write_b128", vQW, accQ(2*u, b), u*10240 + b*1024)
    for b in range(10): g.v1("v_mov_b32", vLs[b], 0)
    e.wait_lg_all(); e.barrier()
    if opt.dump == 'Q': return finish_dump(g)
    def vBf(f): return (vB0, f*1024) if f < 40 else (vB1, (f-40)*1024)

    if opt.fallback:
        e.raw(f"s_cmp_eq_u32 {sExact}, 0"); e.raw("s_cbranch_scc1 L_nosweep")
        snap = e.snapshot()
        e.wait_vm_all(); e.wait_lg_all()
        sp_, ka = S(36), V(172)
        kq = V(173)
        g.v2("v_and_b32", kq, 15, vL); g.v2("v_lshlrev_b32", kq, 9, kq)
        g.v2("v_lshrrev_b32", ka, 4, vL); g.v3("v_lshl_add_u32", ka, ka, 4, kq)
        g.s2("s_lshl_b32", S(37), sW, 14); g.v2("v_add_u32", ka, S(37), ka)
        g.s1("s_mov_b32", sp_, 0)
        e.label("L_sweep")
        fa = [V(112, 4), V(116, 4)]; fb = V(120, 4)
        for s in range(8):
            for tt in range(2):
                g.s2("s_add_u32", S(38), sp_, 8192*tt)
                e.gload("buffer_load_dwordx4", fa[tt], ka, sK, S(38), offset=64*s)
            for b in range(10):
                a_, o_ = vBf(s*10 + b)
                e.ds_read("ds_read_b128", fb, a_, o_)
                for tt in range(2):
                    e.mfma(accS(0, tt, b), fa[tt], fb, accS(0, tt, b) if s > 0 else 0)
                e.nop(4)
        for b in range(10):
            s0, s1 = accS(0, 0, b), accS(0, 1, b)
            g.v3("v_max3_f32", vM[b], vM[b], s0[0], s0[1]); g.v3("v_max3_f32", vM[b], vM[b], s0[2], s0[3])
            g.v3("v_max3_f32", vM[b], vM[b], s1[0], s1[1]); g.v3("v_max3_f32", vM[b], vM[b], s1[2], s1[3])
        e.wait_lg_all(); e.wait_vm_all()
        g.s2("s_add_u32", sp_, sp_, 65536); e.raw(f"s_cmp_lt_u32 {sp_}, 0x40000"); e.raw("s_cbranch_scc1 L_sweep")
        e.nop(8)
        for sw in ("v_permlane32_swap_b32", "v_permlane16_swap_b32"):
            for b in range(10):
                tb = V(112 + b)
                g.v1("v_mov_b32", tb, vM[b])
                e.valu(f"{sw} {tb}, {vM[b]}", dst=[tb, vM[b]], src=[tb, vM[b]], permlane=True)
                g.v2("v_max_f32", vM[b], tb, vM[b])
        e.nop(8)
        e.restore(snap)
        e.label("L_nosweep")
    g.stamp("Qepi")

    sg = Seg(g)
    mstart = {}
    gstart = {}
    for n in range(16):
        p, cb = n >> 2, n & 3
        mstart[n] = sg.nm; gstart[n] = len(sg.groups)
        for sp in range(2):
            s = 2*cb + sp
            for b in range(10):
                mf = [lambda B, b=b, tt=tt, p=p, s=s, sp=sp, cb=cb: e.mfma(accS(p, tt, b), aR[cb].sub(8*sp + 4*tt, 4), B, accS(p, tt, b) if s > 0 else 0) for tt in range(2)]
                sg.add_group(mf, vBf(s*10 + b))
    for j in range(16):
        n = 16 + j; c, wp = j >> 2, j & 3
        mstart[n] = sg.nm; gstart[n] = len(sg.groups)
        for b in range(10):
            mf = [lambda B, b=b, tt=tt, j=j, n=n: e.mfma(accO(tt, b), aR[n & 3].sub(4*tt, 4), B, accO(tt, b) if j > 0 else 0) for tt in range(4)]
            sg.add_group(mf, ((vB1 if (c & 1) else vB0), (wp*10 + b)*1024))
    gp = sg.gaps
    for n in range(32):
        o = mstart[n]
        if n >= 1:
            if n + 3 < 32: spread(gp, [C(f, 8) for f in rdR_mark(n + 3)], o + 1, o + 20)
            nd = n + 7; pre = []
            if nd == 16: pre = [lambda: g.v1("v_mov_b32", vD[0], vVb)] + [lambda jj=jj: g.v2("v_add_u32", vD[jj], 3072*jj, vVb) for jj in (1, 2, 3)]
            if nd == 32: pre = [lambda: g.v1("v_mov_b32", vDW[0], vWOb)] + [lambda jj=jj: g.v2("v_add_u32", vDW[jj], 6144*jj, vWOb) for jj in (1, 2, 3)]
            if nd <= 35: place(gp, pre + dma_after(n + 3, nd), o + 22)
    def Wreg(i):
        if i < 2: return A(136 + 16*i, 16)
        if i < 7: return V(176 + 16*(i-2), 16)
        if i == 7: return A(168, 16)
        if i < 14: return A(184 + 12*(i-8), 12)
        return aR[i-14].sub(0, 12)
    def rdW(i):
        n = 32 + i; nt_ = 4 if i < 8 else 3; W = Wreg(i); fs = [lambda: e.wait_vm(H[('r', n)])]
        for tt in range(nt_):
            for hf in range(2):
                fs.append(C(lambda tt=tt, hf=hf: e.ds_read("ds_read_b64_tr_b16", W.sub(4*tt + 2*hf, 2), vTv[tt], 4096*SLOT[n] + 2048*hf), 8))
        def mark(): RSEQ[n] = e.lg_issued
        return fs + [C(mark, 0)]
    ms = mstart
    spread(gp, rdW(0), ms[29] + 1, ms[29] + 16)
    place(gp, dma_after(32, 36), ms[29] + 17, 2)
    spread(gp, rdW(1), ms[29] + 24, ms[29] + 40)
    place(gp, dma_after(33, 37), ms[30] + 1, 2)
    spread(gp, rdW(2), ms[30] + 10, ms[30] + 26)
    place(gp, dma_after(34, 38), ms[30] + 27, 2)
    spread(gp, rdW(3), ms[31] + 1, ms[31] + 14)
    place(gp, dma_after(35, 39), ms[31] + 15, 2)
    spread(gp, rdW(4), ms[31] + 22, ms[31] + 36)
    place(gp, dma_after(36, 40), ms[31] + 36, 1)
    def max_ops():
        fs = []
        for b in range(10):
            s0, s1 = accS(0, 0, b), accS(0, 1, b)
            prs = ((s0[0], s0[1]), (s0[2], s0[3]), (s1[0], s1[1]), (s1[2], s1[3]))
            if opt.cheap_max: prs = prs[:1]
            for (x, y) in prs:
                fs.append(lambda b=b, x=x, y=y: g.v3("v_max3_f32", vM[b], vM[b], x, y))
        return fs
    def xreduce_ops(op, regs, lds_off):
        ta = vTmp; fs = []
        for sw in ("v_permlane32_swap_b32", "v_permlane16_swap_b32"):
            for b in range(10): fs.append(lambda b=b: g.v1("v_mov_b32", ta[b], regs[b]))
            for b in range(10):
                fs.append(lambda b=b, sw=sw: e.valu(f"{sw} {ta[b]}, {regs[b]}", dst=[ta[b], regs[b]], src=[ta[b], regs[b]], permlane=True))
            for b in range(10): fs.append(lambda b=b: g.v2(op, regs[b], ta[b], regs[b]))
        for b in range(10): fs.append(lambda b=b: e.ds_write("ds_write_b32", vSTW, regs[b], lds_off + 256*b))
        return fs
    def soft_ops(p):
        fs = []
        for b in range(10):
            z = [accS(p, tt, b)[r] for tt in range(2) for r in range(4)]
            mk = opt.soft_mask
            if 'f' in mk:
                for j in range(8): fs.append(lambda z=z, j=j, b=b: g.v3("v_fma_f32", z[j], z[j], sC, vM[b], neg_c=True))
            if 'e' in mk:
                for j in range(8): fs.append(C(lambda z=z, j=j: g.v1("v_exp_f32", z[j], z[j], trans=True), 8))
            if 'a' in mk:
                for j in range(8): fs.append(lambda z=z, j=j, b=b: g.v2("v_add_f32", vLs[b], vLs[b], z[j]))
            pk = park(p, b)
            if pk.f == 'v':
                for j in range(4): fs.append(lambda z=z, j=j, pk=pk: g.cvt(pk[j], z[2*j], z[2*j+1]))
            else:
                for j in range(4): fs.append(lambda z=z, j=j: g.cvt(z[2*j], z[2*j], z[2*j+1]))
                for j in range(4): fs.append(lambda z=z, j=j, pk=pk: g.accw(pk[j], z[2*j]))
        return fs
    def spread_steps(fs, steps, lo=0, hi=40, first_lo=None):
        l = first_lo if first_lo is not None else lo
        spread(gp, fs, mstart[steps[0]] + l, mstart[steps[-1]] + hi)
    if opt.cheap_max:
        pub = [lambda b=b: e.ds_write("ds_write_b32", vSTM, vM[b], 256*b) for b in range(10)]
        spread(gp, max_ops() + pub, mstart[4] + 2, mstart[4] + 24)
    else:
        spread(gp, max_ops() + xreduce_ops("v_max_f32", vM, 0), mstart[4] + 2, mstart[4] + 38)
    def bar_max():
        e.wait_lg_all(); e.barrier()
    gp.setdefault(mstart[4] + (27 if opt.cheap_max else 39), []).append(bar_max)
    st = [V(176 + 8*b + 4, 4) if False else V(112 + 4*b, 4) for b in range(10)]
    fs = [lambda b=b: e.ds_read("ds_read_b128", st[b], vSTR, 256*b) for b in range(10)]
    for b in range(10):
        fs.append(lambda b=b: g.v3("v_max3_f32", vM[b], st[b][0], st[b][1], st[b][2]))
        fs.append(lambda b=b: g.v2("v_max_f32", vM[b], vM[b], st[b][3]))
        fs.append(lambda b=b: g.v2("v_mul_f32", vM[b], sC, vM[b]))
    if opt.cheap_max:
        spread(gp, fs, mstart[4] + 28, mstart[5] + 4)
        spread_steps(soft_ops(0), [5, 6, 7], first_lo=4)
    else:
        spread(gp, fs, mstart[5] + 0, mstart[5] + 14)
        spread_steps(soft_ops(0), [5, 6, 7], first_lo=14)
    spread_steps(soft_ops(1), [8, 9, 10, 11])
    spread_steps(soft_ops(2), [12, 13, 14, 15])
    spread_steps(soft_ops(3), [16, 17, 18])
    def pwrite(c): return [lambda b=b, c=c: e.ds_write("ds_write_b128", vPW, park(c, b), (c & 1)*40960 + b*1024) for b in range(10)]
    def bar():
        e.wait_lg_all(); e.barrier()
    sg.preB.setdefault(gstart[14] + 0, []).append(bar)
    spread(gp, pwrite(0), mstart[14] + 4, mstart[15] + 16)
    sg.preB.setdefault(gstart[15] + 11, []).append(bar)
    sg.preB.setdefault(gstart[16] + 1, []).append(bar)
    spread(gp, pwrite(1), mstart[16] + 10, mstart[18] + 30)
    spread(gp, xreduce_ops("v_add_f32", vLs, 4096), mstart[18] + 39, mstart[19] + 11)
    sg.preB.setdefault(gstart[19] + 2, []).append(bar)
    spread(gp, pwrite(2), mstart[20] + 4, mstart[22] + 30)
    sg.preB.setdefault(gstart[23] + 2, []).append(bar)
    spread(gp, pwrite(3), mstart[24] + 4, mstart[26] + 30)
    sg.preB.setdefault(gstart[27] + 2, []).append(bar)
    stl = [V((216 if opt.inplace_p else 176) + 4*b, 4) for b in range(10)]
    fs = [lambda b=b: e.ds_read("ds_read_b128", stl[b], vSTR, 4096 + 256*b) for b in range(10)]
    for b in range(10):
        fs.append(lambda b=b: g.v2("v_add_f32", stl[b][0], stl[b][0], stl[b][1]))
        fs.append(lambda b=b: g.v2("v_add_f32", stl[b][2], stl[b][2], stl[b][3]))
        fs.append(lambda b=b: g.v2("v_add_f32", vLs[b], stl[b][0], stl[b][2]))
    if opt.fallback:
        ts = vTmp[1]
        fs.append(lambda: g.v2("v_add_f32", ts, vLs[0], vLs[1]))
        for b in range(2, 10): fs.append(lambda b=b: g.v2("v_add_f32", ts, ts, vLs[b]))
        def check():
            thr = 0.0 if opt.force_fb else 2.0**24
            g.s1("s_mov_b32", S(36), hex(f2u(thr)))
            e.valu(f"v_cmp_nge_f32 vcc, {S(36)}, {ts}", src=[S(36), ts])
            e.nop(4)
            e.raw("s_cmp_lg_u64 vcc, 0")
            e.raw(f"s_cselect_b32 s37, 1, 0")
            e.raw(f"s_andn2_b32 s37, s37, {sExact}")
            e.raw("s_cmp_lg_u32 s37, 0")
            e.raw("s_cbranch_scc1 L_fallback")
        fs.append(check)
    for b in range(10): fs.append(lambda b=b: g.v1("v_rcp_f32", vLs[b], vLs[b], trans=True))
    spread(gp, fs, mstart[20] + 0, mstart[21] + 20)
    if opt.warm_wo:
        def warm_wo():
            t_, s_ = vTmp[9], S(36)
            g.s2("s_mul_i32", s_, sBt, 224); g.s2("s_mul_i32", S(37), sW, 56); g.s2("s_add_u32", s_, s_, S(37))
            g.v2("v_add_u32", t_, s_, vL); g.v2("v_lshlrev_b32", t_, 7, t_)
            e.raw(f"buffer_load_dword {vDum}, {t_}, {sWO}, 0 offen"); e.vm_issued += 1
        gp.setdefault(mstart[int(opt.warm_at)] + 30, []).append(warm_wo)
    vOW0, vOW1 = V(17), V(31)
    otmp = V(164, 8)
    def opost(b):
        fs = []
        for u in range(2):
            tl = [accO(2*u + h2, b) for h2 in range(2)]
            if tl[0].f == 'a':
                z = [otmp[j] for j in range(8)]
                for h2 in range(2):
                    for r in range(4): fs.append(lambda h2=h2, r=r, tl=tl, z=z: g.accr(z[4*h2 + r], tl[h2][r]))
            else:
                z = [tl[h2][r] for h2 in range(2) for r in range(4)]
            for j in range(8): fs.append(lambda j=j, z=z, b=b: g.v2("v_mul_f32", z[j], z[j], vLs[b]))
            o4 = V(z[0].i, 4)
            for j in range(4): fs.append(lambda j=j, z=z, o4=o4: g.cvt(o4[j], z[2*j], z[2*j+1]))
            fs.append(C(lambda o4=o4, u=u, b=b: e.ds_write("ds_write_b128", vOW0 if b < 5 else vOW1, o4, (b % 5)*8192 + u*1024), 8))
        return fs
    def setup_ow():
        g.s2("s_lshl_b32", S(36), sW, 11); g.s2("s_add_u32", S(36), S(36), LDS_A)
        g.v2("v_lshlrev_b32", vOW0, 4, vL); g.v2("v_add_u32", vOW0, S(36), vOW0); g.v2("v_add_u32", vOW1, 40960, vOW0)
    gp.setdefault(mstart[26] + 2, []).append(C(setup_ow, 20))
    o31 = mstart[31]
    ptail = []
    for b in range(5):
        lo = o31 + 4*(b+1) + 3
        if b < 3: spread(gp, opost(b), lo, min(o31 + 40, lo + 12))
        else: ptail += opost(b)
    if opt.stamps:
        for n_, nm_ in ((4, "S0"), (8, "S1"), (12, "S2"), (16, "S3"), (20, "PV0"), (24, "PV1"), (28, "PV2")):
            gp.setdefault(mstart[n_] - 1, []).append(lambda nm_=nm_: g.stamp(nm_))
    sg.emit()
    g.stamp("PVdone")
    g.run(ptail)
    if opt.fused:
        e.raw("s_memrealtime s[92:93]"); e.raw("s_waitcnt lgkmcnt(0)"); e.lg_done = e.lg_issued
    e.wait_lg_all(); e.barrier()
    if opt.dump == 'O':
        for b in range(5, 10): g.run(opost(b))
        return finish_dump(g)
    g.stamp("Opost")

    sg = Seg(g); gp = sg.gaps
    accA = lambda b, t: V(32 + 16*(b & 1) + 4*t, 4)
    accB = lambda b, t: V(80 + 12*(b & 1) + 4*t, 4)
    bst = {}
    def Bsrc(b, j): return (vB0, (b*8 + j)*1024) if b < 5 else (vB1, ((b-5)*8 + j)*1024)
    for st in range(2):
        nt_ = 4 if st == 0 else 3; acc = accA if st == 0 else accB
        order = [(b, j) for b in range(10) for j in range(8)]
        if st == 0:
            order = [(0, j) for j in range(5)] + [(1, j) for j in range(5)] + [(0, j) for j in range(5, 8)] + [(1, j) for j in range(5, 8)] + order[16:]
        for (b, j) in order:
            if (st, b) not in bst: bst[(st, b)] = sg.nm
            W = Wreg(8*st + j)
            mf = [lambda B, b=b, tt=tt, j=j, W=W, acc=acc: e.mfma(acc(b, tt), W.sub(4*tt, 4), B, acc(b, tt) if j > 0 else 0) for tt in range(nt_)]
            sg.add_group(mf, Bsrc(b, j))
    bend = {(0, 0): 13*4, (0, 1): 16*4}
    for b in range(2, 10): bend[(0, b)] = bst[(0, b)] + 32
    for b in range(10): bend[(1, b)] = bst[(1, b)] + 24
    spread(gp, rdW(5), 0, 12)
    place(gp, dma_after(37, 41), 12, 3)
    spread(gp, rdW(6), 14, 30)
    spread(gp, rdW(7), 24, 42)
    place(gp, dma_after(38, 42), 31, 3)
    place(gp, dma_after(39, 43), 43, 3)
    for i in range(8, 16):
        lo = bst[(0, i - 6)] + 2
        spread(gp, rdW(i), lo, lo + 20)
        if 32 + i + 4 < 48: place(gp, dma_after(32 + i, 32 + i + 4), lo + 21, 3)
    u1 = []
    for b in range(5, 10): u1 += opost(b)
    spread(gp, u1, 0, bst[(0, 4)] - 1)
    sg.preB.setdefault(31, []).append(bar)
    def store_e(O, ee):
        g.s1("s_mov_b32", sO3, (ee >> 2)*4096)
        e.gstore("buffer_store_dwordx4", O, vWS, sWS, sO3, offset=(ee & 3)*1024, flags=opt.st_flags)
    kk = [0]
    def pair_epi(x, y, ee):
        O = V(64 + 4*(kk[0] & 3), 4); kk[0] += 1
        return [lambda: g.cvt(O[0], x[0], x[1]), lambda: g.cvt(O[1], x[2], x[3]), lambda: g.cvt(O[2], y[0], y[1]), lambda: g.cvt(O[3], y[2], y[3]),
                VM(C(lambda: store_e(O, ee), 8))]
    def epiA(b): return pair_epi(accA(b, 0), accA(b, 1), b) + pair_epi(accA(b, 2), accA(b, 3), 10 + b)
    def epiB(b):
        fs = pair_epi(accB(b, 0), accB(b, 1), 20 + b)
        O6 = V(104 + 4*((b >> 1) & 1), 4); d = accB(b, 2)
        fs += [lambda: g.cvt(O6[2*(b & 1)], d[0], d[1]), lambda: g.cvt(O6[2*(b & 1) + 1], d[2], d[3])]
        if b & 1: fs.append(VM(C(lambda: store_e(O6, 30 + (b >> 1)), 8)))
        return fs
    for b in range(10):
        nx = bend[(0, b)]
        hi = nx + 22 if b != 0 else 64 - 1
        spread(gp, epiA(b), nx + 3, hi)
    for b in range(9):
        nx = bend[(1, b)]
        spread(gp, epiB(b), nx + 3, nx + 20)
    tail = epiB(9)
    def signal(gen):
        lab = f"L_sig{gen}"
        e.raw(f"s_cmp_lg_u32 {sW}, 0"); e.raw(f"s_cbranch_scc1 {lab}")
        e.raw("s_mov_b64 exec, 1")
        e.raw(f"v_mov_b32 v30, {sTok[0]}"); e.raw(f"v_mov_b32 v31, {sTok[1]}")
        e.raw(f"s_lshl_b32 s36, {sH}, 3"); e.raw(f"s_add_u32 s36, s36, {sCnt}"); e.raw(f"s_add_u32 s36, s36, {4096*gen}")
        e.raw(f"buffer_store_dwordx2 v[30:31], off, {sDBG}, s36 sc1")
        e.raw("s_mov_b64 exec, -1")
        e.label(lab)
    if opt.fused:
        rd = Red(g)
        ST0 = {}
        def mark0(): ST0['seq'] = e.vm_issued
        gp.setdefault(bend[(0, 9)] + 23, []).append(C(mark0, 0))
        def sig0():
            e.wait_vm(ST0['seq']); e.barrier(); signal(0)
        b0 = int(opt.sig0_blk); b1 = int(opt.poll0_blk)
        gp.setdefault(bst[(1, b0)] + 4, []).append(C(sig0, 24))
        ldA = [V(112 + 4*h, 4) for h in range(16)]; ldB = [V(176 + 4*h, 4) for h in range(16)]
        vA0, vR0, vA1, vR1 = V(240), V(241), V(242), V(243)
        tq = [V(244), V(245), V(246), V(247)]
        def prep0():
            rd.setup_common(); rd.decode(0); rd.addr(vA0, vR0, tq)
        vt = V(248, 6)
        def prep0b():
            prep0(); rd.poll_setup(vt); rd.decode(1); rd.addr(vA1, vR1, tq)
            e.raw("s_mov_b32 s79, 0") if False else None
        gp.setdefault(bst[(1, 1)] + 12, []).append(C(prep0b, 100))
        EP = {}
        if opt.early0:
            pb = int(opt.epoll_blk)
            def epoll():
                e.raw(f"buffer_load_dwordx2 {vt.sub(2, 2)}, {vt[0]}, {sDBG}, {sCnt} offen sc1"); e.vm_issued += 1
                EP['seq'] = e.vm_issued
            gp.setdefault(bst[(1, pb)] + 2, []).append(VM(C(epoll, 4)))
            def echeck():
                e.wait_vm(EP['seq'])
                e.raw(f"v_subrev_co_u32 {vt[4]}, vcc, {sT0[0]}, {vt[2]}"); e.raw("s_nop 1")
                e.raw(f"v_subb_co_u32 {vt[5]}, vcc, {vt[3]}, {vt[1]}, vcc")
                e.raw(f"v_lshrrev_b32 {vt[4]}, 24, {vt[4]}"); e.raw(f"v_or_b32 {vt[4]}, {vt[4]}, {vt[5]}")
                e.raw(f"v_cmp_eq_u32 vcc, 0, {vt[4]}"); e.raw("s_nop 4")
                e.raw("s_or_b32 s44, vcc_lo, s43"); e.raw("s_and_b32 s44, s44, 0xffff")
                e.raw("s_cmp_eq_u32 s44, 0xffff"); e.raw(f"s_cselect_b32 {sE0}, 1, 0")
                e.raw(f"s_cmp_eq_u32 {sW}, 3"); e.raw(f"s_cselect_b32 {sE1}, {sE0}, 0")
            cb_ = pb + int(opt.echeck_d)
            gp.setdefault(bst[(1, cb_)] + 2, []).append(C(echeck, 48))
            def cond_loads(ld, vA, sflag):
                fs = []
                for h in range(16):
                    def f(h=h):
                        lab = f"L_cl{ld[0].i}_{h}"
                        e.raw(f"s_cmp_eq_u32 {sflag}, 0"); e.raw(f"s_cbranch_scc1 {lab}")
                        e.raw(f"s_mov_b32 {sO1}, {h*PART_UNIT}")
                        e.raw(f"buffer_load_dwordx4 {ld[h]}, {vA}, {rd.sRS}, {sO1} offen {opt.red_flags}")
                        e.label(lab)
                    fs.append(VM(C(f, 12)))
                return fs
            place(gp, cond_loads(ldA, vA0, sE0), bst[(1, cb_)] + 4, 2)
            place(gp, cond_loads(ldB, vA1, sE1), bst[(1, cb_)] + 5 + 32, 1) if False else None
        else:
            gp.setdefault(bst[(1, 2)] + 5, []).append(lambda: e.raw(f"s_mov_b32 {sE0}, 0"))
    sg.emit()
    g.stamp("outdone")
    g.run(tail)
    if opt.fused:
        acc = [V(64 + j) for j in range(8)]; tmp = [V(72 + j) for j in range(4)]
        ldC = [V(8 + 4*h, 4) if h < 14 else V(88 + 4*(h-14), 4) for h in range(16)]
        vA2, vR2 = V(254), V(255)
        def flags_to_s44():
            e.raw(f"v_subrev_co_u32 {vt[4]}, vcc, {sT0[0]}, {vt[2]}"); e.raw("s_nop 1")
            e.raw(f"v_subb_co_u32 {vt[5]}, vcc, {vt[3]}, {vt[1]}, vcc")
            e.raw(f"v_lshrrev_b32 {vt[4]}, 24, {vt[4]}"); e.raw(f"v_or_b32 {vt[4]}, {vt[4]}, {vt[5]}")
            e.raw(f"v_cmp_eq_u32 vcc, 0, {vt[4]}"); e.raw("s_nop 4")
            e.raw("s_or_b32 s44, vcc_lo, s43")
        def raw_loads(ld, vA):
            snap = e.snapshot(); g.run(rd.loads(ld, vA, sO1)); e.restore(snap)
            for r_ in [x for l_ in ld for x in l_.regs()]: e.pend.pop(r_, None)
        e.wait_vm_all(); e.barrier(); signal(1)
        g.stamp("sig1")
        rd.decode(2); rd.addr(vA2, vR2, tq)
        e.raw("s_mov_b32 s47, s38")
        e.raw(f"s_cmp_eq_u32 {sE0}, 1"); e.raw("s_cbranch_scc1 L_early0")
        rd.pollw("0", 0xffff, vt)
        raw_loads(ldA, vA0)
        e.label("L_early0")
        g.stamp("poll0")
        e.raw(f"s_cmp_lg_u32 {sW}, 3"); e.raw("s_cbranch_scc1 L_x1")
        raw_loads(ldB, vA1)
        e.label("L_x1")
        e.raw(f"buffer_load_dwordx2 {vt.sub(2, 2)}, {vt[0]}, {sDBG}, {sCnt} offen sc1")
        e.raw(f"s_cmp_eq_u32 {sE0}, 1"); e.raw("s_cbranch_scc1 L_x1c")
        e.raw("s_waitcnt vmcnt(0)")
        e.label("L_x1c")
        rd.sum_store(ldA, vR0, acc, tmp, V(76, 4))
        e.raw("s_waitcnt vmcnt(1)")
        flags_to_s44()
        e.raw("s_cmp_ge_u32 s47, 60"); e.raw("s_cbranch_scc1 L_x4")
        e.raw("s_lshr_b32 s51, s44, 16"); e.raw("s_cmp_eq_u32 s51, 0xffff"); e.raw("s_cbranch_scc1 L_x3")
        rd.pollw("1", 0xffff0000, vt)
        e.label("L_x3")
        raw_loads(ldC, vA2)
        e.label("L_x4")
        g.stamp("poll1")
        e.raw(f"s_cmp_lg_u32 {sW}, 3"); e.raw("s_cbranch_scc1 L_x2")
        snap = e.snapshot()
        rd.sum_store(ldB, vR1, acc, tmp, V(80, 4))
        e.restore(snap)
        e.label("L_x2")
        e.raw("s_cmp_ge_u32 s47, 60"); e.raw("s_cbranch_scc1 L_x5")
        e.raw("s_waitcnt vmcnt(0)"); e.vm_done = e.vm_issued
        rd.sum_store(ldC, vR2, acc, tmp, V(84, 4))
        e.label("L_x5")
    if opt.stamps:
        e.wait_vm_all()
        g.stamp("end")
        g.stamp_flush()
    if opt.fallback:
        e.raw("s_endpgm")
        e.label("L_fallback")
        e.raw("s_waitcnt vmcnt(0) lgkmcnt(0)")
        e.raw("s_barrier")
        e.raw(f"s_mov_b32 {sExact}, 1")
        e.raw("s_branch L_restart")
    e.label("L_k1_end")
    e.raw("s_endpgm")
    return e

class Red:
    def __init__(self, g):
        self.g = g; self.e = g.e
        self.sRS, self.sOS = S(4, 4), S(8, 4)
    def setup_common(self):
        g, e = self.g, self.e
        g.s2("s_mul_i32", S(41), sH, PART_UNIT)
        g.s2("s_sub_u32", self.sRS[0], sWS[0], S(41)); e.salu(f"s_subb_u32 {self.sRS[1]}, {sWS[1]}, 0")
        g.s1("s_mov_b32", self.sRS[2], 16*PART_UNIT); g.s1("s_mov_b32", self.sRS[3], "0x00020000")
        e.raw("s_load_dwordx2 s[8:9], s[0:1], 80"); e.raw("s_waitcnt lgkmcnt(0)"); e.lg_done = e.lg_issued
        g.s1("s_mov_b32", self.sOS[2], 1280*1792); g.s1("s_mov_b32", self.sOS[3], "0x00020000")
    def decode(self, slot):
        g, e = self.g, self.e
        sPi, sWp, sE = S(38), S(39), S(40)
        if slot == 1: g.s2("s_add_u32", sPi, sH, 64)
        else:
            g.s2("s_lshl_b32", sPi, sH, 2); g.s2("s_add_u32", sPi, sPi, sW)
        if slot < 2:
            g.s2("s_mul_hi_u32", sWp, sPi, 214748365); g.s2("s_mul_i32", sE, sWp, 20); g.s2("s_sub_u32", sE, sPi, sE)
        else:
            g.s2("s_mul_hi_u32", sWp, sPi, 286331154); g.s2("s_mul_i32", sE, sWp, 15); g.s2("s_sub_u32", sE, sPi, sE); g.s2("s_add_u32", sE, sE, 20)
    def addr(self, vA, vRow, tmp):
        g, e = self.g, self.e
        sWp, sE = S(39), S(40)
        q16, gg, t, u = tmp
        g.s2("s_mul_i32", S(45), sWp, PART_WAVE); g.s2("s_lshl_b32", S(46), sE, 10); g.s2("s_add_u32", S(45), S(45), S(46))
        g.v2("v_lshlrev_b32", vA, 4, vL); g.v2("v_add_u32", vA, S(45), vA)
        g.v2("v_and_b32", q16, 15, vL); g.v2("v_lshrrev_b32", gg, 4, vL)
        g.v2("v_and_b32", t, 1, gg); g.v2("v_lshrrev_b32", u, 1, gg); g.v2("v_lshlrev_b32", u, 3, u)
        sPP, sBlk = S(48), S(49)
        g.s2("s_mul_hi_u32", sPP, sE, 429496730)
        g.s2("s_mul_i32", sBlk, sPP, 10); g.s2("s_sub_u32", sBlk, sE, sBlk)
        g.s2("s_sub_u32", S(52), sE, 30); g.s2("s_lshl_b32", S(52), S(52), 1)
        g.s2("s_lshl_b32", S(53), sPP, 5)
        e.raw(f"s_cmp_lt_u32 {sE}, 30")
        e.raw(f"s_cselect_b32 s52, {sBlk}, s52"); e.raw("s_cselect_b32 s53, s53, 96")
        e.raw("s_cselect_b32 s54, 16, 0"); e.raw("s_cselect_b32 s55, 0, 16")
        g.s2("s_mul_i32", S(56), sBt, 160); g.s2("s_lshl_b32", S(52), S(52), 4); g.s2("s_add_u32", S(56), S(56), S(52))
        g.s2("s_mul_i32", S(50), sBr, 448); g.s2("s_mul_i32", S(58), sWp, 112); g.s2("s_add_u32", S(50), S(50), S(58)); g.s2("s_add_u32", S(50), S(50), S(53))
        g.v3("v_mad_u32_u24", vRow, t, S(55), q16); g.v2("v_add_u32", vRow, S(56), vRow)
        g.v3("v_mad_u32_u24", q16, t, S(54), u); g.v2("v_add_u32", q16, S(50), q16)
        g.s1("s_mov_b32", S(59), 1792)
        g.v2("v_lshlrev_b32", q16, 1, q16); g.v3("v_mad_u32_u24", vRow, vRow, S(59), q16)
    def loads(self, ld, vA, sreg):
        g, e = self.g, self.e; fs = []
        for h in range(16):
            def f(h=h):
                g.s1("s_mov_b32", sreg, h*PART_UNIT)
                e.gload("buffer_load_dwordx4", ld[h], vA, self.sRS, sreg, flags=opt.red_flags)
            fs.append(VM(C(f, 8)))
        return fs
    def sum_store(self, ld, vRow, acc, tmp, O):
        g, e = self.g, self.e
        for h in range(16):
            for j in range(4):
                if h == 0:
                    g.v2("v_lshlrev_b32", acc[2*j], 16, ld[h][j]); g.v2("v_and_b32", acc[2*j+1], "0xffff0000", ld[h][j])
                else:
                    a_, b_ = tmp[2*(j & 1)], tmp[2*(j & 1) + 1]
                    g.v2("v_lshlrev_b32", a_, 16, ld[h][j]); g.v2("v_and_b32", b_, "0xffff0000", ld[h][j])
                    g.v2("v_add_f32", acc[2*j], acc[2*j], a_); g.v2("v_add_f32", acc[2*j+1], acc[2*j+1], b_)
        for j in range(4): g.cvt(O[j], acc[2*j], acc[2*j+1])
        e.valu(f"v_permlane16_swap_b32 {O[0]}, {O[2]}", dst=[O[0], O[2]], src=[O[0], O[2]], permlane=True)
        e.valu(f"v_permlane16_swap_b32 {O[1]}, {O[3]}", dst=[O[1], O[3]], src=[O[1], O[3]], permlane=True)
        return e.gstore("buffer_store_dwordx4", O, vRow, self.sOS, None)
    def pollw(self, name, need, vt):
        e = self.e
        lab = f"L_pw{name}"
        e.raw(f"s_mov_b32 s42, {int(opt.spin)}")
        e.label(lab)
        e.raw(f"buffer_load_dwordx2 {vt.sub(2, 2)}, {vt[0]}, {sDBG}, {sCnt} offen sc1")
        e.raw("s_waitcnt vmcnt(0)")
        e.raw(f"v_subrev_co_u32 {vt[4]}, vcc, {sT0[0]}, {vt[2]}"); e.raw("s_nop 1")
        e.raw(f"v_subb_co_u32 {vt[5]}, vcc, {vt[3]}, {vt[1]}, vcc")
        e.raw(f"v_lshrrev_b32 {vt[4]}, 24, {vt[4]}"); e.raw(f"v_or_b32 {vt[4]}, {vt[4]}, {vt[5]}")
        e.raw(f"v_cmp_eq_u32 vcc, 0, {vt[4]}"); e.raw("s_nop 4")
        e.raw("s_or_b32 s44, vcc_lo, s43")
        e.raw(f"s_and_b32 s45, s44, {hex(need)}"); e.raw(f"s_cmp_eq_u32 s45, {hex(need)}"); e.raw(f"s_cbranch_scc1 {lab}_ok")
        e.raw("s_sub_u32 s42, s42, 1"); e.raw("s_cmp_eq_u32 s42, 0"); e.raw(f"s_cbranch_scc1 {lab}_ok")
        e.raw(f"s_sleep {int(opt.sleep)}")
        e.raw(f"s_branch {lab}")
        e.label(f"{lab}_ok")
    def poll_setup(self, vt):
        e = self.e
        e.raw(f"v_and_b32 {vt[0]}, 15, v1"); e.raw(f"v_lshlrev_b32 {vt[0]}, 3, {vt[0]}")
        e.raw(f"v_bfe_u32 {vt[1]}, v1, 4, 1"); e.raw(f"v_lshl_add_u32 {vt[0]}, {vt[1]}, 12, {vt[0]}")
        e.raw(f"v_mov_b32 {vt[1]}, {sT0[1]}")
        e.raw(f"s_lshl_b32 s43, 0x10001, {sH}")
    def poll(self, gen, vt):
        e = self.e
        lab = f"L_poll{gen}"
        e.raw(f"s_cmp_lg_u32 {sW}, 0"); e.raw(f"s_cbranch_scc1 {lab}_bar")
        e.raw(f"s_add_u32 s41, {sCnt}, {4096*gen}")
        e.raw(f"s_mov_b32 s42, {int(opt.spin)}")
        e.raw(f"v_and_b32 {vt[0]}, 15, v1"); e.raw(f"v_lshlrev_b32 {vt[0]}, 3, {vt[0]}"); e.raw(f"v_mov_b32 {vt[1]}, {sT0[1]}")
        e.label(lab)
        e.raw(f"buffer_load_dwordx2 {vt.sub(2, 2)}, {vt[0]}, {sDBG}, s41 offen sc1")
        e.raw("s_waitcnt vmcnt(0)")
        e.raw(f"v_subrev_co_u32 {vt[4]}, vcc, {sT0[0]}, {vt[2]}"); e.raw("s_nop 1")
        e.raw(f"v_subb_co_u32 {vt[5]}, vcc, {vt[3]}, {vt[1]}, vcc")
        e.raw(f"v_lshrrev_b32 {vt[4]}, 24, {vt[4]}"); e.raw(f"v_or_b32 {vt[4]}, {vt[4]}, {vt[5]}")
        e.raw(f"v_cmp_eq_u32 vcc, 0, {vt[4]}"); e.raw("s_nop 4")
        e.raw("s_cmp_eq_u64 vcc, -1"); e.raw(f"s_cbranch_scc1 {lab}_bar")
        e.raw("s_sub_u32 s42, s42, 1"); e.raw("s_cmp_eq_u32 s42, 0"); e.raw(f"s_cbranch_scc1 {lab}_bar")
        e.raw(f"s_sleep {int(opt.sleep)}")
        e.raw(f"s_branch {lab}")
        e.label(f"{lab}_bar")
        e.barrier()

def finish_dump(g):
    e = g.e
    e.wait_lg_all(); e.wait_vm_all(); e.barrier()
    t = V(240); u = V(244, 4)
    g.s2("s_mul_i32", S(38), sW, 20480)
    g.v2("v_lshlrev_b32", t, 4, vL); g.v2("v_add_u32", t, S(38), t)
    a = V(241); g.v2("v_add_u32", a, LDS_A, t)
    for i in range(20):
        e.ds_read("ds_read_b128", u, a, i*1024)
        g.s1("s_mov_b32", sO2, i*1024)
        e.gstore("buffer_store_dwordx4", u, t, sWS, sO2)
        e.wait_vm_all()
    e.label("L_fallback")
    e.label("L_k1_end")
    e.raw("s_endpgm")
    return e

import gen1
def assemble(path):
    k1 = build_k1()
    hdr = open("cdna_kernels/" + NAME + ".s.ref").read().split("; Override launch")[0]
    out = hdr
    KD = gen1.KD.replace("next_free_sgpr 96", "next_free_sgpr 102")
    if opt.fused:
        nm = NAME + "_kernel"
        out += f"; @launch grid=(256,1,1) block=(256,1,1) lds={LDS_TOTAL}\n"
        out += '.amdgcn_target "amdgcn-amd-amdhsa--gfx950"\n.text\n'
        out += f".globl {nm}\n.p2align 8\n.type {nm},@function\n{nm}:\n" + k1.text()
        out += '.section .rodata,"a"\n.p2align 6\n' + KD.format(name=nm, vgpr=512, acc=256)
    else:
        gen1.opt.k2_flags = opt.k2_flags; gen1.opt.stamps = opt.stamps
        k2 = gen1.build_k2()
        out += f"; @launch kernel=mha_k1_kernel grid=(256,1,1) block=(256,1,1) lds={LDS_TOTAL}\n"
        out += f"; @launch kernel=mha_k2_kernel grid=(560,1,1) block=(256,1,1) lds=0\n"
        out += '.amdgcn_target "amdgcn-amd-amdhsa--gfx950"\n.text\n'
        for nm, k in (("mha_k1_kernel", k1), ("mha_k2_kernel", k2)):
            out += f".globl {nm}\n.p2align 8\n.type {nm},@function\n{nm}:\n" + k.text()
        out += '.section .rodata,"a"\n.p2align 6\n' + KD.format(name="mha_k1_kernel", vgpr=512, acc=256)
        out += '.p2align 6\n' + KD.format(name="mha_k2_kernel", vgpr=96, acc=96)
    open(path, "w").write(out)
    if opt.stamps: print("STAMPS", ",".join(STAMPS))
    print("k1 stats", k1.stats, file=sys.stderr)

if __name__ == "__main__":
    path = sys.argv[1]
    for a in sys.argv[2:]:
        k, v = a.split("=")
        if v in ("True", "False"): v = (v == "True")
        elif v == "None": v = None
        setattr(opt, k, v)
    assemble(path)
```

```python
class R:
    __slots__ = ('f', 'i', 'n')
    def __init__(self, f, i, n=1):
        self.f = f; self.i = i; self.n = n
    def __str__(self):
        if self.n == 1: return f"{self.f}{self.i}"
        return f"{self.f}[{self.i}:{self.i+self.n-1}]"
    def regs(self):
        return [(self.f, self.i + k) for k in range(self.n)]
    def sub(self, k, n=1):
        assert k + n <= self.n, (self, k, n)
        return R(self.f, self.i + k, n)
    def __getitem__(self, k):
        return self.sub(k, 1)
def V(i, n=1): return R('v', i, n)
def A(i, n=1): return R('a', i, n)
def S(i, n=1): return R('s', i, n)

def regs_of(xs):
    out = []
    for x in xs:
        if isinstance(x, R): out += x.regs()
    return out

class Emit:
    def __init__(self):
        self.lines = []
        self.n = 0
        self.valu_w = {}
        self.trans_w = {}
        self.mfma_w = {}
        self.mfma_c = {}
        self.store_r = {}
        self.sgpr_valu_w = {}
        self.m0_w = -100
        self.lg_issued = 0; self.lg_done = 0
        self.vm_issued = 0; self.vm_done = 0
        self.pend = {}
        self.stats = {}
    def raw(self, text, states=1, kind='other'):
        self.lines.append("    " + text)
        self.n += states
        self.stats[kind] = self.stats.get(kind, 0) + 1
    def comment(self, text): self.lines.append("    ; " + text)
    def label(self, name): self.lines.append(name + ":")
    def nop(self, k):
        while k > 0:
            m = min(k, 16)
            self.raw(f"s_nop {m-1}", states=m, kind='nop'); k -= m
    def need_gap(self, since, gap):
        d = self.n - since - 1
        if d < gap: self.nop(gap - d)
    def wait_lg(self, seq):
        if seq <= self.lg_done: return
        cnt = min(15, self.lg_issued - seq)
        self.raw(f"s_waitcnt lgkmcnt({cnt})", kind='wait')
        self.lg_done = max(self.lg_done, self.lg_issued - cnt)
    def wait_vm(self, seq):
        if seq <= self.vm_done: return
        cnt = min(63, self.vm_issued - seq)
        self.raw(f"s_waitcnt vmcnt({cnt})", kind='wait')
        self.vm_done = max(self.vm_done, self.vm_issued - cnt)
    def wait_lg_all(self): self.wait_lg(self.lg_issued)
    def wait_vm_all(self): self.wait_vm(self.vm_issued)
    def _pend(self, regs):
        lg = 0; vm = 0
        for r in regs:
            p = self.pend.get(r)
            if p:
                if p[0] == 'lg': lg = max(lg, p[1])
                else: vm = max(vm, p[1])
        if lg: self.wait_lg(lg)
        if vm: self.wait_vm(vm)
        for r in regs: self.pend.pop(r, None)
    def _gap_for(self, table, regs, gap):
        m = -100
        for r in regs:
            x = table.get(r)
            if x is not None:
                if isinstance(x, tuple):
                    if len(x) > 2 and x[2]:
                        g2 = {8: 12, 6: 10, 3: 7}.get(gap, gap)
                        self.need_gap(x[0], g2); continue
                    x = x[0]
                m = max(m, x)
        if m > -100: self.need_gap(m, gap)
    def salu(self, text, w_m0=False, reads=()):
        rr = regs_of(reads)
        self._gap_for(self.sgpr_valu_w, rr, 3)
        self.raw(text, kind='salu')
        if w_m0: self.m0_w = self.n - 1
    def valu(self, text, dst=(), src=(), trans=False, permlane=False, sdst=()):
        d = regs_of(dst); s = regs_of(src)
        self._pend(d + s)
        self._gap_for(self.mfma_w, d + s, 8)
        self._gap_for(self.mfma_c, d, 3)
        self._gap_for(self.trans_w, s, 1)
        self._gap_for(self.store_r, d, 2)
        self._gap_for(self.sgpr_valu_w, [r for r in s if r[0] == 's'], 2)
        if permlane: self._gap_for(self.valu_w, d + s, 2)
        self.raw(text, kind='trans' if trans else 'valu')
        i = self.n - 1
        for r in d:
            self.valu_w[r] = i
            if trans: self.trans_w[r] = i
            else: self.trans_w.pop(r, None)
            self.mfma_w.pop(r, None)
        for r in regs_of(sdst): self.sgpr_valu_w[r] = i
    def readfirstlane(self, sd, v):
        self._pend(v.regs())
        self._gap_for(self.valu_w, v.regs(), 1)
        self._gap_for(self.mfma_w, v.regs(), 8)
        self.raw(f"v_readfirstlane_b32 {sd}, {v}", kind='valu')
        for r in sd.regs(): self.sgpr_valu_w[r] = self.n - 1
    def mfma(self, D, Aop, Bop, C):
        big = (D.n == 16)
        d = D.regs(); ab = Aop.regs() + Bop.regs()
        c = C.regs() if isinstance(C, R) else []
        self._pend(d + ab + c)
        self._gap_for(self.valu_w, ab + c, 2)
        self._gap_for(self.mfma_w, ab, 8)
        key = (D.f, D.i, D.n)
        bad = [r for r in c if r in self.mfma_w and self.mfma_w[r][1] != key]
        self._gap_for(self.mfma_w, bad, 6)
        badd = [r for r in d if r in self.mfma_w and self.mfma_w[r][1] != key]
        self._gap_for(self.mfma_w, badd, 8)
        self._gap_for(self.store_r, d, 2)
        op = "v_mfma_f32_32x32x16_bf16" if big else "v_mfma_f32_16x16x32_bf16"
        self.raw(f"{op} {D}, {Aop}, {Bop}, {C}", kind='mfma')
        i = self.n - 1
        for r in d:
            self.mfma_w[r] = (i, key, big); self.valu_w.pop(r, None); self.trans_w.pop(r, None)
        for r in c: self.mfma_c[r] = (i, None, big)
    def _memsrc(self, regs):
        self._pend(regs)
        self._gap_for(self.mfma_w, regs, 8)
    def ds_read(self, op, dst, addr, offset=0):
        assert 0 <= offset < 65536, offset
        d = dst.regs()
        self._memsrc(addr.regs())
        self._pend(d)
        self._gap_for(self.mfma_w, d, 8)
        self._gap_for(self.mfma_c, d, 3)
        self.raw(f"{op} {dst}, {addr}" + (f" offset:{offset}" if offset else ""), kind='ds_read')
        self.lg_issued += 1
        for r in d:
            self.pend[r] = ('lg', self.lg_issued); self.valu_w.pop(r, None); self.mfma_w.pop(r, None); self.trans_w.pop(r, None)
        return self.lg_issued
    def ds_write(self, op, addr, src, offset=0):
        assert 0 <= offset < 65536, offset
        self._memsrc(addr.regs() + src.regs())
        self.raw(f"{op} {addr}, {src}" + (f" offset:{offset}" if offset else ""), kind='ds_write')
        for r in src.regs(): self.store_r[r] = self.n - 1
        self.lg_issued += 1
        return self.lg_issued
    def dma(self, voff, srd, soff, offset=0, flags=""):
        assert 0 <= offset < 4096
        self._memsrc(voff.regs())
        self.need_gap(self.m0_w, 1)
        so = soff if soff is not None else 0
        sr = srd.regs() + (soff.regs() if isinstance(soff, R) else [])
        self._gap_for(self.sgpr_valu_w, sr, 5)
        self.raw(f"buffer_load_dwordx4 {voff}, {srd}, {so} offen" + (f" offset:{offset}" if offset else "") + (" " + flags if flags else "") + " lds", kind='dma')
        self.vm_issued += 1
        return self.vm_issued
    def gload(self, op, dst, voff, srd, soff, offset=0, flags=""):
        assert 0 <= offset < 4096
        self._memsrc(voff.regs())
        d = dst.regs(); self._pend(d)
        self._gap_for(self.mfma_w, d, 8); self._gap_for(self.mfma_c, d, 3)
        so = soff if soff is not None else 0
        sr = srd.regs() + (soff.regs() if isinstance(soff, R) else [])
        self._gap_for(self.sgpr_valu_w, sr, 5)
        self.raw(f"{op} {dst}, {voff}, {srd}, {so} offen" + (f" offset:{offset}" if offset else "") + (" " + flags if flags else ""), kind='gload')
        self.vm_issued += 1
        for r in d:
            self.pend[r] = ('vm', self.vm_issued); self.valu_w.pop(r, None); self.mfma_w.pop(r, None)
        return self.vm_issued
    def gstore(self, op, src, voff, srd, soff, offset=0, flags=""):
        assert 0 <= offset < 4096
        self._memsrc(voff.regs() + src.regs())
        so = soff if soff is not None else 0
        sr = srd.regs() + (soff.regs() if isinstance(soff, R) else [])
        self._gap_for(self.sgpr_valu_w, sr, 5)
        self.raw(f"{op} {src}, {voff}, {srd}, {so} offen" + (f" offset:{offset}" if offset else "") + (" " + flags if flags else ""), kind='gstore')
        self.vm_issued += 1
        i = self.n - 1
        for r in src.regs(): self.store_r[r] = i
        return self.vm_issued
    def snapshot(self):
        return (self.lg_issued, self.lg_done, self.vm_issued, self.vm_done, dict(self.pend))
    def restore(self, st):
        self.lg_issued, self.lg_done, self.vm_issued, self.vm_done = st[:4]
        self.pend = dict(st[4])
    def barrier(self):
        self.raw("s_barrier", kind='barrier')
    def text(self): return "\n".join(self.lines) + "\n"
```

```python
import sys, math, struct
from emit import *

NAME = "concat_heads__mha_block_cached__mha_block_cached__near_ridge"
LDS_M = 0; LDS_A = 16384; LDS_B = 98304; XS = 49152
LDS_TOTAL = 163840
PART_UNIT = 143360
PART_WAVE = 35840

class Opt:
    nt_kv = True
    st_flags = "sc1"
    k2_flags = ""
    dump = None
    stamps = False
    warm = False
    fallback = True
    force_fb = False
    pstamp = False
    only = None
    skip_dma = ''
    soft_mask = 'feacw'
    wait_batch = 4
    level = 8
    out_flags = ''
    wsched = 2
    pvstamp = False
    NR = 6
    rtst = False
    own_keep = True
    c_ds = 4
    c_dma = 16
    c_dsw = 12
    soft_pipe = True
    soft_d1 = 2
    soft_d2 = 4
    tr_gap = 1
    wlate = True
    skip_st = False
    ws_off = 0
    late_wq1 = True
    cheap_max = True
    inplace_p = True
    fused = True
    red_flags = 'sc1'
    spin = 20000
    sig0_blk = 9
    poll0_blk = 10
    early0 = False
    epoll_blk = 5
    echeck_d = 2
    sleep = 4
    code_pf = True
    pf_lines = 4
    vm_gap = 4
    qstamp = False
    rot = 1
    w_flags = ''
    wo_flags = ''
    warm_wo = False
    warm_at = 21
    kread = '{8:0,10:1,11:[2,3],12:4,13:5}'
    kfirst = '{2:0,4:1,6:2,8:3}'
    qa_lo = 20
opt = Opt()
STAMPS = []
def f2u(x): return struct.unpack("<I", struct.pack("<f", x))[0]

sX, sK, sV, sWQ, sWO, sWS = S(4,4), S(8,4), S(12,4), S(16,4), S(20,4), S(24,4)
sW, sRB, sWB, sXD, sO1, sO2, sC, sExact = S(28), S(29), S(30), S(31), S(32), S(33), S(34), S(35)
sH, sBt, sBr = S(60), S(61), S(62)
sO3 = S(57)
sDBG = S(96, 4)
sCnt = S(100)
sT0 = S(78, 2)
sE0, sE1 = S(62+39), S(35)
sTok = S(92, 2)
sXo = [S(64+c) for c in range(7)]
sWo = [S(71+c) for c in range(7)]

vL = V(1)
vB0, vB1, vK0, vK1 = V(2), V(3), V(4), V(5)
vTv = [V(6+i) for i in range(4)]
vD  = [V(10+i) for i in range(4)]
vVb, vWOb, vPW, vSTW, vSTR, vWS = V(14), V(15), V(16), V(18), V(19), V(20)
vM  = [V(21+i) for i in range(10)]
vSTM = V(31)
vDum = V(0)
vX0, vX1 = V(152), V(153)
vTq  = [V(154+i) for i in range(4)]
vDX  = [V(158+i) for i in range(5)]
vDWQ = [V(163+i) for i in range(4)]
vQW  = V(167)
vLs = [V(152+i) for i in range(10)]
vDW = [V(172+i) for i in range(4)]
vTmp = [V(162+i) for i in range(10)]
NB = 8
aB = [A(4*i, 4) for i in range(NB)]
aR = [A(32 + 16*i, 16) for i in range(4)] + [A(136 + 16*i, 16) for i in range(2)]
def Rs(n): return aR[n % 6]
aWQ = [[A(96 + 16*s + 4*t, 4) for t in range(4)] for s in range(2)]
def park(p, b):
    if opt.inplace_p and p == 0: return V(112 + 4*b, 4)
    if opt.inplace_p and p == 3: return V(176 + 4*b, 4)
    return A((208 if p == 1 else 168) + 4*b, 4)

def accQ(t, b):
    i = b*4 + t
    return V(32 + 4*i, 4) if i < 30 else V(176 + 4*(i-30), 4)
def accS(p, t, b): return V((32 if p % 2 == 0 else 176) + 8*b + 4*t, 4)
def accO(t, b):
    i = b*4 + t
    return V(32 + 4*i, 4) if i < 30 else A(96 + 4*(i-30), 4)
def accP0(t, b): return A(96 + 4*(b*4+t), 4)
def accP1(t, b): return V(32 + 4*(b*3+t), 4)

class G:
    def __init__(self):
        self.e = Emit(); self.nst = 0
    def v2(self, op, d, a, b):
        self.e.valu(f"{op} {d}, {a}, {b}", dst=[d], src=[x for x in (a, b) if isinstance(x, R)])
    def v1(self, op, d, a, trans=False):
        self.e.valu(f"{op} {d}, {a}", dst=[d], src=[a] if isinstance(a, R) else [], trans=trans)
    def v3(self, op, d, a, b, c, neg_c=False):
        cc = f"-{c}" if neg_c else f"{c}"
        self.e.valu(f"{op} {d}, {a}, {b}, {cc}", dst=[d], src=[x for x in (a, b, c) if isinstance(x, R)])
    def cvt(self, d, a, b):
        self.e.valu(f"v_cvt_pk_bf16_f32 {d}, {a}, {b}", dst=[d], src=[a, b])
    def accw(self, d, a):
        self.e.valu(f"v_accvgpr_write_b32 {d}, {a}", dst=[d], src=[a])
    def accr(self, d, a):
        self.e.valu(f"v_accvgpr_read_b32 {d}, {a}", dst=[d], src=[a])
    def s2(self, op, d, a, b):
        self.e.salu(f"{op} {d}, {a}, {b}", reads=[x for x in (a, b) if isinstance(x, R)])
    def s1(self, op, d, a):
        self.e.salu(f"{op} {d}, {a}", reads=[a] if isinstance(a, R) else [])
    def m0(self, sbase, imm):
        self.e.salu(f"s_add_u32 m0, {sbase}, {imm}", w_m0=True, reads=[sbase])
    m0state = None
    sstate = None
    def ensure(self, sbase, ldsoff, sreg, soff_imm):
        if self.sstate is None: self.sstate = {}
        if self.m0state != (str(sbase), ldsoff):
            self.m0(sbase, ldsoff); self.m0state = (str(sbase), ldsoff)
        key = (str(soff_imm[0]), soff_imm[1]) if isinstance(soff_imm, tuple) else soff_imm
        if self.sstate.get(str(sreg)) != key:
            if isinstance(soff_imm, tuple): self.s2("s_add_u32", sreg, soff_imm[0], soff_imm[1])
            else: self.s1("s_mov_b32", sreg, soff_imm)
            self.sstate[str(sreg)] = key
    def forget(self):
        self.m0state = None; self.sstate = {}
    def dma_group(self, voffs, srd, sbase, ldsoff, soff_imm, sreg, holder, key, flags=""):
        e = self.e; fs = []
        for i in range(len(voffs)):
            def f(i=i):
                kind = key[0] if key[0] != 'r' else ('k' if key[1] < 16 else ('v' if key[1] < 32 else 'o'))
                if kind in opt.skip_dma or (kind == 'wq' and 'q' in opt.skip_dma): holder[key] = e.vm_issued; return
                self.ensure(sbase, ldsoff + (4096 if i == 4 else 0), sreg, soff_imm)
                holder[key] = e.dma(voffs[i], srd, sreg, offset=(1024*i if i < 4 else 0), flags=flags)
            f.vm = True
            fs.append(C(f, int(opt.c_dma) + (8 if i == 0 else 0)))
        return fs
    def run(self, fs):
        for f in fs: f()
    def stamp(self, name):
        if not opt.stamps: return
        if opt.only and name not in opt.only.split(","): return
        i = self.nst; self.nst += 1; STAMPS.append(name)
        assert i < 12
        self.e.raw("s_memrealtime s[94:95]" if opt.rtst else "s_memtime s[94:95]"); self.e.raw("s_waitcnt lgkmcnt(0)"); self.e.raw(f"s_mov_b32 s{80+i}, s94")
        self.e.lg_done = self.e.lg_issued
    def stamp_flush(self):
        e = self.e
        e.raw("s_memrealtime s[94:95]"); e.raw("s_waitcnt lgkmcnt(0)")
        e.raw("s_load_dwordx2 s[36:37], s[0:1], 96"); e.raw("s_waitcnt lgkmcnt(0)")
        e.salu("s_add_u32 s36, s36, 0x4000000"); e.salu("s_addc_u32 s37, s37, 0")
        e.salu("s_mov_b32 s38, 0x100000"); e.salu("s_mov_b32 s39, 0x00020000")
        e.salu("s_lshl_b32 s40, s2, 8"); e.salu(f"s_lshl_b32 s41, {sW}, 6"); e.salu("s_add_u32 s40, s40, s41")
        z = V(170); d = V(171)
        self.v1("v_mov_b32", z, 0)
        for i, src in [(i, S(80+i)) for i in range(self.nst)] + [(15, S(94)), (14, S(78))]:
            self.v1("v_mov_b32", d, src); e.salu(f"s_add_u32 s41, s40, {4*i}")
            e.gstore("buffer_store_dword", d, z, S(36, 4), S(41))

def cost_of(f): return getattr(f, "cost", 4)
def C(f, c):
    f.cost = c; return f

def VM(f):
    f.vm = True; return f

class Gaps:
    def __init__(self):
        self.streams = []; self.fixed = {}
    def setdefault(self, k, d): return self.fixed.setdefault(k, d)

def spread(gaps, fs, start, end):
    if not fs: return
    assert end > start, (start, end)
    gaps.streams.append(dict(ops=list(fs), lo=start, hi=end))

def place(gaps, fs, start, step=None):
    if step is None: step = int(opt.vm_gap)
    pos = start
    for f in fs:
        gaps.setdefault(pos, []).append(f)
        if getattr(f, "vm", False): pos += step

def place_even(gaps, fs, start, end):
    n = len(fs)
    for k, f in enumerate(fs): gaps.setdefault(start + (k * (end - start)) // n, []).append(f)

def schedule(N, F, streams, base=8.0):
    out = {}
    for s_ in streams:
        s_["k"] = 0; s_["rem"] = sum(cost_of(f) for f in s_["ops"]); s_["hi"] = min(s_["hi"], N)
    pf = [0]*(N+1)
    for i in range(N): pf[i+1] = pf[i] + F[i]
    carry = 0.0
    last_vm = -100
    last_tr = -100
    VMG = int(opt.vm_gap)
    for i in range(N):
        act = [s_ for s_ in streams if s_["k"] < len(s_["ops"])]
        if not act: break
        L = base
        his = sorted(set(s_["hi"] for s_ in act if s_["hi"] > i))
        for h in his:
            need = pf[h] - pf[i] + sum(s_["rem"] for s_ in act if s_["hi"] <= h and s_["lo"] < h)
            lo = max(i, min(s_["lo"] for s_ in act if s_["hi"] <= h))
            need2 = pf[h] - pf[lo] + sum(s_["rem"] for s_ in act if s_["hi"] <= h)
            if lo <= i: L = max(L, need2 / (h - lo))
        budget = L - F[i] + carry
        placed = 0
        while True:
            cand = [s_ for s_ in streams if s_["k"] < len(s_["ops"]) and s_["lo"] <= i]
            def blocked(x):
                f_ = x["ops"][x["k"]]
                if getattr(f_, "trans", False) and i - last_tr < int(opt.tr_gap):
                    nt_ = sum(1 for q in x["ops"][x["k"]:] if getattr(q, "trans", False))
                    return (x["hi"] - i) * 1.0 / int(opt.tr_gap) > nt_
                if not getattr(f_, "vm", False) or i - last_vm >= VMG: return False
                nv = sum(1 for q in x["ops"][x["k"]:] if getattr(q, "vm", False))
                return (x["hi"] - i) > nv
            cand = [x for x in cand if not blocked(x)]
            if not cand: break
            cand.sort(key=lambda s_: (s_["hi"] - s_["rem"] / max(L - 2.0, 1.0), s_["hi"]))
            s_ = cand[0]
            f = s_["ops"][s_["k"]]; c = cost_of(f)
            forced = any(x["hi"] - 1 <= i for x in cand)
            if forced:
                s_ = [x for x in cand if x["hi"] - 1 <= i][0]; f = s_["ops"][s_["k"]]; c = cost_of(f)
            elif budget - placed < c - 1.99: break
            out.setdefault(i, []).append(f); s_["k"] += 1; s_["rem"] -= c; placed += c
            if getattr(f, "vm", False): last_vm = i
            if getattr(f, "trans", False): last_tr = i
        carry = max(-6.0, min(2.0, budget - placed))
    for s_ in streams: assert s_["k"] == len(s_["ops"]), (s_["lo"], s_["hi"], s_["k"], len(s_["ops"]))
    return out

class Seg:
    def __init__(self, g):
        self.g = g; self.groups = []
        self.gaps = Gaps()
        self.preB = {}
        self.nm = 0; self.gstart = []
    def add_group(self, mf, bsrc):
        self.gstart.append(self.nm); self.groups.append((mf, bsrc)); self.nm += len(mf)
    def emit(self, wait_batch=None):
        if wait_batch is None: wait_batch = int(opt.wait_batch)
        e = self.g.e; seq = {}
        n = len(self.groups); N = self.nm
        F = [0]*N
        for G in range(n):
            last = self.gstart[G] + len(self.groups[G][0]) - 1
            if G + NB < n: F[last] += int(opt.c_ds)
            if G % wait_batch == 0 and G > 0: F[self.gstart[G] - 1] += 4
        for k_, v_ in self.gaps.fixed.items(): F[k_] += sum(cost_of(f) for f in v_)
        sched = schedule(N, F, self.gaps.streams, base=float(opt.level))
        def rd(G):
            a, o = self.groups[G][1]
            seq[G] = e.ds_read("ds_read_b128", aB[G % NB], a, o)
        for G in range(min(NB, n)): rd(G)
        idx = 0
        for G, (mf, _) in enumerate(self.groups):
            if G % wait_batch == 0:
                last = min(n-1, G + wait_batch - 1)
                while last not in seq: last -= 1
                e.wait_lg(seq[last])
            for m in mf:
                m(aB[G % NB])
                for f in sched.get(idx, []): f()
                for f in self.gaps.fixed.get(idx, []): f()
                idx += 1
            for f in self.preB.get(G, []): f()
            if G + NB < n: rd(G + NB)

def build_k1():
    g = G(); e = g.e
    kvflag = "nt" if opt.nt_kv else ""
    H = {}
    e.raw("s_cmp_ge_u32 s2, 256"); e.raw("s_cbranch_scc1 L_k1_end")
    if opt.code_pf:
        nl = int(opt.pf_lines)
        e.raw("s_getpc_b64 s[36:37]")
        e.label("L_pc")
        e.raw("v_lshrrev_b32 v2, 6, v0")
        e.raw("s_lshr_b32 s38, s2, 3"); e.raw("s_lshl_b32 s38, s38, 2")
        e.raw("v_add_u32 v2, s38, v2")
        e.raw(f"v_and_b32 v3, {nl-1}, v0")
        e.raw(f"v_mad_u32_u24 v2, v2, {nl}, v3")
        e.raw("v_lshlrev_b32 v2, 7, v2")
        e.raw("s_mov_b32 s38, L_k1_end-L_pc-4")
        e.raw("v_min_u32 v2, s38, v2")
        e.raw("v_and_b32 v2, -4, v2")
        e.raw("global_load_dword v17, v2, s[36:37]")
        e.vm_issued += 1
    if opt.stamps:
        e.raw("s_memrealtime s[78:79]"); e.raw("s_waitcnt lgkmcnt(0)")
    g.stamp("start")
    e.raw("s_load_dwordx16 s[36:51], s[0:1], 0")
    e.raw("s_load_dwordx4 s[52:55], s[0:1], 64")
    e.raw("s_load_dwordx2 s[56:57], s[0:1], 96")
    if opt.fused and not opt.stamps: e.raw("s_memrealtime s[78:79]")
    g.s2("s_and_b32", S(58), S(2), 7); g.s2("s_lshr_b32", S(59), S(2), 3)
    g.s2("s_and_b32", sH, S(58), 3); g.s2("s_lshl_b32", sH, sH, 2)
    g.s2("s_and_b32", sBt, S(59), 3); g.s2("s_add_u32", sH, sH, sBt)
    g.s2("s_lshr_b32", sBt, S(59), 2); g.s2("s_lshr_b32", sBr, S(58), 2)
    rot = int(opt.rot)
    md = 6 if rot == 2 else 7
    if rot == 3:
        g.s2("s_and_b32", S(58), sH, 3); g.s2("s_lshr_b32", S(59), sBt, 1); g.s2("s_add_u32", S(58), S(58), S(59)); g.s2("s_lshl_b32", S(58), S(58), 1)
        for _ in range(2):
            e.raw(f"s_cmp_ge_u32 s58, {md}"); e.raw(f"s_cselect_b32 s59, {md}, 0"); g.s2("s_sub_u32", S(58), S(58), S(59))
    elif rot == 4:
        g.s2("s_and_b32", S(58), sH, 1); g.s2("s_lshr_b32", S(59), sBt, 2); g.s2("s_lshl_b32", S(59), S(59), 1); g.s2("s_add_u32", S(58), S(58), S(59)); g.s2("s_mul_i32", S(58), S(58), 2)
        for _ in range(2):
            e.raw(f"s_cmp_ge_u32 s58, {md}"); e.raw(f"s_cselect_b32 s59, {md}, 0"); g.s2("s_sub_u32", S(58), S(58), S(59))
    elif rot:
        g.s2("s_and_b32", S(58), sH, 3); g.s2("s_lshl_b32", S(58), S(58), 1); g.s2("s_add_u32", S(58), S(58), sBt)
        for _ in range(2):
            e.raw(f"s_cmp_ge_u32 s58, {md}"); e.raw(f"s_cselect_b32 s59, {md}, 0"); g.s2("s_sub_u32", S(58), S(58), S(59))
    else:
        g.s1("s_mov_b32", S(58), 0)
    for c in range(7):
        if rot == 2 and c == 0:
            g.s1("s_mov_b32", sXo[0], 0); g.s1("s_mov_b32", sWo[0], 0); continue
        g.s2("s_add_u32", S(59), S(58), c if rot != 2 else c - 1)
        e.raw(f"s_cmp_ge_u32 s59, {md if rot else 7}"); e.raw(f"s_cselect_b32 s63, {md if rot else 7}, 0"); g.s2("s_sub_u32", S(59), S(59), S(63))
        if rot == 2: g.s2("s_add_u32", S(59), S(59), 1)
        g.s2("s_lshl_b32", sXo[c], S(59), 7); g.s2("s_lshl_b32", sWo[c], S(59), 19)
    g.v2("v_lshrrev_b32", V(32), 6, V(0))
    e.readfirstlane(sW, V(32))
    g.s1("s_mov_b32", sExact, 0)
    g.s2("s_lshl_b32", sRB, sW, 14); g.s2("s_add_u32", sRB, sRB, LDS_B)
    g.s2("s_mul_i32", sWB, sW, 12288)
    g.s2("s_mul_i32", sXD, sW, 5120); g.s2("s_add_u32", sXD, sXD, XS)
    g.s1("s_mov_b32", sC, hex(f2u(math.log2(math.e) / 16.0)))
    g.v2("v_and_b32", vL, 63, V(0))
    P = [V(32+i) for i in range(16)]
    q16, gg, r4, c4, prow, pg, t, u, w_v = P[0], P[1], P[2], P[3], P[4], P[5], P[6], P[7], P[8]
    def lanefields():
        g.v2("v_and_b32", q16, 15, vL); g.v2("v_lshrrev_b32", gg, 4, vL)
        g.v3("v_bfe_u32", r4, vL, 2, 2); g.v2("v_and_b32", c4, 3, vL)
        g.v2("v_lshrrev_b32", prow, 3, vL); g.v2("v_and_b32", pg, 7, vL)
        g.v1("v_mov_b32", w_v, sW)
    s896 = S(63)
    def xwq_offsets():
        g.s1("s_mov_b32", s896, 896)
        for i in range(5):
            g.v3("v_mad_u32_u24", t, w_v, 5, i)
            g.v2("v_and_b32", u, 1, t); g.v3("v_lshl_add_u32", u, u, 2, gg)
            g.v2("v_xor_b32", u, u, pg); g.v2("v_lshlrev_b32", u, 4, u)
            g.v3("v_lshl_add_u32", t, t, 3, prow)
            g.v3("v_mad_u32_u24", vDX[i], t, s896, u)
            if 0 < i < 4: g.v2("v_subrev_u32", vDX[i], 1024*i, vDX[i])
        for par in range(2):
            g.v3("v_bfe_u32", u, prow, 1, 1)
            if par: g.v2("v_or_b32", u, 2, u)
            g.v2("v_lshlrev_b32", u, 1, u); g.v2("v_xor_b32", u, u, pg); g.v2("v_lshlrev_b32", u, 4, u)
            g.v3("v_lshl_add_u32", u, w_v, 7, u)
            g.v2("v_lshlrev_b32", t, 13, prow); g.v2("v_add_u32", vDWQ[par], t, u)
        for jj in (2, 3): g.v2("v_add_u32", vDWQ[jj], 64512*jj, vDWQ[jj & 1])
        g.v2("v_add_u32", vDWQ[1], 64512, vDWQ[1])
    lanefields(); xwq_offsets()
    e.raw("s_waitcnt lgkmcnt(0)")
    if opt.pstamp: g.stamp("karg")
    e.raw(f"s_cmp_eq_u32 {sBr}, 0")
    for (pa, pb) in [(36,46),(42,52),(38,48),(40,50),(44,54)]:
        e.raw(f"s_cselect_b32 s{pa}, s{pa}, s{pb}"); e.raw(f"s_cselect_b32 s{pa+1}, s{pa+1}, s{pb+1}")
    def srd(dst, plo, off_sreg, nrec):
        g.s2("s_add_u32", dst[0], S(plo), off_sreg); e.salu(f"s_addc_u32 {dst[1]}, s{plo+1}, 0")
        g.s1("s_mov_b32", dst[2], nrec); g.s1("s_mov_b32", dst[3], "0x00020000")
    t0, t1 = S(58), S(59)
    g.s2("s_mul_i32", t0, sBt, 143360); srd(sX, 36, t0, 143360)
    g.s2("s_lshl_b32", t1, sH, 9); g.s2("s_sub_u32", t0, 3670016, t1); srd(sWQ, 42, t1, t0)
    def first_dmas():
        g.forget()
        g.run(g.dma_group(vDX, sX, sXD, 0, (sXo[0], 0), sO1, H, ('x', 0), flags=opt.w_flags))
        g.run(g.dma_group(vDWQ, sWQ, sWB, 0, (sWo[0], 0), sO2, H, ('wq', 0), flags=opt.w_flags))
    snap0 = e.snapshot()
    first_dmas()
    g.s2("s_lshl_b32", t0, sBt, 4); g.s2("s_add_u32", t0, t0, sH)
    g.s2("s_lshl_b32", t1, t0, 18); srd(sK, 38, t1, 262144); srd(sV, 40, t1, 262144)
    g.s2("s_lshl_b32", t1, sBr, 7); g.s2("s_add_u32", t0, t0, t1)
    g.s2("s_mul_i32", t1, t0, PART_UNIT)
    if int(opt.ws_off): g.s2("s_add_u32", t1, t1, hex(int(opt.ws_off) << 20))
    srd(sWS, 56, t1, PART_UNIT)
    g.s2("s_mul_i32", t1, sH, 229376); srd(sWO, 44, t1, 229376)
    if opt.fused:
        g.s2("s_add_u32", sDBG[0], S(56), "0x3000000"); e.salu(f"s_addc_u32 {sDBG[1]}, s57, 0")
        g.s1("s_mov_b32", sDBG[2], 131072); g.s1("s_mov_b32", sDBG[3], "0x00020000")
        g.s2("s_lshl_b32", t1, sBr, 3); g.s2("s_add_u32", t1, t1, sBt); g.s2("s_lshl_b32", sCnt, t1, 13)
    e.raw("s_branch L_first")
    e.label("L_restart")
    e.restore(snap0)
    lanefields(); xwq_offsets()
    first_dmas()
    e.label("L_first")
    g.forget()
    if opt.warm:
        g.s2("s_mul_i32", t0, sBt, 56); g.s2("s_mul_i32", t1, sW, 14); g.s2("s_add_u32", t0, t0, t1)
        g.v2("v_lshrrev_b32", t, 2, vL); g.v2("v_add_u32", t, t0, t); g.v2("v_lshlrev_b32", t, 13, t)
        g.v3("v_lshl_add_u32", t, c4, 7, t)
        e.raw(f"buffer_load_dword {vDum}, {t}, {sWQ}, 0 offen"); e.vm_issued += 1
        g.s2("s_and_b32", t0, sH, 3); g.s2("s_mul_i32", t0, t0, 280); g.s2("s_mul_i32", t1, sW, 70); g.s2("s_add_u32", t0, t0, t1)
        g.v2("v_add_u32", u, t0, vL); g.v2("v_lshlrev_b32", u, 7, u)
        e.raw(f"buffer_load_dword {vDum}, {u}, {sX}, 0 offen"); e.vm_issued += 1
    if opt.pstamp: g.stamp("warm")
    if not opt.late_wq1: g.run(g.dma_group(vDWQ, sWQ, sWB, 4096, (sWo[0], 262144), sO2, H, ('wq', 1), flags=opt.w_flags))
    if opt.pstamp: g.stamp("wq12")
    for par in range(2):
        g.v2("v_add_u32", u, 4*par, gg); g.v2("v_xor_b32", u, u, pg); g.v2("v_lshlrev_b32", u, 4, u)
        g.v3("v_lshl_add_u32", t, w_v, 5, prow); g.v2("v_lshlrev_b32", t, 9, t)
        g.v2("v_add_u32", vD[par], t, u)
    for jj in (2, 3): g.v2("v_add_u32", vD[jj], 3072*jj, vD[jj & 1])
    g.v2("v_add_u32", vD[1], 3072, vD[1])
    SLOT = {n: n & 3 for n in range(22)}
    SLOT.update({n: n & 3 for n in range(22, 48)})
    def dma_n(n):
        if n < 16:   return g.dma_group(vD, sK, sRB, 4096*SLOT[n], 65536*(n >> 2) + 128*(n & 3), sO1, H, ('r', n), flags=kvflag)
        if n < 32:   return g.dma_group(vD, sV, sRB, 4096*SLOT[n], 16384*(n-16), sO1, H, ('r', n), flags=kvflag)
        i = n - 32
        return g.dma_group(vDW, sWO, sRB, 4096*SLOT[n], 28672*(i % 8) + 128*(i // 8), sO2, H, ('r', n), flags=opt.wo_flags)
    def switchD(base):
        return [lambda jj=jj: (g.v1("v_mov_b32", vD[0], base) if jj == 0 else g.v2("v_add_u32", vD[jj], base[1]*jj, base[0])) for jj in range(4)]
    gv = P[9]
    g.v3("v_bfe_u32", u, prow, 1, 2); g.v2("v_lshlrev_b32", u, 1, u); g.v2("v_xor_b32", u, u, pg); g.v2("v_lshlrev_b32", gv, 4, u)
    g.v2("v_lshlrev_b32", u, 9, prow); g.v2("v_add_u32", u, u, gv); g.v3("v_lshl_add_u32", vVb, w_v, 7, u)
    s224 = S(58); g.s1("s_mov_b32", s224, 224)
    g.v3("v_mad_u32_u24", u, prow, s896, gv); g.v3("v_mad_u32_u24", vWOb, w_v, s224, u)
    g.v2("v_lshlrev_b32", t, 4, vL); g.v2("v_add_u32", vB0, LDS_A, t); g.v2("v_add_u32", vB1, LDS_A + 40960, t)
    g.v2("v_lshrrev_b32", u, 1, q16)
    for sp, (vx, vk) in enumerate([(vX0, vK0), (vX1, vK1)]):
        g.v2("v_add_u32", t, 4*sp, gg); g.v2("v_xor_b32", t, t, u); g.v2("v_lshlrev_b32", t, 4, t)
        g.v3("v_lshl_add_u32", t, q16, 7, t)
        g.v2("v_add_u32", vx, XS, t); g.v2("v_add_u32", vk, sRB, t)
    phq, phv, base = P[10], P[11], P[12]
    g.v2("v_lshrrev_b32", u, 1, r4)
    g.v2("v_and_b32", t, 1, gg); g.v3("v_lshl_or_b32", phq, t, 1, u)
    g.v3("v_lshl_add_u32", phv, gg, 1, u); g.v2("v_and_b32", phv, 3, phv)
    g.v3("v_lshl_add_u32", base, gg, 3, r4); g.v2("v_lshlrev_b32", base, 7, base); g.v3("v_lshl_add_u32", base, c4, 3, base)
    g.v2("v_add_u32", base, sWB, base)
    for tt in range(4):
        g.v2("v_xor_b32", t, tt, phq); g.v3("v_lshl_add_u32", vTq[tt], t, 5, base)
    g.v3("v_lshl_add_u32", base, gg, 2, r4); g.v2("v_lshlrev_b32", base, 7, base); g.v3("v_lshl_add_u32", base, c4, 3, base)
    g.v2("v_add_u32", base, sRB, base)
    for tt in range(4):
        g.v2("v_xor_b32", t, tt, phv); g.v3("v_lshl_add_u32", vTv[tt], t, 5, base)
    sA = S(59); g.s2("s_mul_i32", sA, sW, 20480); g.s2("s_add_u32", sA, sA, LDS_A)
    g.v2("v_lshrrev_b32", t, 1, gg); g.v2("v_and_b32", u, 1, gg); g.v3("v_lshl_or_b32", t, u, 1, t)
    g.v2("v_lshlrev_b32", t, 8, t); g.v3("v_lshl_add_u32", t, q16, 4, t); g.v2("v_add_u32", vQW, sA, t)
    g.v2("v_lshlrev_b32", t, 4, vL)
    g.s2("s_mul_i32", sA, sW, 10240); g.s2("s_add_u32", sA, sA, LDS_A); g.v2("v_add_u32", vPW, sA, t)
    g.s2("s_lshl_b32", sA, sW, 10); g.v2("v_add_u32", vWS, sA, t)
    g.v2("v_lshlrev_b32", vSTR, 4, q16); g.s2("s_lshl_b32", sA, sW, 2); g.v2("v_add_u32", vSTW, sA, vSTR)
    g.v2("v_lshlrev_b32", t, 2, vL); g.v2("v_add_u32", t, 8192, t)
    e.valu(f"v_cmp_eq_u32 vcc, 0, {gg}", src=[gg]); e.nop(2)
    e.valu(f"v_cndmask_b32 {vSTM}, {t}, {vSTW}, vcc", dst=[vSTM], src=[t, vSTW])
    for b in range(10): g.v1("v_mov_b32", vM[b], "0xff800000")

    def rdR(n):
        slot = n & 3; ls = SLOT[n]; fs = []
        if n < 16:
            for sp in range(2):
                for tt in range(2):
                    fs.append(lambda sp=sp, tt=tt: e.ds_read("ds_read_b128", Rs(n).sub(8*sp + 4*tt, 4), (vK0, vK1)[sp], 4096*ls + 2048*tt))
        else:
            for tt in range(4):
                for hf in range(2):
                    fs.append(lambda tt=tt, hf=hf: e.ds_read("ds_read_b64_tr_b16", Rs(n).sub(4*tt + 2*hf, 2), vTv[tt], 4096*ls + 2048*hf))
        return [lambda: e.wait_vm(H[('r', n)])] + fs
    RSEQ = {}
    def rdR_mark(n):
        fs = rdR(n)
        def mark(): RSEQ[n] = e.lg_issued
        return fs + [mark]
    def dma_after(n_read, n_dma):
        return [lambda: e.wait_lg(RSEQ[n_read])] + dma_n(n_dma)

    g.stamp("prolog")
    def rdA_wq(s):
        fs = []
        for tt in range(4):
            for hf in range(2):
                fs.append(lambda tt=tt, hf=hf: e.ds_read("ds_read_b64_tr_b16", aWQ[s & 1][tt].sub(2*hf, 2), vTq[tt], 4096*(s % 3) + 512*hf))
        return fs
    if opt.late_wq1:
        W0 = H[('wq', 0)]
        g.run(g.dma_group(vDWQ, sWQ, sWB, 4096, (sWo[0], 262144), sO2, H, ('wq', 1), flags=opt.w_flags))
    e.wait_vm(H[('wq', 0)])
    e.barrier()
    g.stamp("firstdata")
    g.run(rdA_wq(0))
    sg = Seg(g)
    NQ = 14
    for s in range(NQ):
        for b in range(10):
            mf = [lambda B, b=b, tt=tt, s=s: e.mfma(accQ(tt, b), aWQ[s & 1][tt], B, accQ(tt, b) if s > 0 else 0) for tt in range(4)]
            sg.add_group(mf, ((vX0, vX1)[s & 1], 20480*((s >> 1) & 1) + 2048*b))
    kread = eval(str(opt.kread))
    kfirst = eval(str(opt.kfirst))
    for s in range(NQ):
        o = 40*s; nxt = s + 1
        if s == 0:
            place(sg.gaps, g.dma_group(vDWQ, sWQ, sWB, 4096*2, (sWo[1], 0), sO2, H, ('wq', 2), flags=opt.w_flags), o + 0, 2)
            place(sg.gaps, g.dma_group(vDX, sX, sXD, 20480, (sXo[1], 0), sO1, H, ('x', 1), flags=opt.w_flags), o + 8, 3)
        if nxt < NQ:
            spread(sg.gaps, [lambda nxt=nxt: e.wait_vm(H[('wq', nxt)])] + [C(f, int(opt.c_ds)) for f in rdA_wq(nxt)], o + int(opt.qa_lo), o + 38)
            if nxt % 2 == 0:
                c = nxt // 2
                def bar(c=c):
                    e.wait_vm(H[('x', c)]); e.wait_lg_all(); e.barrier()
                sg.preB.setdefault(10*s + 2, []).append(bar)
                if c + 1 < 7:
                    place(sg.gaps, g.dma_group(vDX, sX, sXD, 20480*((c+1) & 1), (sXo[c+1], 0), sO1, H, ('x', c+1), flags=opt.w_flags), o + 19)
        if s + 3 < NQ:
            lo = 24 if s == 0 else 3
            place(sg.gaps, g.dma_group(vDWQ, sWQ, sWB, 4096*(s % 3), (sWo[(s+3) >> 1], 262144*((s+3) & 1)), sO2, H, ('wq', s+3), flags=opt.w_flags), o + lo)
        if s in kfirst:
            assert s % 2 == 0 or s >= 11
            place(sg.gaps, dma_n(kfirst[s]), o + 22)
        if s in kread:
            lst = kread[s] if isinstance(kread[s], (list, tuple)) else [kread[s]]
            for k_, n in enumerate(lst):
                if len(lst) == 1:
                    spread(sg.gaps, [C(f, int(opt.c_ds)) for f in rdR_mark(n)], o + 2, o + 18)
                    place(sg.gaps, dma_after(n, n + 4), o + 22)
                else:
                    spread(sg.gaps, [C(f, int(opt.c_ds)) for f in rdR_mark(n)], o + 1 + 20*k_, o + 7 + 20*k_)
                    place(sg.gaps, dma_after(n, n + 4), o + 8 + 20*k_, 3)
    if opt.qstamp:
        for s_ in range(1, 14): sg.gaps.setdefault(40*s_ - 1, []).append(lambda s_=s_: g.stamp(f"q{s_-1}"))
    def qcvt(b):
        fs = []
        for u in range(2):
            d, d2 = accQ(2*u, b), accQ(2*u + 1, b)
            fs.append(lambda d=d: g.cvt(d[0], d[0], d[1])); fs.append(lambda d=d: g.cvt(d[1], d[2], d[3]))
            fs.append(lambda d=d, d2=d2: g.cvt(d[2], d2[0], d2[1])); fs.append(lambda d=d, d2=d2: g.cvt(d[3], d2[2], d2[3]))
            fs.append(lambda d=d: e.valu(f"v_permlane16_swap_b32 {d[0]}, {d[2]}", dst=[d[0], d[2]], src=[d[0], d[2]], permlane=True))
            fs.append(lambda d=d: e.valu(f"v_permlane16_swap_b32 {d[1]}, {d[3]}", dst=[d[1], d[3]], src=[d[1], d[3]], permlane=True))
        return fs
    o13 = 40*(NQ - 1); qtail = []
    for b in range(10):
        lo = o13 + 4*(b+1) + 3
        if b < 8: spread(sg.gaps, qcvt(b), lo, min(o13 + 40, lo + 8))
        else: qtail += qcvt(b)
    sg.emit()
    g.stamp("Qdone")
    g.run(qtail)
    e.wait_lg_all(); e.barrier()
    for b in range(10):
        for u in range(2):
            e.ds_write("ds_write_b128", vQW, accQ(2*u, b), u*10240 + b*1024)
    for b in range(10): g.v1("v_mov_b32", vLs[b], 0)
    e.wait_lg_all(); e.barrier()
    if opt.dump == 'Q': return finish_dump(g)
    def vBf(f): return (vB0, f*1024) if f < 40 else (vB1, (f-40)*1024)

    if opt.fallback:
        e.raw(f"s_cmp_eq_u32 {sExact}, 0"); e.raw("s_cbranch_scc1 L_nosweep")
        snap = e.snapshot()
        e.wait_vm_all(); e.wait_lg_all()
        sp_, ka = S(36), V(172)
        kq = V(173)
        g.v2("v_and_b32", kq, 15, vL); g.v2("v_lshlrev_b32", kq, 9, kq)
        g.v2("v_lshrrev_b32", ka, 4, vL); g.v3("v_lshl_add_u32", ka, ka, 4, kq)
        g.s2("s_lshl_b32", S(37), sW, 14); g.v2("v_add_u32", ka, S(37), ka)
        g.s1("s_mov_b32", sp_, 0)
        e.label("L_sweep")
        fa = [V(112, 4), V(116, 4)]; fb = V(120, 4)
        for s in range(8):
            for tt in range(2):
                g.s2("s_add_u32", S(38), sp_, 8192*tt)
                e.gload("buffer_load_dwordx4", fa[tt], ka, sK, S(38), offset=64*s)
            for b in range(10):
                a_, o_ = vBf(s*10 + b)
                e.ds_read("ds_read_b128", fb, a_, o_)
                for tt in range(2):
                    e.mfma(accS(0, tt, b), fa[tt], fb, accS(0, tt, b) if s > 0 else 0)
                e.nop(4)
        for b in range(10):
            s0, s1 = accS(0, 0, b), accS(0, 1, b)
            g.v3("v_max3_f32", vM[b], vM[b], s0[0], s0[1]); g.v3("v_max3_f32", vM[b], vM[b], s0[2], s0[3])
            g.v3("v_max3_f32", vM[b], vM[b], s1[0], s1[1]); g.v3("v_max3_f32", vM[b], vM[b], s1[2], s1[3])
        e.wait_lg_all(); e.wait_vm_all()
        g.s2("s_add_u32", sp_, sp_, 65536); e.raw(f"s_cmp_lt_u32 {sp_}, 0x40000"); e.raw("s_cbranch_scc1 L_sweep")
        e.nop(8)
        for sw in ("v_permlane32_swap_b32", "v_permlane16_swap_b32"):
            for b in range(10):
                tb = V(112 + b)
                g.v1("v_mov_b32", tb, vM[b])
                e.valu(f"{sw} {tb}, {vM[b]}", dst=[tb, vM[b]], src=[tb, vM[b]], permlane=True)
                g.v2("v_max_f32", vM[b], tb, vM[b])
        e.nop(8)
        e.restore(snap)
        e.label("L_nosweep")
    g.stamp("Qepi")

    sg = Seg(g)
    mstart = {}
    gstart = {}
    for n in range(16):
        p, cb = n >> 2, n & 3
        mstart[n] = sg.nm; gstart[n] = len(sg.groups)
        for sp in range(2):
            s = 2*cb + sp
            for b in range(10):
                mf = [lambda B, b=b, tt=tt, p=p, s=s, sp=sp, cb=cb: e.mfma(accS(p, tt, b), Rs(4*p + cb).sub(8*sp + 4*tt, 4), B, accS(p, tt, b) if s > 0 else 0) for tt in range(2)]
                sg.add_group(mf, vBf(s*10 + b))
    for j in range(16):
        n = 16 + j; c, wp = j >> 2, j & 3
        mstart[n] = sg.nm; gstart[n] = len(sg.groups)
        for b in range(10):
            mf = [lambda B, b=b, tt=tt, j=j, n=n: e.mfma(accO(tt, b), Rs(n).sub(4*tt, 4), B, accO(tt, b) if j > 0 else 0) for tt in range(4)]
            sg.add_group(mf, ((vB1 if (c & 1) else vB0), (wp*10 + b)*1024))
    gp = sg.gaps
    LA = 5
    for n in range(32):
        o = mstart[n]
        if n >= 1:
            if n + LA < 32: spread(gp, [C(f, int(opt.c_ds)) for f in rdR_mark(n + LA)], o + 1, o + 20)
            nd = n + LA + 4; pre = []
            if nd == 16: pre = [lambda: g.v1("v_mov_b32", vD[0], vVb)] + [lambda jj=jj: g.v2("v_add_u32", vD[jj], 3072*jj, vVb) for jj in (1, 2, 3)]
            if nd == 32: pre = [lambda: g.v1("v_mov_b32", vDW[0], vWOb)] + [lambda jj=jj: g.v2("v_add_u32", vDW[jj], 6144*jj, vWOb) for jj in (1, 2, 3)]
            if nd <= 35: place(gp, pre + dma_after(n + LA, nd), o + 22)
    def Wreg(i):
        if i < 2: return A(208 + 16*i, 16)
        if i < 4: return V(224 + 16*(i-2), 16)
        if i < 7: return V(176 + 16*(i-4), 16)
        if i == 7: return A(168, 16)
        if i < 14: return aR[i-8].sub(0, 12)
        return A(184 + 12*(i-14), 12)
    def rdW(i):
        n = 32 + i; nt_ = 4 if i < 8 else 3; W = Wreg(i); fs = [lambda: e.wait_vm(H[('r', n)])]
        for tt in range(nt_):
            for hf in range(2):
                fs.append(C(lambda tt=tt, hf=hf: e.ds_read("ds_read_b64_tr_b16", W.sub(4*tt + 2*hf, 2), vTv[tt], 4096*SLOT[n] + 2048*hf), int(opt.c_ds)))
        def mark(): RSEQ[n] = e.lg_issued
        return fs + [C(mark, 0)]
    ms = mstart
    WS = {0: ([(27, 4), (27, 24), (28, 4), (28, 24)], [(29, 10), (30, 2), (30, 22), (31, 2)]),
          1: ([(27, 14), (28, 6), (28, 26), (29, 6)], [(30, 2), (30, 22), (31, 2), (31, 20)]),
          2: ([(28, 4), (28, 24), (29, 4), (29, 24)], [(30, 10), (31, 0), (31, 14), (31, 26)])}[int(opt.wsched)]
    for i, (st_, lo) in enumerate(WS[0]):
        spread(gp, rdW(i), ms[st_] + lo, ms[st_] + lo + 10)
        place(gp, dma_after(32 + i, 36 + i), ms[st_] + lo + 10, 1)
    for i, (st_, lo) in enumerate(WS[1]):
        spread(gp, rdW(4 + i), ms[st_] + lo, ms[st_] + lo + 10)
        place(gp, dma_after(36 + i, 40 + i), min(ms[st_] + lo + 10, ms[31] + 36), 1)
    def max_ops():
        fs = []
        for b in range(10):
            s0, s1 = accS(0, 0, b), accS(0, 1, b)
            prs = ((s0[0], s0[1]), (s0[2], s0[3]), (s1[0], s1[1]), (s1[2], s1[3]))
            if opt.cheap_max: prs = prs[:1]
            for (x, y) in prs:
                fs.append(lambda b=b, x=x, y=y: g.v3("v_max3_f32", vM[b], vM[b], x, y))
        return fs
    def xreduce_ops(op, regs, lds_off):
        ta = vTmp; fs = []
        for sw in ("v_permlane32_swap_b32", "v_permlane16_swap_b32"):
            for b in range(10): fs.append(lambda b=b: g.v1("v_mov_b32", ta[b], regs[b]))
            for b in range(10):
                fs.append(lambda b=b, sw=sw: e.valu(f"{sw} {ta[b]}, {regs[b]}", dst=[ta[b], regs[b]], src=[ta[b], regs[b]], permlane=True))
            for b in range(10): fs.append(lambda b=b: g.v2(op, regs[b], ta[b], regs[b]))
        for b in range(10): fs.append(lambda b=b: e.ds_write("ds_write_b32", vSTW, regs[b], lds_off + 256*b))
        return fs
    def soft_ops(p):
        Z = [(b, j) for b in range(10) for j in range(8)]
        def z(b, j): return accS(p, j >> 2, b)[j & 3]
        def fma(i): b, j = Z[i]; return lambda: g.v3("v_fma_f32", z(b, j), z(b, j), sC, vM[b], neg_c=True)
        def ex(i):
            b, j = Z[i]; f = C(lambda: g.v1("v_exp_f32", z(b, j), z(b, j), trans=True), 8); f.trans = True; return f
        def add(i): b, j = Z[i]; return lambda: g.v2("v_add_f32", vLs[b], vLs[b], z(b, j))
        def pack(i):
            b, j = Z[i]; pk = park(p, b); k = j >> 1
            if pk.f == 'v': return [lambda: g.cvt(pk[k], z(b, j-1), z(b, j))]
            return [lambda: g.cvt(z(b, j-1), z(b, j-1), z(b, j)), lambda: g.accw(pk[k], z(b, j-1))]
        fs = []
        D1, D2 = int(opt.soft_d1), int(opt.soft_d2)
        if not opt.soft_pipe:
            for b in range(10):
                for j in range(8): fs.append(fma(8*b + j))
                for j in range(8): fs.append(ex(8*b + j))
                for j in range(8): fs.append(add(8*b + j))
                for j in (1, 3, 5, 7): fs += pack(8*b + j)[:1]
                for j in (1, 3, 5, 7): fs += pack(8*b + j)[1:]
            return fs
        for i in range(80 + D2 + 3):
            if i < 80: fs.append(fma(i))
            if 0 <= i - D1 < 80: fs.append(ex(i - D1))
            if 0 <= i - D2 < 80: fs.append(add(i - D2))
            k = i - D2 - 1
            if 0 <= k < 80 and k % 2 == 1:
                pk_ = pack(k); fs.append(pk_[0])
                if len(pk_) > 1: fs.append(("late", pk_[1]))
        out = []; pend = None
        for f in fs:
            if isinstance(f, tuple):
                if pend is not None: out.append(pend)
                pend = f[1]
            else:
                out.append(f)
                if pend is not None and getattr(f, "trans", False): out.append(pend); pend = None
        if pend is not None: out.append(pend)
        return out
    def spread_steps(fs, steps, lo=0, hi=40, first_lo=None):
        l = first_lo if first_lo is not None else lo
        spread(gp, fs, mstart[steps[0]] + l, mstart[steps[-1]] + hi)
    if opt.cheap_max:
        pub = [lambda b=b: e.ds_write("ds_write_b32", vSTM, vM[b], 256*b) for b in range(10)]
        spread(gp, max_ops() + pub, mstart[4] + 2, mstart[4] + 24)
    else:
        spread(gp, max_ops() + xreduce_ops("v_max_f32", vM, 0), mstart[4] + 2, mstart[4] + 38)
    def bar_max():
        e.wait_lg_all(); e.barrier()
    gp.setdefault(mstart[4] + (27 if opt.cheap_max else 39), []).append(bar_max)
    st = [V(176 + 8*b + 4, 4) if False else V(112 + 4*b, 4) for b in range(10)]
    fs = [lambda b=b: e.ds_read("ds_read_b128", st[b], vSTR, 256*b) for b in range(10)]
    for b in range(10):
        fs.append(lambda b=b: g.v3("v_max3_f32", vM[b], st[b][0], st[b][1], st[b][2]))
        fs.append(lambda b=b: g.v2("v_max_f32", vM[b], vM[b], st[b][3]))
        fs.append(lambda b=b: g.v2("v_mul_f32", vM[b], sC, vM[b]))
    if opt.cheap_max:
        spread(gp, fs, mstart[4] + 28, mstart[5] + 4)
        spread_steps(soft_ops(0), [5, 6, 7], first_lo=4)
    else:
        spread(gp, fs, mstart[5] + 0, mstart[5] + 14)
        spread_steps(soft_ops(0), [5, 6, 7], first_lo=14)
    spread_steps(soft_ops(1), [8, 9, 10, 11])
    spread_steps(soft_ops(2), [12, 13, 14, 15])
    spread_steps(soft_ops(3), [16, 17, 18])
    def pwrite(c): return [C(lambda b=b, c=c: e.ds_write("ds_write_b128", vPW, park(c, b), (c & 1)*40960 + b*1024), int(opt.c_dsw)) for b in range(10)]
    def bar():
        e.wait_lg_all(); e.barrier()
    sg.preB.setdefault(gstart[14] + 0, []).append(bar)
    place_even(gp, pwrite(0), mstart[14] + 4, mstart[15] + 18)
    sg.preB.setdefault(gstart[15] + 11, []).append(bar)
    sg.preB.setdefault(gstart[16] + 1, []).append(bar)
    place_even(gp, pwrite(1), mstart[16] + 10, mstart[18] + 38)
    spread(gp, xreduce_ops("v_add_f32", vLs, 4096), mstart[18] + 39, mstart[19] + 11)
    sg.preB.setdefault(gstart[19] + 2, []).append(bar)
    place_even(gp, pwrite(2), mstart[19] + 14, mstart[22] + 38)
    sg.preB.setdefault(gstart[23] + 2, []).append(bar)
    place_even(gp, pwrite(3), mstart[23] + 14, mstart[26] + 38)
    sg.preB.setdefault(gstart[27] + 2, []).append(bar)
    stl = [V((216 if opt.inplace_p else 176) + 4*b, 4) for b in range(10)]
    fs = [lambda b=b: e.ds_read("ds_read_b128", stl[b], vSTR, 4096 + 256*b) for b in range(10)]
    for b in range(10):
        fs.append(lambda b=b: g.v2("v_add_f32", stl[b][0], stl[b][0], stl[b][1]))
        fs.append(lambda b=b: g.v2("v_add_f32", stl[b][2], stl[b][2], stl[b][3]))
        fs.append(lambda b=b: g.v2("v_add_f32", vLs[b], stl[b][0], stl[b][2]))
    if opt.fallback:
        ts = vTmp[1]
        fs.append(lambda: g.v2("v_add_f32", ts, vLs[0], vLs[1]))
        for b in range(2, 10): fs.append(lambda b=b: g.v2("v_add_f32", ts, ts, vLs[b]))
        def check():
            thr = 0.0 if opt.force_fb else 2.0**24
            g.s1("s_mov_b32", S(36), hex(f2u(thr)))
            e.valu(f"v_cmp_nge_f32 vcc, {S(36)}, {ts}", src=[S(36), ts])
            e.nop(4)
            e.raw("s_cmp_lg_u64 vcc, 0")
            e.raw(f"s_cselect_b32 s37, 1, 0")
            e.raw(f"s_andn2_b32 s37, s37, {sExact}")
            e.raw("s_cmp_lg_u32 s37, 0")
            e.raw("s_cbranch_scc1 L_fallback")
        fs.append(check)
    for b in range(10): fs.append(lambda b=b: g.v1("v_rcp_f32", vLs[b], vLs[b], trans=True))
    spread(gp, fs, mstart[20] + 0, mstart[21] + 20)
    if opt.warm_wo:
        def warm_wo():
            t_, s_ = vTmp[9], S(36)
            g.s2("s_mul_i32", s_, sBt, 224); g.s2("s_mul_i32", S(37), sW, 56); g.s2("s_add_u32", s_, s_, S(37))
            g.v2("v_add_u32", t_, s_, vL); g.v2("v_lshlrev_b32", t_, 7, t_)
            e.raw(f"buffer_load_dword {vDum}, {t_}, {sWO}, 0 offen"); e.vm_issued += 1
        gp.setdefault(mstart[int(opt.warm_at)] + 30, []).append(warm_wo)
    vOW0, vOW1 = V(17), V(31)
    otmp = V(164, 8)
    def opost(b):
        fs = []
        for u in range(2):
            tl = [accO(2*u + h2, b) for h2 in range(2)]
            if tl[0].f == 'a':
                z = [otmp[j] for j in range(8)]
                for h2 in range(2):
                    for r in range(4): fs.append(lambda h2=h2, r=r, tl=tl, z=z: g.accr(z[4*h2 + r], tl[h2][r]))
            else:
                z = [tl[h2][r] for h2 in range(2) for r in range(4)]
            for j in range(8): fs.append(lambda j=j, z=z, b=b: g.v2("v_mul_f32", z[j], z[j], vLs[b]))
            o4 = V(z[0].i, 4)
            for j in range(4): fs.append(lambda j=j, z=z, o4=o4: g.cvt(o4[j], z[2*j], z[2*j+1]))
            fs.append(C(lambda o4=o4, u=u, b=b: e.ds_write("ds_write_b128", vOW0 if b < 5 else vOW1, o4, (b % 5)*8192 + u*1024), 8))
        return fs
    def setup_ow():
        g.s2("s_lshl_b32", S(36), sW, 11); g.s2("s_add_u32", S(36), S(36), LDS_A)
        g.v2("v_lshlrev_b32", vOW0, 4, vL); g.v2("v_add_u32", vOW0, S(36), vOW0); g.v2("v_add_u32", vOW1, 40960, vOW0)
    gp.setdefault(mstart[26] + 2, []).append(C(setup_ow, 20))
    o31 = mstart[31]
    ptail = []
    for b in range(5):
        lo = o31 + 4*(b+1) + 3
        if b < 3: spread(gp, opost(b), lo, min(o31 + 40, lo + 12))
        else: ptail += opost(b)
    if opt.pvstamp:
        for n_ in range(20, 32): gp.setdefault(mstart[n_] - 1, []).append(lambda n_=n_: g.stamp(f"n{n_-1}"))
    if opt.stamps:
        for n_, nm_ in ((4, "S0"), (8, "S1"), (12, "S2"), (16, "S3"), (20, "PV0"), (24, "PV1"), (28, "PV2")):
            gp.setdefault(mstart[n_] - 1, []).append(lambda nm_=nm_: g.stamp(nm_))
    sg.emit()
    g.stamp("PVdone")
    g.run(ptail)
    if opt.fused:
        e.raw("s_memrealtime s[92:93]"); e.raw("s_waitcnt lgkmcnt(0)"); e.lg_done = e.lg_issued
    e.wait_lg_all(); e.barrier()
    if opt.dump == 'O':
        for b in range(5, 10): g.run(opost(b))
        return finish_dump(g)
    g.stamp("Opost")

    if opt.fused and opt.own_keep: g.s1("s_mov_b32", sExact, "0x7ff00000")
    sg = Seg(g); gp = sg.gaps
    accA = lambda b, t: V(32 + 16*(b & 1) + 4*t, 4)
    accB = lambda b, t: V(80 + 12*(b & 1) + 4*t, 4)
    bst = {}
    def Bsrc(b, j): return (vB0, (b*8 + j)*1024) if b < 5 else (vB1, ((b-5)*8 + j)*1024)
    for st in range(2):
        nt_ = 4 if st == 0 else 3; acc = accA if st == 0 else accB
        order = [(b, j) for b in range(10) for j in range(8)]
        if st == 0:
            order = [(0, j) for j in range(5)] + [(1, j) for j in range(5)] + [(0, j) for j in range(5, 8)] + [(1, j) for j in range(5, 8)] + order[16:]
        for (b, j) in order:
            if (st, b) not in bst: bst[(st, b)] = sg.nm
            W = Wreg(8*st + j)
            mf = [lambda B, b=b, tt=tt, j=j, W=W, acc=acc: e.mfma(acc(b, tt), W.sub(4*tt, 4), B, acc(b, tt) if j > 0 else 0) for tt in range(nt_)]
            sg.add_group(mf, Bsrc(b, j))
    bend = {(0, 0): 13*4, (0, 1): 16*4}
    for b in range(2, 10): bend[(0, b)] = bst[(0, b)] + 32
    for b in range(10): bend[(1, b)] = bst[(1, b)] + 24
    if opt.stamps:
        for nm_, pos in (("ob1", 63), ("ob4", bst[(0, 5)] - 1), ("ost1", bst[(1, 0)] - 1), ("ob2_4", bst[(1, 5)] - 1)):
            gp.setdefault(pos, []).append(lambda nm_=nm_: g.stamp(nm_))
    for k_ in range(4):
        lo = 8 + 16*k_
        spread(gp, rdW(8 + k_), lo, lo + 14)
        place(gp, dma_after(40 + k_, 44 + k_), lo + 14, 2)
    for k_ in range(4):
        lo = bst[(0, 8)] + 14*k_
        spread(gp, rdW(12 + k_), lo, lo + 14)
    u1 = []
    for b in range(5, 10): u1 += opost(b)
    spread(gp, u1, 0, bst[(0, 4)] - 1)
    sg.preB.setdefault(31, []).append(bar)
    keepA, keepC = V(21, 4), V(25, 4)
    def store_e(O, ee):
        if opt.skip_st: return
        own = ee if ee < 16 else (ee - 20 if ee >= 20 else None)
        if opt.fused and opt.own_keep and own is not None:
            kp = keepA if ee < 16 else keepC
            lab = f"L_keep{ee}"
            e.raw(f"s_cmp_eq_u32 {sH}, {own}"); e.raw(f"s_cselect_b32 {sO3}, {sExact}, {ee*4096}")
            e.raw(f"s_cbranch_scc0 {lab}")
            for j in range(4): g.v1("v_mov_b32", kp[j], O[j])
            e.label(lab)
        else:
            g.s1("s_mov_b32", sO3, ee*4096)
        e.gstore("buffer_store_dwordx4", O, vWS, sWS, sO3, flags=opt.st_flags)
    kk = [0]
    def pair_epi(x, y, ee):
        O = V(64 + 4*(kk[0] & 3), 4); kk[0] += 1
        return [lambda: g.cvt(O[0], x[0], x[1]), lambda: g.cvt(O[1], x[2], x[3]), lambda: g.cvt(O[2], y[0], y[1]), lambda: g.cvt(O[3], y[2], y[3]),
                VM(C(lambda: store_e(O, ee), 24))]
    def epiA(b): return pair_epi(accA(b, 0), accA(b, 1), b) + pair_epi(accA(b, 2), accA(b, 3), 10 + b)
    def epiB(b):
        fs = pair_epi(accB(b, 0), accB(b, 1), 20 + b)
        O6 = V(104 + 4*((b >> 1) & 1), 4); d = accB(b, 2)
        fs += [lambda: g.cvt(O6[2*(b & 1)], d[0], d[1]), lambda: g.cvt(O6[2*(b & 1) + 1], d[2], d[3])]
        if b & 1: fs.append(VM(C(lambda: store_e(O6, 30 + (b >> 1)), 8)))
        return fs
    for b in range(10):
        nx = bend[(0, b)]
        hi = nx + 22 if b != 0 else 64 - 1
        spread(gp, epiA(b), nx + 3, hi)
    for b in range(9):
        nx = bend[(1, b)]
        spread(gp, epiB(b), nx + 3, nx + 20)
    tail = epiB(9)
    def signal(gen):
        lab = f"L_sig{gen}"
        e.raw(f"s_cmp_lg_u32 {sW}, 0"); e.raw(f"s_cbranch_scc1 {lab}")
        e.raw("s_mov_b64 exec, 0xffff")
        e.raw(f"v_mov_b32 v30, {sTok[0]}"); e.raw(f"v_mov_b32 v31, {sTok[1]}"); e.raw("v_lshlrev_b32 v29, 7, v1")
        e.raw(f"s_lshl_b32 s36, {sH}, 3"); e.raw(f"s_add_u32 s36, s36, {sCnt}"); e.raw(f"s_add_u32 s36, s36, {4096*gen}")
        e.raw(f"buffer_store_dwordx2 v[30:31], v29, {sDBG}, s36 offen sc1")
        e.raw("s_mov_b64 exec, -1")
        e.label(lab)
    if opt.fused:
        rd = Red(g)
        ST0 = {}
        def mark0(): ST0['seq'] = e.vm_issued
        gp.setdefault(bend[(0, 9)] + 23, []).append(C(mark0, 0))
        def sig0():
            e.wait_vm(ST0['seq']); e.barrier(); signal(0)
        b0 = int(opt.sig0_blk); b1 = int(opt.poll0_blk)
        gp.setdefault(bst[(1, b0)] + 4, []).append(C(sig0, 24))
        NL = 15 if opt.own_keep else 16
        ldA = [V(112 + 4*h, 4) for h in range(NL)]; ldB = [V(176 + 4*h, 4) for h in range(16)]
        vA0, vR0, vA1, vR1 = V(240), V(241), V(242), V(243)
        tq = [V(244), V(245), V(246), V(247)]
        def prep0():
            rd.setup_common(); rd.decode(0); rd.addr(vA0, vR0, tq)
        vt = V(248, 6)
        def prep0b():
            prep0(); rd.poll_setup(vt); rd.decode(1); rd.addr(vA1, vR1, tq)
            e.raw("s_mov_b32 s79, 0") if False else None
        gp.setdefault(bst[(1, 1)] + 12, []).append(C(prep0b, 100))
    sg.emit()
    g.stamp("outdone")
    g.run(tail)
    if opt.fused:
        acc = [V(64 + j) for j in range(8)]; tmp = [V(72 + j) for j in range(4)]
        if opt.own_keep: ldC = [V(32 + 4*h, 4) for h in range(8)] + [V(88 + 4*h, 4) for h in range(6)] + [V(172, 4)]
        else: ldC = [V(8 + 4*h, 4) if h < 14 else V(88 + 4*(h-14), 4) for h in range(16)]
        kA, kC = (keepA, keepC) if opt.own_keep else (None, None)
        vA2, vR2 = V(254), V(255)
        def flags_to_s44():
            e.raw(f"v_subrev_co_u32 {vt[4]}, vcc, {sT0[0]}, {vt[2]}"); e.raw("s_nop 1")
            e.raw(f"v_subb_co_u32 {vt[5]}, vcc, {vt[3]}, {vt[1]}, vcc")
            e.raw(f"v_lshrrev_b32 {vt[4]}, 24, {vt[4]}"); e.raw(f"v_or_b32 {vt[4]}, {vt[4]}, {vt[5]}")
            e.raw(f"v_cmp_eq_u32 vcc, 0, {vt[4]}"); e.raw("s_nop 4")
            e.raw("s_or_b32 s44, vcc_lo, s43")
        def raw_loads(ld, vA):
            snap = e.snapshot(); g.run(rd.loads(ld, vA, sO1)); e.restore(snap)
            for r_ in [x for l_ in ld for x in l_.regs()]: e.pend.pop(r_, None)
        e.wait_vm_all(); e.barrier(); signal(1)
        g.stamp("sig1")
        rd.decode(2); rd.addr(vA2, vR2, tq)
        e.raw("s_mov_b32 s47, s38")
        rd.pollw("0", 0xffff, vt, 0)
        g.stamp("poll0")
        e.raw("s_lshr_b32 s51, s44, 16"); e.raw("s_cmp_eq_u32 s51, 0xffff"); e.raw("s_cselect_b32 s51, 1, 0")
        raw_loads(ldA, vA0)
        e.raw(f"s_cmp_lg_u32 {sW}, 3"); e.raw("s_cbranch_scc1 L_x1")
        raw_loads(ldB, vA1)
        e.label("L_x1")
        e.raw("s_cmp_eq_u32 s51, 0"); e.raw("s_cbranch_scc1 L_x1b")
        e.raw("s_cmp_ge_u32 s47, 60"); e.raw("s_cbranch_scc1 L_x1b")
        raw_loads(ldC, vA2)
        e.label("L_x1b")
        e.raw(f"s_cmp_eq_u32 s51, 0"); e.raw("s_cbranch_scc1 L_x1d")
        e.raw(f"s_cmp_lg_u32 {sW}, 3"); e.raw("s_cbranch_scc1 L_x1e")
        e.raw(f"s_waitcnt vmcnt({NL})"); e.raw("s_branch L_x1f")
        e.label("L_x1e")
        e.raw("s_cmp_ge_u32 s47, 60"); e.raw("s_cbranch_scc1 L_x1d")
        e.raw(f"s_waitcnt vmcnt({NL})"); e.raw("s_branch L_x1f")
        e.label("L_x1d")
        e.raw("s_waitcnt vmcnt(0)")
        e.label("L_x1f")
        rd.sum_store(ldA, vR0, acc, tmp, V(76, 4), kA)
        e.raw("s_cmp_eq_u32 s51, 1"); e.raw("s_cbranch_scc1 L_x4")
        rd.pollw("1", 0xffff0000, vt, 1)
        e.raw("s_cmp_ge_u32 s47, 60"); e.raw("s_cbranch_scc1 L_x4")
        raw_loads(ldC, vA2)
        e.label("L_x4")
        g.stamp("poll1")
        e.raw(f"s_cmp_lg_u32 {sW}, 3"); e.raw("s_cbranch_scc1 L_x2")
        snap = e.snapshot()
        e.raw(f"s_waitcnt vmcnt({NL})")
        e.raw("s_cmp_lt_u32 s47, 60"); e.raw("s_cbranch_scc1 L_x2b")
        e.raw("s_waitcnt vmcnt(0)")
        e.label("L_x2b")
        rd.sum_store(ldB, vR1, acc, tmp, V(80, 4))
        e.restore(snap)
        e.label("L_x2")
        e.raw("s_cmp_ge_u32 s47, 60"); e.raw("s_cbranch_scc1 L_x5")
        e.raw("s_waitcnt vmcnt(0)"); e.vm_done = e.vm_issued
        rd.sum_store(ldC, vR2, acc, tmp, V(84, 4), kC)
        e.label("L_x5")
    if opt.stamps:
        e.wait_vm_all()
        g.stamp("end")
        g.stamp_flush()
    if opt.fallback:
        e.raw("s_endpgm")
        e.label("L_fallback")
        e.raw("s_waitcnt vmcnt(0) lgkmcnt(0)")
        e.raw("s_barrier")
        e.raw(f"s_mov_b32 {sExact}, 1")
        e.raw("s_branch L_restart")
    e.label("L_k1_end")
    e.raw("s_endpgm")
    return e

class Red:
    def __init__(self, g):
        self.g = g; self.e = g.e
        self.sRS, self.sOS = S(4, 4), S(8, 4)
    def setup_common(self):
        g, e = self.g, self.e
        g.s2("s_mul_i32", S(41), sH, PART_UNIT)
        g.s2("s_sub_u32", self.sRS[0], sWS[0], S(41)); e.salu(f"s_subb_u32 {self.sRS[1]}, {sWS[1]}, 0")
        g.s1("s_mov_b32", self.sRS[2], 16*PART_UNIT); g.s1("s_mov_b32", self.sRS[3], "0x00020000")
        e.raw("s_load_dwordx2 s[8:9], s[0:1], 80"); e.raw("s_waitcnt lgkmcnt(0)"); e.lg_done = e.lg_issued
        g.s1("s_mov_b32", self.sOS[2], 1280*1792); g.s1("s_mov_b32", self.sOS[3], "0x00020000")
    def decode(self, slot):
        g, e = self.g, self.e
        sPi, sWp, sE = S(38), S(39), S(40)
        if slot == 1:
            g.s2("s_lshr_b32", sE, sH, 2); g.s2("s_add_u32", sE, sE, 16); g.s2("s_and_b32", sWp, sH, 3)
            g.s2("s_add_u32", sPi, sH, 64)
        else:
            g.s2("s_lshl_b32", sPi, sH, 2); g.s2("s_add_u32", sPi, sPi, sW)
            g.s1("s_mov_b32", sWp, sW)
            if slot == 0: g.s1("s_mov_b32", sE, sH)
            else: g.s2("s_add_u32", sE, sH, 20)
    def addr(self, vA, vRow, tmp):
        g, e = self.g, self.e
        sWp, sE = S(39), S(40)
        q16, gg, t, u = tmp
        g.s2("s_lshl_b32", S(45), sWp, 10); g.s2("s_lshl_b32", S(46), sE, 12); g.s2("s_add_u32", S(45), S(45), S(46))
        g.v2("v_lshlrev_b32", vA, 4, vL); g.v2("v_add_u32", vA, S(45), vA)
        g.v2("v_and_b32", q16, 15, vL); g.v2("v_lshrrev_b32", gg, 4, vL)
        g.v2("v_and_b32", t, 1, gg); g.v2("v_lshrrev_b32", u, 1, gg); g.v2("v_lshlrev_b32", u, 3, u)
        sPP, sBlk = S(48), S(49)
        g.s2("s_mul_hi_u32", sPP, sE, 429496730)
        g.s2("s_mul_i32", sBlk, sPP, 10); g.s2("s_sub_u32", sBlk, sE, sBlk)
        g.s2("s_sub_u32", S(52), sE, 30); g.s2("s_lshl_b32", S(52), S(52), 1)
        g.s2("s_lshl_b32", S(53), sPP, 5)
        e.raw(f"s_cmp_lt_u32 {sE}, 30")
        e.raw(f"s_cselect_b32 s52, {sBlk}, s52"); e.raw("s_cselect_b32 s53, s53, 96")
        e.raw("s_cselect_b32 s54, 16, 0"); e.raw("s_cselect_b32 s55, 0, 16")
        g.s2("s_mul_i32", S(56), sBt, 160); g.s2("s_lshl_b32", S(52), S(52), 4); g.s2("s_add_u32", S(56), S(56), S(52))
        g.s2("s_mul_i32", S(50), sBr, 448); g.s2("s_mul_i32", S(58), sWp, 112); g.s2("s_add_u32", S(50), S(50), S(58)); g.s2("s_add_u32", S(50), S(50), S(53))
        g.v3("v_mad_u32_u24", vRow, t, S(55), q16); g.v2("v_add_u32", vRow, S(56), vRow)
        g.v3("v_mad_u32_u24", q16, t, S(54), u); g.v2("v_add_u32", q16, S(50), q16)
        g.s1("s_mov_b32", S(59), 1792)
        g.v2("v_lshlrev_b32", q16, 1, q16); g.v3("v_mad_u32_u24", vRow, vRow, S(59), q16)
    def loads(self, ld, vA, sreg):
        g, e = self.g, self.e; fs = []
        for k in range(len(ld)):
            def f(k=k):
                if len(ld) == 16: g.s1("s_mov_b32", sreg, k*PART_UNIT)
                else:
                    g.s2("s_add_u32", S(46), sH, k + 1); g.s2("s_and_b32", S(46), S(46), 15); g.s2("s_mul_i32", sreg, S(46), PART_UNIT)
                e.gload("buffer_load_dwordx4", ld[k], vA, self.sRS, sreg, flags=opt.red_flags)
            fs.append(VM(C(f, 8)))
        return fs
    def sum_store(self, ld, vRow, acc, tmp, O, keep=None):
        g, e = self.g, self.e
        if keep is not None: ld = [keep] + list(ld)
        for h in range(16):
            for j in range(4):
                if h == 0:
                    g.v2("v_lshlrev_b32", acc[2*j], 16, ld[h][j]); g.v2("v_and_b32", acc[2*j+1], "0xffff0000", ld[h][j])
                else:
                    a_, b_ = tmp[2*(j & 1)], tmp[2*(j & 1) + 1]
                    g.v2("v_lshlrev_b32", a_, 16, ld[h][j]); g.v2("v_and_b32", b_, "0xffff0000", ld[h][j])
                    g.v2("v_add_f32", acc[2*j], acc[2*j], a_); g.v2("v_add_f32", acc[2*j+1], acc[2*j+1], b_)
        for j in range(4): g.cvt(O[j], acc[2*j], acc[2*j+1])
        e.valu(f"v_permlane16_swap_b32 {O[0]}, {O[2]}", dst=[O[0], O[2]], src=[O[0], O[2]], permlane=True)
        e.valu(f"v_permlane16_swap_b32 {O[1]}, {O[3]}", dst=[O[1], O[3]], src=[O[1], O[3]], permlane=True)
        return e.gstore("buffer_store_dwordx4", O, vRow, self.sOS, None, flags=opt.out_flags)
    def pollw(self, name, need, vt, word):
        e = self.e
        lab = f"L_pw{name}"
        e.raw(f"s_cmp_lg_u32 {sW}, 0"); e.raw(f"s_cbranch_scc1 {lab}_bar")
        e.raw(f"s_mov_b32 s42, {int(opt.spin)}")
        e.label(lab)
        e.raw(f"buffer_load_dwordx2 {vt.sub(2, 2)}, {vt[0]}, {sDBG}, s41 offen sc1")
        e.raw("s_waitcnt vmcnt(0)")
        e.raw(f"v_subrev_co_u32 {vt[4]}, vcc, {sT0[0]}, {vt[2]}"); e.raw("s_nop 1")
        e.raw(f"v_subb_co_u32 {vt[5]}, vcc, {vt[3]}, {vt[1]}, vcc")
        e.raw(f"v_lshrrev_b32 {vt[4]}, 24, {vt[4]}"); e.raw(f"v_or_b32 {vt[4]}, {vt[4]}, {vt[5]}")
        e.raw(f"v_cmp_eq_u32 vcc, 0, {vt[4]}"); e.raw("s_nop 4")
        e.raw("s_or_b32 s44, vcc_lo, s43")
        e.raw(f"s_and_b32 s45, s44, {hex(need)}"); e.raw(f"s_cmp_eq_u32 s45, {hex(need)}"); e.raw(f"s_cbranch_scc1 {lab}_ok")
        e.raw("s_sub_u32 s42, s42, 1"); e.raw("s_cmp_eq_u32 s42, 0"); e.raw(f"s_cbranch_scc1 {lab}_ok")
        e.raw(f"s_sleep {int(opt.sleep)}")
        e.raw(f"s_branch {lab}")
        e.label(f"{lab}_ok")
        e.raw(f"v_mov_b32 {vt[4]}, s44"); e.raw(f"v_mov_b32 {vt[5]}, {12288 + 4*word}")
        e.raw(f"ds_write_b32 {vt[5]}, {vt[4]}"); e.raw("s_waitcnt lgkmcnt(0)")
        e.label(f"{lab}_bar")
        e.raw("s_barrier")
        e.raw(f"v_mov_b32 {vt[5]}, {12288 + 4*word}")
        e.raw(f"ds_read_b32 {vt[4]}, {vt[5]}"); e.raw("s_waitcnt lgkmcnt(0)")
        e.raw(f"v_readfirstlane_b32 s44, {vt[4]}"); e.raw("s_nop 3")
    def poll_setup(self, vt):
        e = self.e
        e.raw(f"v_and_b32 {vt[0]}, 15, v1"); e.raw(f"v_lshlrev_b32 {vt[0]}, 3, {vt[0]}")
        e.raw(f"v_bfe_u32 {vt[1]}, v1, 4, 1"); e.raw(f"v_lshl_add_u32 {vt[0]}, {vt[1]}, 12, {vt[0]}")
        e.raw(f"v_mov_b32 {vt[1]}, {sT0[1]}")
        e.raw(f"s_lshl_b32 s43, 0x10001, {sH}")
        e.raw(f"s_lshl_b32 s41, {sH}, 7"); e.raw(f"s_add_u32 s41, s41, {sCnt}")
    def poll(self, gen, vt):
        e = self.e
        lab = f"L_poll{gen}"
        e.raw(f"s_cmp_lg_u32 {sW}, 0"); e.raw(f"s_cbranch_scc1 {lab}_bar")
        e.raw(f"s_add_u32 s41, {sCnt}, {4096*gen}")
        e.raw(f"s_mov_b32 s42, {int(opt.spin)}")
        e.raw(f"v_and_b32 {vt[0]}, 15, v1"); e.raw(f"v_lshlrev_b32 {vt[0]}, 3, {vt[0]}"); e.raw(f"v_mov_b32 {vt[1]}, {sT0[1]}")
        e.label(lab)
        e.raw(f"buffer_load_dwordx2 {vt.sub(2, 2)}, {vt[0]}, {sDBG}, s41 offen sc1")
        e.raw("s_waitcnt vmcnt(0)")
        e.raw(f"v_subrev_co_u32 {vt[4]}, vcc, {sT0[0]}, {vt[2]}"); e.raw("s_nop 1")
        e.raw(f"v_subb_co_u32 {vt[5]}, vcc, {vt[3]}, {vt[1]}, vcc")
        e.raw(f"v_lshrrev_b32 {vt[4]}, 24, {vt[4]}"); e.raw(f"v_or_b32 {vt[4]}, {vt[4]}, {vt[5]}")
        e.raw(f"v_cmp_eq_u32 vcc, 0, {vt[4]}"); e.raw("s_nop 4")
        e.raw("s_cmp_eq_u64 vcc, -1"); e.raw(f"s_cbranch_scc1 {lab}_bar")
        e.raw("s_sub_u32 s42, s42, 1"); e.raw("s_cmp_eq_u32 s42, 0"); e.raw(f"s_cbranch_scc1 {lab}_bar")
        e.raw(f"s_sleep {int(opt.sleep)}")
        e.raw(f"s_branch {lab}")
        e.label(f"{lab}_bar")
        e.barrier()

def finish_dump(g):
    e = g.e
    e.wait_lg_all(); e.wait_vm_all(); e.barrier()
    t = V(240); u = V(244, 4)
    g.s2("s_mul_i32", S(38), sW, 20480)
    g.v2("v_lshlrev_b32", t, 4, vL); g.v2("v_add_u32", t, S(38), t)
    a = V(241); g.v2("v_add_u32", a, LDS_A, t)
    for i in range(20):
        e.ds_read("ds_read_b128", u, a, i*1024)
        g.s1("s_mov_b32", sO2, i*1024)
        e.gstore("buffer_store_dwordx4", u, t, sWS, sO2)
        e.wait_vm_all()
    e.label("L_fallback")
    e.label("L_k1_end")
    e.raw("s_endpgm")
    return e

import gen1
def assemble(path):
    k1 = build_k1()
    hdr = open("cdna_kernels/" + NAME + ".s.ref").read().split("; Override launch")[0]
    out = hdr
    KD = gen1.KD.replace("next_free_sgpr 96", "next_free_sgpr 102")
    if opt.fused:
        nm = NAME + "_kernel"
        out += f"; @launch grid=(256,1,1) block=(256,1,1) lds={LDS_TOTAL}\n"
        out += '.amdgcn_target "amdgcn-amd-amdhsa--gfx950"\n.text\n'
        out += f".globl {nm}\n.p2align 8\n.type {nm},@function\n{nm}:\n" + k1.text()
        out += '.section .rodata,"a"\n.p2align 6\n' + KD.format(name=nm, vgpr=512, acc=256)
    else:
        gen1.opt.k2_flags = opt.k2_flags; gen1.opt.stamps = opt.stamps
        k2 = gen1.build_k2()
        out += f"; @launch kernel=mha_k1_kernel grid=(256,1,1) block=(256,1,1) lds={LDS_TOTAL}\n"
        out += f"; @launch kernel=mha_k2_kernel grid=(560,1,1) block=(256,1,1) lds=0\n"
        out += '.amdgcn_target "amdgcn-amd-amdhsa--gfx950"\n.text\n'
        for nm, k in (("mha_k1_kernel", k1), ("mha_k2_kernel", k2)):
            out += f".globl {nm}\n.p2align 8\n.type {nm},@function\n{nm}:\n" + k.text()
        out += '.section .rodata,"a"\n.p2align 6\n' + KD.format(name="mha_k1_kernel", vgpr=512, acc=256)
        out += '.p2align 6\n' + KD.format(name="mha_k2_kernel", vgpr=96, acc=96)
    open(path, "w").write(out)
    if opt.stamps: print("STAMPS", ",".join(STAMPS))
    print("k1 stats", k1.stats, file=sys.stderr)

if __name__ == "__main__":
    path = sys.argv[1]
    for a in sys.argv[2:]:
        k, v = a.split("=")
        if v in ("True", "False"): v = (v == "True")
        elif v == "None": v = None
        setattr(opt, k, v)
    assemble(path)
```

```python
import sys, math, struct
from emit import *

NAME = "concat_heads__mha_block_cached__mha_block_cached__near_ridge"
LDS_M = 0; LDS_A = 16384; LDS_B = 98304; XS = 49152
LDS_TOTAL = 163840
PART_UNIT = 143360
PART_WAVE = 35840

class Opt:
    nt_kv = True
    st_flags = "sc1"
    k2_flags = ""
    dump = None
    stamps = False
    warm = False
    fallback = True
    force_fb = False
    pstamp = False
    only = None
    skip_dma = ''
    soft_mask = 'feacw'
    wait_batch = 4
    level = 8
    tlb_pf = False
    out_flags = ''
    wsched = 2
    pvstamp = False
    NR = 6
    rtst = False
    own_keep = True
    c_ds = 4
    c_dma = 16
    c_dsw = 12
    soft_pipe = True
    soft_d1 = 2
    soft_d2 = 4
    tr_gap = 1
    wlate = True
    skip_st = False
    ws_off = 0
    late_wq1 = True
    cheap_max = True
    inplace_p = True
    fused = True
    red_flags = 'sc1'
    spin = 20000
    sig0_blk = 9
    poll0_blk = 10
    early0 = False
    epoll_blk = 5
    echeck_d = 2
    sleep = 4
    code_pf = True
    pf_lines = 4
    vm_gap = 4
    qstamp = False
    rot = 1
    w_flags = ''
    wo_flags = ''
    warm_wo = False
    warm_at = 21
    kread = '{8:0,10:1,11:[2,3],12:4,13:5}'
    kfirst = '{2:0,4:1,6:2,8:3}'
    qa_lo = 20
opt = Opt()
STAMPS = []
def f2u(x): return struct.unpack("<I", struct.pack("<f", x))[0]

sX, sK, sV, sWQ, sWO, sWS = S(4,4), S(8,4), S(12,4), S(16,4), S(20,4), S(24,4)
sW, sRB, sWB, sXD, sO1, sO2, sC, sExact = S(28), S(29), S(30), S(31), S(32), S(33), S(34), S(35)
sH, sBt, sBr = S(60), S(61), S(62)
sO3 = S(57)
sDBG = S(96, 4)
sCnt = S(100)
sT0 = S(78, 2)
sE0, sE1 = S(62+39), S(35)
sTok = S(92, 2)
sXo = [S(64+c) for c in range(7)]
sWo = [S(71+c) for c in range(7)]

vL = V(1)
vB0, vB1, vK0, vK1 = V(2), V(3), V(4), V(5)
vTv = [V(6+i) for i in range(4)]
vD  = [V(10+i) for i in range(4)]
vVb, vWOb, vPW, vSTW, vSTR, vWS = V(14), V(15), V(16), V(18), V(19), V(20)
vM  = [V(21+i) for i in range(10)]
vSTM = V(31)
vDum = V(0)
vX0, vX1 = V(152), V(153)
vTq  = [V(154+i) for i in range(4)]
vDX  = [V(158+i) for i in range(5)]
vDWQ = [V(163+i) for i in range(4)]
vQW  = V(167)
vLs = [V(152+i) for i in range(10)]
vDW = [V(172+i) for i in range(4)]
vTmp = [V(162+i) for i in range(10)]
NB = 8
aB = [A(4*i, 4) for i in range(NB)]
aR = [A(32 + 16*i, 16) for i in range(4)] + [A(136 + 16*i, 16) for i in range(2)]
def Rs(n): return aR[n % 6]
aWQ = [[A(96 + 16*s + 4*t, 4) for t in range(4)] for s in range(2)]
def park(p, b):
    if opt.inplace_p and p == 0: return V(112 + 4*b, 4)
    if opt.inplace_p and p == 3: return V(176 + 4*b, 4)
    return A((208 if p == 1 else 168) + 4*b, 4)

def accQ(t, b):
    i = b*4 + t
    return V(32 + 4*i, 4) if i < 30 else V(176 + 4*(i-30), 4)
def accS(p, t, b): return V((32 if p % 2 == 0 else 176) + 8*b + 4*t, 4)
def accO(t, b):
    i = b*4 + t
    return V(32 + 4*i, 4) if i < 30 else A(96 + 4*(i-30), 4)
def accP0(t, b): return A(96 + 4*(b*4+t), 4)
def accP1(t, b): return V(32 + 4*(b*3+t), 4)

class G:
    def __init__(self):
        self.e = Emit(); self.nst = 0
    def v2(self, op, d, a, b):
        self.e.valu(f"{op} {d}, {a}, {b}", dst=[d], src=[x for x in (a, b) if isinstance(x, R)])
    def v1(self, op, d, a, trans=False):
        self.e.valu(f"{op} {d}, {a}", dst=[d], src=[a] if isinstance(a, R) else [], trans=trans)
    def v3(self, op, d, a, b, c, neg_c=False):
        cc = f"-{c}" if neg_c else f"{c}"
        self.e.valu(f"{op} {d}, {a}, {b}, {cc}", dst=[d], src=[x for x in (a, b, c) if isinstance(x, R)])
    def cvt(self, d, a, b):
        self.e.valu(f"v_cvt_pk_bf16_f32 {d}, {a}, {b}", dst=[d], src=[a, b])
    def accw(self, d, a):
        self.e.valu(f"v_accvgpr_write_b32 {d}, {a}", dst=[d], src=[a])
    def accr(self, d, a):
        self.e.valu(f"v_accvgpr_read_b32 {d}, {a}", dst=[d], src=[a])
    def s2(self, op, d, a, b):
        self.e.salu(f"{op} {d}, {a}, {b}", reads=[x for x in (a, b) if isinstance(x, R)])
    def s1(self, op, d, a):
        self.e.salu(f"{op} {d}, {a}", reads=[a] if isinstance(a, R) else [])
    def m0(self, sbase, imm):
        self.e.salu(f"s_add_u32 m0, {sbase}, {imm}", w_m0=True, reads=[sbase])
    m0state = None
    sstate = None
    def ensure(self, sbase, ldsoff, sreg, soff_imm):
        if self.sstate is None: self.sstate = {}
        if self.m0state != (str(sbase), ldsoff):
            self.m0(sbase, ldsoff); self.m0state = (str(sbase), ldsoff)
        key = (str(soff_imm[0]), soff_imm[1]) if isinstance(soff_imm, tuple) else soff_imm
        if self.sstate.get(str(sreg)) != key:
            if isinstance(soff_imm, tuple): self.s2("s_add_u32", sreg, soff_imm[0], soff_imm[1])
            else: self.s1("s_mov_b32", sreg, soff_imm)
            self.sstate[str(sreg)] = key
    def forget(self):
        self.m0state = None; self.sstate = {}
    def dma_group(self, voffs, srd, sbase, ldsoff, soff_imm, sreg, holder, key, flags=""):
        e = self.e; fs = []
        for i in range(len(voffs)):
            def f(i=i):
                kind = key[0] if key[0] != 'r' else ('k' if key[1] < 16 else ('v' if key[1] < 32 else 'o'))
                if kind in opt.skip_dma or (kind == 'wq' and 'q' in opt.skip_dma): holder[key] = e.vm_issued; return
                self.ensure(sbase, ldsoff + (4096 if i == 4 else 0), sreg, soff_imm)
                holder[key] = e.dma(voffs[i], srd, sreg, offset=(1024*i if i < 4 else 0), flags=flags)
            f.vm = True
            fs.append(C(f, int(opt.c_dma) + (8 if i == 0 else 0)))
        return fs
    def run(self, fs):
        for f in fs: f()
    def stamp(self, name):
        if not opt.stamps: return
        if opt.only and name not in opt.only.split(","): return
        i = self.nst; self.nst += 1; STAMPS.append(name)
        assert i < 12
        self.e.raw("s_memrealtime s[94:95]" if opt.rtst else "s_memtime s[94:95]"); self.e.raw("s_waitcnt lgkmcnt(0)"); self.e.raw(f"s_mov_b32 s{80+i}, s94")
        self.e.lg_done = self.e.lg_issued
    def stamp_flush(self):
        e = self.e
        e.raw("s_memrealtime s[94:95]"); e.raw("s_waitcnt lgkmcnt(0)")
        e.raw("s_load_dwordx2 s[36:37], s[0:1], 96"); e.raw("s_waitcnt lgkmcnt(0)")
        e.salu("s_add_u32 s36, s36, 0x4000000"); e.salu("s_addc_u32 s37, s37, 0")
        e.salu("s_mov_b32 s38, 0x100000"); e.salu("s_mov_b32 s39, 0x00020000")
        e.salu("s_lshl_b32 s40, s2, 8"); e.salu(f"s_lshl_b32 s41, {sW}, 6"); e.salu("s_add_u32 s40, s40, s41")
        z = V(170); d = V(171)
        self.v1("v_mov_b32", z, 0)
        for i, src in [(i, S(80+i)) for i in range(self.nst)] + [(15, S(94)), (14, S(78))]:
            self.v1("v_mov_b32", d, src); e.salu(f"s_add_u32 s41, s40, {4*i}")
            e.gstore("buffer_store_dword", d, z, S(36, 4), S(41))

def cost_of(f): return getattr(f, "cost", 4)
def C(f, c):
    f.cost = c; return f

def VM(f):
    f.vm = True; return f

class Gaps:
    def __init__(self):
        self.streams = []; self.fixed = {}
    def setdefault(self, k, d): return self.fixed.setdefault(k, d)

def spread(gaps, fs, start, end):
    if not fs: return
    assert end > start, (start, end)
    gaps.streams.append(dict(ops=list(fs), lo=start, hi=end))

def place(gaps, fs, start, step=None):
    if step is None: step = int(opt.vm_gap)
    pos = start
    for f in fs:
        gaps.setdefault(pos, []).append(f)
        if getattr(f, "vm", False): pos += step

def place_even(gaps, fs, start, end):
    n = len(fs)
    for k, f in enumerate(fs): gaps.setdefault(start + (k * (end - start)) // n, []).append(f)

def schedule(N, F, streams, base=8.0):
    out = {}
    for s_ in streams:
        s_["k"] = 0; s_["rem"] = sum(cost_of(f) for f in s_["ops"]); s_["hi"] = min(s_["hi"], N)
    pf = [0]*(N+1)
    for i in range(N): pf[i+1] = pf[i] + F[i]
    carry = 0.0
    last_vm = -100
    last_tr = -100
    VMG = int(opt.vm_gap)
    for i in range(N):
        act = [s_ for s_ in streams if s_["k"] < len(s_["ops"])]
        if not act: break
        L = base
        his = sorted(set(s_["hi"] for s_ in act if s_["hi"] > i))
        for h in his:
            need = pf[h] - pf[i] + sum(s_["rem"] for s_ in act if s_["hi"] <= h and s_["lo"] < h)
            lo = max(i, min(s_["lo"] for s_ in act if s_["hi"] <= h))
            need2 = pf[h] - pf[lo] + sum(s_["rem"] for s_ in act if s_["hi"] <= h)
            if lo <= i: L = max(L, need2 / (h - lo))
        budget = L - F[i] + carry
        placed = 0
        while True:
            cand = [s_ for s_ in streams if s_["k"] < len(s_["ops"]) and s_["lo"] <= i]
            def blocked(x):
                f_ = x["ops"][x["k"]]
                if getattr(f_, "trans", False) and i - last_tr < int(opt.tr_gap):
                    nt_ = sum(1 for q in x["ops"][x["k"]:] if getattr(q, "trans", False))
                    return (x["hi"] - i) * 1.0 / int(opt.tr_gap) > nt_
                if not getattr(f_, "vm", False) or i - last_vm >= VMG: return False
                nv = sum(1 for q in x["ops"][x["k"]:] if getattr(q, "vm", False))
                return (x["hi"] - i) > nv
            cand = [x for x in cand if not blocked(x)]
            if not cand: break
            cand.sort(key=lambda s_: (s_["hi"] - s_["rem"] / max(L - 2.0, 1.0), s_["hi"]))
            s_ = cand[0]
            f = s_["ops"][s_["k"]]; c = cost_of(f)
            forced = any(x["hi"] - 1 <= i for x in cand)
            if forced:
                s_ = [x for x in cand if x["hi"] - 1 <= i][0]; f = s_["ops"][s_["k"]]; c = cost_of(f)
            elif budget - placed < c - 1.99: break
            out.setdefault(i, []).append(f); s_["k"] += 1; s_["rem"] -= c; placed += c
            if getattr(f, "vm", False): last_vm = i
            if getattr(f, "trans", False): last_tr = i
        carry = max(-6.0, min(2.0, budget - placed))
    for s_ in streams: assert s_["k"] == len(s_["ops"]), (s_["lo"], s_["hi"], s_["k"], len(s_["ops"]))
    return out

class Seg:
    def __init__(self, g):
        self.g = g; self.groups = []
        self.gaps = Gaps()
        self.preB = {}
        self.nm = 0; self.gstart = []
    def add_group(self, mf, bsrc):
        self.gstart.append(self.nm); self.groups.append((mf, bsrc)); self.nm += len(mf)
    def emit(self, wait_batch=None):
        if wait_batch is None: wait_batch = int(opt.wait_batch)
        e = self.g.e; seq = {}
        n = len(self.groups); N = self.nm
        F = [0]*N
        for G in range(n):
            last = self.gstart[G] + len(self.groups[G][0]) - 1
            if G + NB < n: F[last] += int(opt.c_ds)
            if G % wait_batch == 0 and G > 0: F[self.gstart[G] - 1] += 4
        for k_, v_ in self.gaps.fixed.items(): F[k_] += sum(cost_of(f) for f in v_)
        sched = schedule(N, F, self.gaps.streams, base=float(opt.level))
        def rd(G):
            a, o = self.groups[G][1]
            seq[G] = e.ds_read("ds_read_b128", aB[G % NB], a, o)
        for G in range(min(NB, n)): rd(G)
        idx = 0
        for G, (mf, _) in enumerate(self.groups):
            if G % wait_batch == 0:
                last = min(n-1, G + wait_batch - 1)
                while last not in seq: last -= 1
                e.wait_lg(seq[last])
            for m in mf:
                m(aB[G % NB])
                for f in sched.get(idx, []): f()
                for f in self.gaps.fixed.get(idx, []): f()
                idx += 1
            for f in self.preB.get(G, []): f()
            if G + NB < n: rd(G + NB)

def build_k1():
    g = G(); e = g.e
    kvflag = "nt" if opt.nt_kv else ""
    H = {}
    e.raw("s_cmp_ge_u32 s2, 256"); e.raw("s_cbranch_scc1 L_k1_end")
    if opt.code_pf:
        nl = int(opt.pf_lines)
        e.raw("s_getpc_b64 s[36:37]")
        e.label("L_pc")
        e.raw("v_lshrrev_b32 v2, 6, v0")
        e.raw("s_lshr_b32 s38, s2, 3"); e.raw("s_lshl_b32 s38, s38, 2")
        e.raw("v_add_u32 v2, s38, v2")
        e.raw(f"v_and_b32 v3, {nl-1}, v0")
        e.raw(f"v_mad_u32_u24 v2, v2, {nl}, v3")
        e.raw("v_lshlrev_b32 v2, 7, v2")
        e.raw("s_mov_b32 s38, L_k1_end-L_pc-4")
        e.raw("v_min_u32 v2, s38, v2")
        e.raw("v_and_b32 v2, -4, v2")
        e.raw("global_load_dword v17, v2, s[36:37]")
        e.vm_issued += 1
    if opt.stamps:
        e.raw("s_memrealtime s[78:79]"); e.raw("s_waitcnt lgkmcnt(0)")
    g.stamp("start")
    e.raw("s_load_dwordx16 s[36:51], s[0:1], 0")
    e.raw("s_load_dwordx4 s[52:55], s[0:1], 64")
    e.raw("s_load_dwordx2 s[56:57], s[0:1], 96")
    if opt.fused and not opt.stamps: e.raw("s_memrealtime s[78:79]")
    if opt.tlb_pf: e.raw("s_load_dwordx2 s[92:93], s[0:1], 80")
    g.s2("s_and_b32", S(58), S(2), 7); g.s2("s_lshr_b32", S(59), S(2), 3)
    g.s2("s_and_b32", sH, S(58), 3); g.s2("s_lshl_b32", sH, sH, 2)
    g.s2("s_and_b32", sBt, S(59), 3); g.s2("s_add_u32", sH, sH, sBt)
    g.s2("s_lshr_b32", sBt, S(59), 2); g.s2("s_lshr_b32", sBr, S(58), 2)
    rot = int(opt.rot)
    md = 6 if rot == 2 else 7
    if rot == 3:
        g.s2("s_and_b32", S(58), sH, 3); g.s2("s_lshr_b32", S(59), sBt, 1); g.s2("s_add_u32", S(58), S(58), S(59)); g.s2("s_lshl_b32", S(58), S(58), 1)
        for _ in range(2):
            e.raw(f"s_cmp_ge_u32 s58, {md}"); e.raw(f"s_cselect_b32 s59, {md}, 0"); g.s2("s_sub_u32", S(58), S(58), S(59))
    elif rot == 4:
        g.s2("s_and_b32", S(58), sH, 1); g.s2("s_lshr_b32", S(59), sBt, 2); g.s2("s_lshl_b32", S(59), S(59), 1); g.s2("s_add_u32", S(58), S(58), S(59)); g.s2("s_mul_i32", S(58), S(58), 2)
        for _ in range(2):
            e.raw(f"s_cmp_ge_u32 s58, {md}"); e.raw(f"s_cselect_b32 s59, {md}, 0"); g.s2("s_sub_u32", S(58), S(58), S(59))
    elif rot:
        g.s2("s_and_b32", S(58), sH, 3); g.s2("s_lshl_b32", S(58), S(58), 1); g.s2("s_add_u32", S(58), S(58), sBt)
        for _ in range(2):
            e.raw(f"s_cmp_ge_u32 s58, {md}"); e.raw(f"s_cselect_b32 s59, {md}, 0"); g.s2("s_sub_u32", S(58), S(58), S(59))
    else:
        g.s1("s_mov_b32", S(58), 0)
    for c in range(7):
        if rot == 2 and c == 0:
            g.s1("s_mov_b32", sXo[0], 0); g.s1("s_mov_b32", sWo[0], 0); continue
        g.s2("s_add_u32", S(59), S(58), c if rot != 2 else c - 1)
        e.raw(f"s_cmp_ge_u32 s59, {md if rot else 7}"); e.raw(f"s_cselect_b32 s63, {md if rot else 7}, 0"); g.s2("s_sub_u32", S(59), S(59), S(63))
        if rot == 2: g.s2("s_add_u32", S(59), S(59), 1)
        g.s2("s_lshl_b32", sXo[c], S(59), 7); g.s2("s_lshl_b32", sWo[c], S(59), 19)
    g.v2("v_lshrrev_b32", V(32), 6, V(0))
    e.readfirstlane(sW, V(32))
    g.s1("s_mov_b32", sExact, 0)
    g.s2("s_lshl_b32", sRB, sW, 14); g.s2("s_add_u32", sRB, sRB, LDS_B)
    g.s2("s_mul_i32", sWB, sW, 12288)
    g.s2("s_mul_i32", sXD, sW, 5120); g.s2("s_add_u32", sXD, sXD, XS)
    g.s1("s_mov_b32", sC, hex(f2u(math.log2(math.e) / 16.0)))
    g.v2("v_and_b32", vL, 63, V(0))
    P = [V(32+i) for i in range(16)]
    q16, gg, r4, c4, prow, pg, t, u, w_v = P[0], P[1], P[2], P[3], P[4], P[5], P[6], P[7], P[8]
    def lanefields():
        g.v2("v_and_b32", q16, 15, vL); g.v2("v_lshrrev_b32", gg, 4, vL)
        g.v3("v_bfe_u32", r4, vL, 2, 2); g.v2("v_and_b32", c4, 3, vL)
        g.v2("v_lshrrev_b32", prow, 3, vL); g.v2("v_and_b32", pg, 7, vL)
        g.v1("v_mov_b32", w_v, sW)
    s896 = S(63)
    def xwq_offsets():
        g.s1("s_mov_b32", s896, 896)
        for i in range(5):
            g.v3("v_mad_u32_u24", t, w_v, 5, i)
            g.v2("v_and_b32", u, 1, t); g.v3("v_lshl_add_u32", u, u, 2, gg)
            g.v2("v_xor_b32", u, u, pg); g.v2("v_lshlrev_b32", u, 4, u)
            g.v3("v_lshl_add_u32", t, t, 3, prow)
            g.v3("v_mad_u32_u24", vDX[i], t, s896, u)
            if 0 < i < 4: g.v2("v_subrev_u32", vDX[i], 1024*i, vDX[i])
        for par in range(2):
            g.v3("v_bfe_u32", u, prow, 1, 1)
            if par: g.v2("v_or_b32", u, 2, u)
            g.v2("v_lshlrev_b32", u, 1, u); g.v2("v_xor_b32", u, u, pg); g.v2("v_lshlrev_b32", u, 4, u)
            g.v3("v_lshl_add_u32", u, w_v, 7, u)
            g.v2("v_lshlrev_b32", t, 13, prow); g.v2("v_add_u32", vDWQ[par], t, u)
        for jj in (2, 3): g.v2("v_add_u32", vDWQ[jj], 64512*jj, vDWQ[jj & 1])
        g.v2("v_add_u32", vDWQ[1], 64512, vDWQ[1])
    lanefields(); xwq_offsets()
    e.raw("s_waitcnt lgkmcnt(0)")
    if opt.pstamp: g.stamp("karg")
    e.raw(f"s_cmp_eq_u32 {sBr}, 0")
    for (pa, pb) in [(36,46),(42,52),(38,48),(40,50),(44,54)]:
        e.raw(f"s_cselect_b32 s{pa}, s{pa}, s{pb}"); e.raw(f"s_cselect_b32 s{pa+1}, s{pa+1}, s{pb+1}")
    def srd(dst, plo, off_sreg, nrec):
        g.s2("s_add_u32", dst[0], S(plo), off_sreg); e.salu(f"s_addc_u32 {dst[1]}, s{plo+1}, 0")
        g.s1("s_mov_b32", dst[2], nrec); g.s1("s_mov_b32", dst[3], "0x00020000")
    t0, t1 = S(58), S(59)
    g.s2("s_mul_i32", t0, sBt, 143360); srd(sX, 36, t0, 143360)
    g.s2("s_lshl_b32", t1, sH, 9); g.s2("s_sub_u32", t0, 3670016, t1); srd(sWQ, 42, t1, t0)
    def first_dmas():
        g.forget()
        g.run(g.dma_group(vDX, sX, sXD, 0, (sXo[0], 0), sO1, H, ('x', 0), flags=opt.w_flags))
        g.run(g.dma_group(vDWQ, sWQ, sWB, 0, (sWo[0], 0), sO2, H, ('wq', 0), flags=opt.w_flags))
    snap0 = e.snapshot()
    first_dmas()
    g.s2("s_lshl_b32", t0, sBt, 4); g.s2("s_add_u32", t0, t0, sH)
    g.s2("s_lshl_b32", t1, t0, 18); srd(sK, 38, t1, 262144); srd(sV, 40, t1, 262144)
    g.s2("s_lshl_b32", t1, sBr, 7); g.s2("s_add_u32", t0, t0, t1)
    g.s2("s_mul_i32", t1, t0, PART_UNIT)
    if int(opt.ws_off): g.s2("s_add_u32", t1, t1, hex(int(opt.ws_off) << 20))
    srd(sWS, 56, t1, PART_UNIT)
    g.s2("s_mul_i32", t1, sH, 229376); srd(sWO, 44, t1, 229376)
    if opt.fused:
        g.s2("s_add_u32", sDBG[0], S(56), "0x3000000"); e.salu(f"s_addc_u32 {sDBG[1]}, s57, 0")
        g.s1("s_mov_b32", sDBG[2], 131072); g.s1("s_mov_b32", sDBG[3], "0x00020000")
        g.s2("s_lshl_b32", t1, sBr, 3); g.s2("s_add_u32", t1, t1, sBt); g.s2("s_lshl_b32", sCnt, t1, 13)
    e.raw("s_branch L_first")
    e.label("L_restart")
    e.restore(snap0)
    lanefields(); xwq_offsets()
    first_dmas()
    e.label("L_first")
    g.forget()
    if opt.warm:
        g.s2("s_mul_i32", t0, sBt, 56); g.s2("s_mul_i32", t1, sW, 14); g.s2("s_add_u32", t0, t0, t1)
        g.v2("v_lshrrev_b32", t, 2, vL); g.v2("v_add_u32", t, t0, t); g.v2("v_lshlrev_b32", t, 13, t)
        g.v3("v_lshl_add_u32", t, c4, 7, t)
        e.raw(f"buffer_load_dword {vDum}, {t}, {sWQ}, 0 offen"); e.vm_issued += 1
        g.s2("s_and_b32", t0, sH, 3); g.s2("s_mul_i32", t0, t0, 280); g.s2("s_mul_i32", t1, sW, 70); g.s2("s_add_u32", t0, t0, t1)
        g.v2("v_add_u32", u, t0, vL); g.v2("v_lshlrev_b32", u, 7, u)
        e.raw(f"buffer_load_dword {vDum}, {u}, {sX}, 0 offen"); e.vm_issued += 1
    if opt.pstamp: g.stamp("warm")
    if not opt.late_wq1: g.run(g.dma_group(vDWQ, sWQ, sWB, 4096, (sWo[0], 262144), sO2, H, ('wq', 1), flags=opt.w_flags))
    if opt.pstamp: g.stamp("wq12")
    for par in range(2):
        g.v2("v_add_u32", u, 4*par, gg); g.v2("v_xor_b32", u, u, pg); g.v2("v_lshlrev_b32", u, 4, u)
        g.v3("v_lshl_add_u32", t, w_v, 5, prow); g.v2("v_lshlrev_b32", t, 9, t)
        g.v2("v_add_u32", vD[par], t, u)
    for jj in (2, 3): g.v2("v_add_u32", vD[jj], 3072*jj, vD[jj & 1])
    g.v2("v_add_u32", vD[1], 3072, vD[1])
    SLOT = {n: n & 3 for n in range(22)}
    SLOT.update({n: n & 3 for n in range(22, 48)})
    def dma_n(n):
        if n < 16:   return g.dma_group(vD, sK, sRB, 4096*SLOT[n], 65536*(n >> 2) + 128*(n & 3), sO1, H, ('r', n), flags=kvflag)
        if n < 32:   return g.dma_group(vD, sV, sRB, 4096*SLOT[n], 16384*(n-16), sO1, H, ('r', n), flags=kvflag)
        i = n - 32
        return g.dma_group(vDW, sWO, sRB, 4096*SLOT[n], 28672*(i % 8) + 128*(i // 8), sO2, H, ('r', n), flags=opt.wo_flags)
    def switchD(base):
        return [lambda jj=jj: (g.v1("v_mov_b32", vD[0], base) if jj == 0 else g.v2("v_add_u32", vD[jj], base[1]*jj, base[0])) for jj in range(4)]
    gv = P[9]
    g.v3("v_bfe_u32", u, prow, 1, 2); g.v2("v_lshlrev_b32", u, 1, u); g.v2("v_xor_b32", u, u, pg); g.v2("v_lshlrev_b32", gv, 4, u)
    g.v2("v_lshlrev_b32", u, 9, prow); g.v2("v_add_u32", u, u, gv); g.v3("v_lshl_add_u32", vVb, w_v, 7, u)
    s224 = S(58); g.s1("s_mov_b32", s224, 224)
    g.v3("v_mad_u32_u24", u, prow, s896, gv); g.v3("v_mad_u32_u24", vWOb, w_v, s224, u)
    g.v2("v_lshlrev_b32", t, 4, vL); g.v2("v_add_u32", vB0, LDS_A, t); g.v2("v_add_u32", vB1, LDS_A + 40960, t)
    g.v2("v_lshrrev_b32", u, 1, q16)
    for sp, (vx, vk) in enumerate([(vX0, vK0), (vX1, vK1)]):
        g.v2("v_add_u32", t, 4*sp, gg); g.v2("v_xor_b32", t, t, u); g.v2("v_lshlrev_b32", t, 4, t)
        g.v3("v_lshl_add_u32", t, q16, 7, t)
        g.v2("v_add_u32", vx, XS, t); g.v2("v_add_u32", vk, sRB, t)
    phq, phv, base = P[10], P[11], P[12]
    g.v2("v_lshrrev_b32", u, 1, r4)
    g.v2("v_and_b32", t, 1, gg); g.v3("v_lshl_or_b32", phq, t, 1, u)
    g.v3("v_lshl_add_u32", phv, gg, 1, u); g.v2("v_and_b32", phv, 3, phv)
    g.v3("v_lshl_add_u32", base, gg, 3, r4); g.v2("v_lshlrev_b32", base, 7, base); g.v3("v_lshl_add_u32", base, c4, 3, base)
    g.v2("v_add_u32", base, sWB, base)
    for tt in range(4):
        g.v2("v_xor_b32", t, tt, phq); g.v3("v_lshl_add_u32", vTq[tt], t, 5, base)
    g.v3("v_lshl_add_u32", base, gg, 2, r4); g.v2("v_lshlrev_b32", base, 7, base); g.v3("v_lshl_add_u32", base, c4, 3, base)
    g.v2("v_add_u32", base, sRB, base)
    for tt in range(4):
        g.v2("v_xor_b32", t, tt, phv); g.v3("v_lshl_add_u32", vTv[tt], t, 5, base)
    sA = S(59); g.s2("s_mul_i32", sA, sW, 20480); g.s2("s_add_u32", sA, sA, LDS_A)
    g.v2("v_lshrrev_b32", t, 1, gg); g.v2("v_and_b32", u, 1, gg); g.v3("v_lshl_or_b32", t, u, 1, t)
    g.v2("v_lshlrev_b32", t, 8, t); g.v3("v_lshl_add_u32", t, q16, 4, t); g.v2("v_add_u32", vQW, sA, t)
    g.v2("v_lshlrev_b32", t, 4, vL)
    g.s2("s_mul_i32", sA, sW, 10240); g.s2("s_add_u32", sA, sA, LDS_A); g.v2("v_add_u32", vPW, sA, t)
    g.s2("s_lshl_b32", sA, sW, 10); g.v2("v_add_u32", vWS, sA, t)
    g.v2("v_lshlrev_b32", vSTR, 4, q16); g.s2("s_lshl_b32", sA, sW, 2); g.v2("v_add_u32", vSTW, sA, vSTR)
    g.v2("v_lshlrev_b32", t, 2, vL); g.v2("v_add_u32", t, 8192, t)
    e.valu(f"v_cmp_eq_u32 vcc, 0, {gg}", src=[gg]); e.nop(2)
    e.valu(f"v_cndmask_b32 {vSTM}, {t}, {vSTW}, vcc", dst=[vSTM], src=[t, vSTW])
    for b in range(10): g.v1("v_mov_b32", vM[b], "0xff800000")

    def rdR(n):
        slot = n & 3; ls = SLOT[n]; fs = []
        if n < 16:
            for sp in range(2):
                for tt in range(2):
                    fs.append(lambda sp=sp, tt=tt: e.ds_read("ds_read_b128", Rs(n).sub(8*sp + 4*tt, 4), (vK0, vK1)[sp], 4096*ls + 2048*tt))
        else:
            for tt in range(4):
                for hf in range(2):
                    fs.append(lambda tt=tt, hf=hf: e.ds_read("ds_read_b64_tr_b16", Rs(n).sub(4*tt + 2*hf, 2), vTv[tt], 4096*ls + 2048*hf))
        return [lambda: e.wait_vm(H[('r', n)])] + fs
    RSEQ = {}
    def rdR_mark(n):
        fs = rdR(n)
        def mark(): RSEQ[n] = e.lg_issued
        return fs + [mark]
    def dma_after(n_read, n_dma):
        return [lambda: e.wait_lg(RSEQ[n_read])] + dma_n(n_dma)

    g.stamp("prolog")
    def rdA_wq(s):
        fs = []
        for tt in range(4):
            for hf in range(2):
                fs.append(lambda tt=tt, hf=hf: e.ds_read("ds_read_b64_tr_b16", aWQ[s & 1][tt].sub(2*hf, 2), vTq[tt], 4096*(s % 3) + 512*hf))
        return fs
    if opt.late_wq1:
        W0 = H[('wq', 0)]
        g.run(g.dma_group(vDWQ, sWQ, sWB, 4096, (sWo[0], 262144), sO2, H, ('wq', 1), flags=opt.w_flags))
    if opt.tlb_pf:
        ta, tz = V(48), V(49)
        g.v1("v_mov_b32", tz, 0)
        for srd_, off in ((sK, 0), (sV, 0), (sWO, 0), (sWO, 229372), (sDBG, 0)):
            g.s1("s_mov_b32", S(36), off)
            e.raw(f"buffer_load_dword {V(17)}, {tz}, {srd_}, s36 offen"); e.vm_issued += 1
        g.s2("s_mul_i32", S(36), sH, PART_UNIT); g.s2("s_sub_u32", S(38), sWS[0], S(36)); e.salu(f"s_subb_u32 s39, {sWS[1]}, 0")
        g.v2("v_and_b32", ta, 15, vL); g.s1("s_mov_b32", S(37), PART_UNIT); e.valu(f"v_mul_lo_u32 {ta}, {ta}, {S(37)}", dst=[ta], src=[ta, S(37)])
        e.raw(f"global_load_dword {V(17)}, {ta}, s[38:39]"); e.vm_issued += 1
        g.s2("s_mul_i32", S(36), sBt, 160*1792); g.v1("v_mov_b32", ta, S(36))
        e.raw(f"global_load_dword {V(17)}, {ta}, s[92:93]"); e.vm_issued += 1
    e.wait_vm(H[('wq', 0)])
    e.barrier()
    g.stamp("firstdata")
    g.run(rdA_wq(0))
    sg = Seg(g)
    NQ = 14
    for s in range(NQ):
        for b in range(10):
            mf = [lambda B, b=b, tt=tt, s=s: e.mfma(accQ(tt, b), aWQ[s & 1][tt], B, accQ(tt, b) if s > 0 else 0) for tt in range(4)]
            sg.add_group(mf, ((vX0, vX1)[s & 1], 20480*((s >> 1) & 1) + 2048*b))
    kread = eval(str(opt.kread))
    kfirst = eval(str(opt.kfirst))
    for s in range(NQ):
        o = 40*s; nxt = s + 1
        if s == 0:
            place(sg.gaps, g.dma_group(vDWQ, sWQ, sWB, 4096*2, (sWo[1], 0), sO2, H, ('wq', 2), flags=opt.w_flags), o + 0, 2)
            place(sg.gaps, g.dma_group(vDX, sX, sXD, 20480, (sXo[1], 0), sO1, H, ('x', 1), flags=opt.w_flags), o + 8, 3)
        if nxt < NQ:
            spread(sg.gaps, [lambda nxt=nxt: e.wait_vm(H[('wq', nxt)])] + [C(f, int(opt.c_ds)) for f in rdA_wq(nxt)], o + int(opt.qa_lo), o + 38)
            if nxt % 2 == 0:
                c = nxt // 2
                def bar(c=c):
                    e.wait_vm(H[('x', c)]); e.wait_lg_all(); e.barrier()
                sg.preB.setdefault(10*s + 2, []).append(bar)
                if c + 1 < 7:
                    place(sg.gaps, g.dma_group(vDX, sX, sXD, 20480*((c+1) & 1), (sXo[c+1], 0), sO1, H, ('x', c+1), flags=opt.w_flags), o + 19)
        if s + 3 < NQ:
            lo = 24 if s == 0 else 3
            place(sg.gaps, g.dma_group(vDWQ, sWQ, sWB, 4096*(s % 3), (sWo[(s+3) >> 1], 262144*((s+3) & 1)), sO2, H, ('wq', s+3), flags=opt.w_flags), o + lo)
        if s in kfirst:
            assert s % 2 == 0 or s >= 11
            place(sg.gaps, dma_n(kfirst[s]), o + 22)
        if s in kread:
            lst = kread[s] if isinstance(kread[s], (list, tuple)) else [kread[s]]
            for k_, n in enumerate(lst):
                if len(lst) == 1:
                    spread(sg.gaps, [C(f, int(opt.c_ds)) for f in rdR_mark(n)], o + 2, o + 18)
                    place(sg.gaps, dma_after(n, n + 4), o + 22)
                else:
                    spread(sg.gaps, [C(f, int(opt.c_ds)) for f in rdR_mark(n)], o + 1 + 20*k_, o + 7 + 20*k_)
                    place(sg.gaps, dma_after(n, n + 4), o + 8 + 20*k_, 3)
    if opt.qstamp:
        for s_ in range(1, 14): sg.gaps.setdefault(40*s_ - 1, []).append(lambda s_=s_: g.stamp(f"q{s_-1}"))
    def qcvt(b):
        fs = []
        for u in range(2):
            d, d2 = accQ(2*u, b), accQ(2*u + 1, b)
            fs.append(lambda d=d: g.cvt(d[0], d[0], d[1])); fs.append(lambda d=d: g.cvt(d[1], d[2], d[3]))
            fs.append(lambda d=d, d2=d2: g.cvt(d[2], d2[0], d2[1])); fs.append(lambda d=d, d2=d2: g.cvt(d[3], d2[2], d2[3]))
            fs.append(lambda d=d: e.valu(f"v_permlane16_swap_b32 {d[0]}, {d[2]}", dst=[d[0], d[2]], src=[d[0], d[2]], permlane=True))
            fs.append(lambda d=d: e.valu(f"v_permlane16_swap_b32 {d[1]}, {d[3]}", dst=[d[1], d[3]], src=[d[1], d[3]], permlane=True))
        return fs
    o13 = 40*(NQ - 1); qtail = []
    for b in range(10):
        lo = o13 + 4*(b+1) + 3
        if b < 8: spread(sg.gaps, qcvt(b), lo, min(o13 + 40, lo + 8))
        else: qtail += qcvt(b)
    sg.emit()
    g.stamp("Qdone")
    g.run(qtail)
    e.wait_lg_all(); e.barrier()
    for b in range(10):
        for u in range(2):
            e.ds_write("ds_write_b128", vQW, accQ(2*u, b), u*10240 + b*1024)
    for b in range(10): g.v1("v_mov_b32", vLs[b], 0)
    e.wait_lg_all(); e.barrier()
    if opt.dump == 'Q': return finish_dump(g)
    def vBf(f): return (vB0, f*1024) if f < 40 else (vB1, (f-40)*1024)

    if opt.fallback:
        e.raw(f"s_cmp_eq_u32 {sExact}, 0"); e.raw("s_cbranch_scc1 L_nosweep")
        snap = e.snapshot()
        e.wait_vm_all(); e.wait_lg_all()
        sp_, ka = S(36), V(172)
        kq = V(173)
        g.v2("v_and_b32", kq, 15, vL); g.v2("v_lshlrev_b32", kq, 9, kq)
        g.v2("v_lshrrev_b32", ka, 4, vL); g.v3("v_lshl_add_u32", ka, ka, 4, kq)
        g.s2("s_lshl_b32", S(37), sW, 14); g.v2("v_add_u32", ka, S(37), ka)
        g.s1("s_mov_b32", sp_, 0)
        e.label("L_sweep")
        fa = [V(112, 4), V(116, 4)]; fb = V(120, 4)
        for s in range(8):
            for tt in range(2):
                g.s2("s_add_u32", S(38), sp_, 8192*tt)
                e.gload("buffer_load_dwordx4", fa[tt], ka, sK, S(38), offset=64*s)
            for b in range(10):
                a_, o_ = vBf(s*10 + b)
                e.ds_read("ds_read_b128", fb, a_, o_)
                for tt in range(2):
                    e.mfma(accS(0, tt, b), fa[tt], fb, accS(0, tt, b) if s > 0 else 0)
                e.nop(4)
        for b in range(10):
            s0, s1 = accS(0, 0, b), accS(0, 1, b)
            g.v3("v_max3_f32", vM[b], vM[b], s0[0], s0[1]); g.v3("v_max3_f32", vM[b], vM[b], s0[2], s0[3])
            g.v3("v_max3_f32", vM[b], vM[b], s1[0], s1[1]); g.v3("v_max3_f32", vM[b], vM[b], s1[2], s1[3])
        e.wait_lg_all(); e.wait_vm_all()
        g.s2("s_add_u32", sp_, sp_, 65536); e.raw(f"s_cmp_lt_u32 {sp_}, 0x40000"); e.raw("s_cbranch_scc1 L_sweep")
        e.nop(8)
        for sw in ("v_permlane32_swap_b32", "v_permlane16_swap_b32"):
            for b in range(10):
                tb = V(112 + b)
                g.v1("v_mov_b32", tb, vM[b])
                e.valu(f"{sw} {tb}, {vM[b]}", dst=[tb, vM[b]], src=[tb, vM[b]], permlane=True)
                g.v2("v_max_f32", vM[b], tb, vM[b])
        e.nop(8)
        e.restore(snap)
        e.label("L_nosweep")
    g.stamp("Qepi")

    sg = Seg(g)
    mstart = {}
    gstart = {}
    for n in range(16):
        p, cb = n >> 2, n & 3
        mstart[n] = sg.nm; gstart[n] = len(sg.groups)
        for sp in range(2):
            s = 2*cb + sp
            for b in range(10):
                mf = [lambda B, b=b, tt=tt, p=p, s=s, sp=sp, cb=cb: e.mfma(accS(p, tt, b), Rs(4*p + cb).sub(8*sp + 4*tt, 4), B, accS(p, tt, b) if s > 0 else 0) for tt in range(2)]
                sg.add_group(mf, vBf(s*10 + b))
    for j in range(16):
        n = 16 + j; c, wp = j >> 2, j & 3
        mstart[n] = sg.nm; gstart[n] = len(sg.groups)
        for b in range(10):
            mf = [lambda B, b=b, tt=tt, j=j, n=n: e.mfma(accO(tt, b), Rs(n).sub(4*tt, 4), B, accO(tt, b) if j > 0 else 0) for tt in range(4)]
            sg.add_group(mf, ((vB1 if (c & 1) else vB0), (wp*10 + b)*1024))
    gp = sg.gaps
    LA = 5
    for n in range(32):
        o = mstart[n]
        if n >= 1:
            if n + LA < 32: spread(gp, [C(f, int(opt.c_ds)) for f in rdR_mark(n + LA)], o + 1, o + 20)
            nd = n + LA + 4; pre = []
            if nd == 16: pre = [lambda: g.v1("v_mov_b32", vD[0], vVb)] + [lambda jj=jj: g.v2("v_add_u32", vD[jj], 3072*jj, vVb) for jj in (1, 2, 3)]
            if nd == 32: pre = [lambda: g.v1("v_mov_b32", vDW[0], vWOb)] + [lambda jj=jj: g.v2("v_add_u32", vDW[jj], 6144*jj, vWOb) for jj in (1, 2, 3)]
            if nd <= 35: place(gp, pre + dma_after(n + LA, nd), o + 22)
    def Wreg(i):
        if i < 2: return A(208 + 16*i, 16)
        if i < 4: return V(224 + 16*(i-2), 16)
        if i < 7: return V(176 + 16*(i-4), 16)
        if i == 7: return A(168, 16)
        if i < 14: return aR[i-8].sub(0, 12)
        return A(184 + 12*(i-14), 12)
    def rdW(i):
        n = 32 + i; nt_ = 4 if i < 8 else 3; W = Wreg(i); fs = [lambda: e.wait_vm(H[('r', n)])]
        for tt in range(nt_):
            for hf in range(2):
                fs.append(C(lambda tt=tt, hf=hf: e.ds_read("ds_read_b64_tr_b16", W.sub(4*tt + 2*hf, 2), vTv[tt], 4096*SLOT[n] + 2048*hf), int(opt.c_ds)))
        def mark(): RSEQ[n] = e.lg_issued
        return fs + [C(mark, 0)]
    ms = mstart
    WS = {0: ([(27, 4), (27, 24), (28, 4), (28, 24)], [(29, 10), (30, 2), (30, 22), (31, 2)]),
          1: ([(27, 14), (28, 6), (28, 26), (29, 6)], [(30, 2), (30, 22), (31, 2), (31, 20)]),
          2: ([(28, 4), (28, 24), (29, 4), (29, 24)], [(30, 10), (31, 0), (31, 14), (31, 26)])}[int(opt.wsched)]
    for i, (st_, lo) in enumerate(WS[0]):
        spread(gp, rdW(i), ms[st_] + lo, ms[st_] + lo + 10)
        place(gp, dma_after(32 + i, 36 + i), ms[st_] + lo + 10, 1)
    for i, (st_, lo) in enumerate(WS[1]):
        spread(gp, rdW(4 + i), ms[st_] + lo, ms[st_] + lo + 10)
        place(gp, dma_after(36 + i, 40 + i), min(ms[st_] + lo + 10, ms[31] + 36), 1)
    def max_ops():
        fs = []
        for b in range(10):
            s0, s1 = accS(0, 0, b), accS(0, 1, b)
            prs = ((s0[0], s0[1]), (s0[2], s0[3]), (s1[0], s1[1]), (s1[2], s1[3]))
            if opt.cheap_max: prs = prs[:1]
            for (x, y) in prs:
                fs.append(lambda b=b, x=x, y=y: g.v3("v_max3_f32", vM[b], vM[b], x, y))
        return fs
    def xreduce_ops(op, regs, lds_off):
        ta = vTmp; fs = []
        for sw in ("v_permlane32_swap_b32", "v_permlane16_swap_b32"):
            for b in range(10): fs.append(lambda b=b: g.v1("v_mov_b32", ta[b], regs[b]))
            for b in range(10):
                fs.append(lambda b=b, sw=sw: e.valu(f"{sw} {ta[b]}, {regs[b]}", dst=[ta[b], regs[b]], src=[ta[b], regs[b]], permlane=True))
            for b in range(10): fs.append(lambda b=b: g.v2(op, regs[b], ta[b], regs[b]))
        for b in range(10): fs.append(lambda b=b: e.ds_write("ds_write_b32", vSTW, regs[b], lds_off + 256*b))
        return fs
    def soft_ops(p):
        Z = [(b, j) for b in range(10) for j in range(8)]
        def z(b, j): return accS(p, j >> 2, b)[j & 3]
        def fma(i): b, j = Z[i]; return lambda: g.v3("v_fma_f32", z(b, j), z(b, j), sC, vM[b], neg_c=True)
        def ex(i):
            b, j = Z[i]; f = C(lambda: g.v1("v_exp_f32", z(b, j), z(b, j), trans=True), 8); f.trans = True; return f
        def add(i): b, j = Z[i]; return lambda: g.v2("v_add_f32", vLs[b], vLs[b], z(b, j))
        def pack(i):
            b, j = Z[i]; pk = park(p, b); k = j >> 1
            if pk.f == 'v': return [lambda: g.cvt(pk[k], z(b, j-1), z(b, j))]
            return [lambda: g.cvt(z(b, j-1), z(b, j-1), z(b, j)), lambda: g.accw(pk[k], z(b, j-1))]
        fs = []
        D1, D2 = int(opt.soft_d1), int(opt.soft_d2)
        if not opt.soft_pipe:
            for b in range(10):
                for j in range(8): fs.append(fma(8*b + j))
                for j in range(8): fs.append(ex(8*b + j))
                for j in range(8): fs.append(add(8*b + j))
                for j in (1, 3, 5, 7): fs += pack(8*b + j)[:1]
                for j in (1, 3, 5, 7): fs += pack(8*b + j)[1:]
            return fs
        for i in range(80 + D2 + 3):
            if i < 80: fs.append(fma(i))
            if 0 <= i - D1 < 80: fs.append(ex(i - D1))
            if 0 <= i - D2 < 80: fs.append(add(i - D2))
            k = i - D2 - 1
            if 0 <= k < 80 and k % 2 == 1:
                pk_ = pack(k); fs.append(pk_[0])
                if len(pk_) > 1: fs.append(("late", pk_[1]))
        out = []; pend = None
        for f in fs:
            if isinstance(f, tuple):
                if pend is not None: out.append(pend)
                pend = f[1]
            else:
                out.append(f)
                if pend is not None and getattr(f, "trans", False): out.append(pend); pend = None
        if pend is not None: out.append(pend)
        return out
    def spread_steps(fs, steps, lo=0, hi=40, first_lo=None):
        l = first_lo if first_lo is not None else lo
        spread(gp, fs, mstart[steps[0]] + l, mstart[steps[-1]] + hi)
    if opt.cheap_max:
        pub = [lambda b=b: e.ds_write("ds_write_b32", vSTM, vM[b], 256*b) for b in range(10)]
        spread(gp, max_ops() + pub, mstart[4] + 2, mstart[4] + 24)
    else:
        spread(gp, max_ops() + xreduce_ops("v_max_f32", vM, 0), mstart[4] + 2, mstart[4] + 38)
    def bar_max():
        e.wait_lg_all(); e.barrier()
    gp.setdefault(mstart[4] + (27 if opt.cheap_max else 39), []).append(bar_max)
    st = [V(176 + 8*b + 4, 4) if False else V(112 + 4*b, 4) for b in range(10)]
    fs = [lambda b=b: e.ds_read("ds_read_b128", st[b], vSTR, 256*b) for b in range(10)]
    for b in range(10):
        fs.append(lambda b=b: g.v3("v_max3_f32", vM[b], st[b][0], st[b][1], st[b][2]))
        fs.append(lambda b=b: g.v2("v_max_f32", vM[b], vM[b], st[b][3]))
        fs.append(lambda b=b: g.v2("v_mul_f32", vM[b], sC, vM[b]))
    if opt.cheap_max:
        spread(gp, fs, mstart[4] + 28, mstart[5] + 4)
        spread_steps(soft_ops(0), [5, 6, 7], first_lo=4)
    else:
        spread(gp, fs, mstart[5] + 0, mstart[5] + 14)
        spread_steps(soft_ops(0), [5, 6, 7], first_lo=14)
    spread_steps(soft_ops(1), [8, 9, 10, 11])
    spread_steps(soft_ops(2), [12, 13, 14, 15])
    spread_steps(soft_ops(3), [16, 17, 18])
    def pwrite(c): return [C(lambda b=b, c=c: e.ds_write("ds_write_b128", vPW, park(c, b), (c & 1)*40960 + b*1024), int(opt.c_dsw)) for b in range(10)]
    def bar():
        e.wait_lg_all(); e.barrier()
    sg.preB.setdefault(gstart[14] + 0, []).append(bar)
    place_even(gp, pwrite(0), mstart[14] + 4, mstart[15] + 18)
    sg.preB.setdefault(gstart[15] + 11, []).append(bar)
    sg.preB.setdefault(gstart[16] + 1, []).append(bar)
    place_even(gp, pwrite(1), mstart[16] + 10, mstart[18] + 38)
    spread(gp, xreduce_ops("v_add_f32", vLs, 4096), mstart[18] + 39, mstart[19] + 11)
    sg.preB.setdefault(gstart[19] + 2, []).append(bar)
    place_even(gp, pwrite(2), mstart[19] + 14, mstart[22] + 38)
    sg.preB.setdefault(gstart[23] + 2, []).append(bar)
    place_even(gp, pwrite(3), mstart[23] + 14, mstart[26] + 38)
    sg.preB.setdefault(gstart[27] + 2, []).append(bar)
    stl = [V((216 if opt.inplace_p else 176) + 4*b, 4) for b in range(10)]
    fs = [lambda b=b: e.ds_read("ds_read_b128", stl[b], vSTR, 4096 + 256*b) for b in range(10)]
    for b in range(10):
        fs.append(lambda b=b: g.v2("v_add_f32", stl[b][0], stl[b][0], stl[b][1]))
        fs.append(lambda b=b: g.v2("v_add_f32", stl[b][2], stl[b][2], stl[b][3]))
        fs.append(lambda b=b: g.v2("v_add_f32", vLs[b], stl[b][0], stl[b][2]))
    if opt.fallback:
        ts = vTmp[1]
        fs.append(lambda: g.v2("v_add_f32", ts, vLs[0], vLs[1]))
        for b in range(2, 10): fs.append(lambda b=b: g.v2("v_add_f32", ts, ts, vLs[b]))
        def check():
            thr = 0.0 if opt.force_fb else 2.0**24
            g.s1("s_mov_b32", S(36), hex(f2u(thr)))
            e.valu(f"v_cmp_nge_f32 vcc, {S(36)}, {ts}", src=[S(36), ts])
            e.nop(4)
            e.raw("s_cmp_lg_u64 vcc, 0")
            e.raw(f"s_cselect_b32 s37, 1, 0")
            e.raw(f"s_andn2_b32 s37, s37, {sExact}")
            e.raw("s_cmp_lg_u32 s37, 0")
            e.raw("s_cbranch_scc1 L_fallback")
        fs.append(check)
    for b in range(10): fs.append(lambda b=b: g.v1("v_rcp_f32", vLs[b], vLs[b], trans=True))
    spread(gp, fs, mstart[20] + 0, mstart[21] + 20)
    if opt.warm_wo:
        def warm_wo():
            t_, s_ = vTmp[9], S(36)
            g.s2("s_mul_i32", s_, sBt, 224); g.s2("s_mul_i32", S(37), sW, 56); g.s2("s_add_u32", s_, s_, S(37))
            g.v2("v_add_u32", t_, s_, vL); g.v2("v_lshlrev_b32", t_, 7, t_)
            e.raw(f"buffer_load_dword {vDum}, {t_}, {sWO}, 0 offen"); e.vm_issued += 1
        gp.setdefault(mstart[int(opt.warm_at)] + 30, []).append(warm_wo)
    vOW0, vOW1 = V(17), V(31)
    otmp = V(164, 8)
    def opost(b):
        fs = []
        for u in range(2):
            tl = [accO(2*u + h2, b) for h2 in range(2)]
            if tl[0].f == 'a':
                z = [otmp[j] for j in range(8)]
                for h2 in range(2):
                    for r in range(4): fs.append(lambda h2=h2, r=r, tl=tl, z=z: g.accr(z[4*h2 + r], tl[h2][r]))
            else:
                z = [tl[h2][r] for h2 in range(2) for r in range(4)]
            for j in range(8): fs.append(lambda j=j, z=z, b=b: g.v2("v_mul_f32", z[j], z[j], vLs[b]))
            o4 = V(z[0].i, 4)
            for j in range(4): fs.append(lambda j=j, z=z, o4=o4: g.cvt(o4[j], z[2*j], z[2*j+1]))
            fs.append(C(lambda o4=o4, u=u, b=b: e.ds_write("ds_write_b128", vOW0 if b < 5 else vOW1, o4, (b % 5)*8192 + u*1024), 8))
        return fs
    def setup_ow():
        g.s2("s_lshl_b32", S(36), sW, 11); g.s2("s_add_u32", S(36), S(36), LDS_A)
        g.v2("v_lshlrev_b32", vOW0, 4, vL); g.v2("v_add_u32", vOW0, S(36), vOW0); g.v2("v_add_u32", vOW1, 40960, vOW0)
    gp.setdefault(mstart[26] + 2, []).append(C(setup_ow, 20))
    o31 = mstart[31]
    ptail = []
    for b in range(5):
        lo = o31 + 4*(b+1) + 3
        if b < 3: spread(gp, opost(b), lo, min(o31 + 40, lo + 12))
        else: ptail += opost(b)
    if opt.pvstamp:
        for n_ in range(20, 32): gp.setdefault(mstart[n_] - 1, []).append(lambda n_=n_: g.stamp(f"n{n_-1}"))
    if opt.stamps:
        for n_, nm_ in ((4, "S0"), (8, "S1"), (12, "S2"), (16, "S3"), (20, "PV0"), (24, "PV1"), (28, "PV2")):
            gp.setdefault(mstart[n_] - 1, []).append(lambda nm_=nm_: g.stamp(nm_))
    sg.emit()
    g.stamp("PVdone")
    g.run(ptail)
    if opt.fused:
        e.raw("s_memrealtime s[92:93]"); e.raw("s_waitcnt lgkmcnt(0)"); e.lg_done = e.lg_issued
    e.wait_lg_all(); e.barrier()
    if opt.dump == 'O':
        for b in range(5, 10): g.run(opost(b))
        return finish_dump(g)
    g.stamp("Opost")

    if opt.fused and opt.own_keep: g.s1("s_mov_b32", sExact, "0x7ff00000")
    sg = Seg(g); gp = sg.gaps
    accA = lambda b, t: V(32 + 16*(b & 1) + 4*t, 4)
    accB = lambda b, t: V(80 + 12*(b & 1) + 4*t, 4)
    bst = {}
    def Bsrc(b, j): return (vB0, (b*8 + j)*1024) if b < 5 else (vB1, ((b-5)*8 + j)*1024)
    for st in range(2):
        nt_ = 4 if st == 0 else 3; acc = accA if st == 0 else accB
        order = [(b, j) for b in range(10) for j in range(8)]
        if st == 0:
            order = [(0, j) for j in range(5)] + [(1, j) for j in range(5)] + [(0, j) for j in range(5, 8)] + [(1, j) for j in range(5, 8)] + order[16:]
        for (b, j) in order:
            if (st, b) not in bst: bst[(st, b)] = sg.nm
            W = Wreg(8*st + j)
            mf = [lambda B, b=b, tt=tt, j=j, W=W, acc=acc: e.mfma(acc(b, tt), W.sub(4*tt, 4), B, acc(b, tt) if j > 0 else 0) for tt in range(nt_)]
            sg.add_group(mf, Bsrc(b, j))
    bend = {(0, 0): 13*4, (0, 1): 16*4}
    for b in range(2, 10): bend[(0, b)] = bst[(0, b)] + 32
    for b in range(10): bend[(1, b)] = bst[(1, b)] + 24
    if opt.stamps:
        for nm_, pos in (("ob1", 63), ("ob4", bst[(0, 5)] - 1), ("ost1", bst[(1, 0)] - 1), ("ob2_4", bst[(1, 5)] - 1)):
            gp.setdefault(pos, []).append(lambda nm_=nm_: g.stamp(nm_))
    for k_ in range(4):
        lo = 8 + 16*k_
        spread(gp, rdW(8 + k_), lo, lo + 14)
        place(gp, dma_after(40 + k_, 44 + k_), lo + 14, 2)
    for k_ in range(4):
        lo = bst[(0, 8)] + 14*k_
        spread(gp, rdW(12 + k_), lo, lo + 14)
    u1 = []
    for b in range(5, 10): u1 += opost(b)
    spread(gp, u1, 0, bst[(0, 4)] - 1)
    sg.preB.setdefault(31, []).append(bar)
    keepA, keepC = V(21, 4), V(25, 4)
    def store_e(O, ee):
        if opt.skip_st: return
        own = ee if ee < 16 else (ee - 20 if ee >= 20 else None)
        if opt.fused and opt.own_keep and own is not None:
            kp = keepA if ee < 16 else keepC
            lab = f"L_keep{ee}"
            e.raw(f"s_cmp_eq_u32 {sH}, {own}"); e.raw(f"s_cselect_b32 {sO3}, {sExact}, {ee*4096}")
            e.raw(f"s_cbranch_scc0 {lab}")
            for j in range(4): g.v1("v_mov_b32", kp[j], O[j])
            e.label(lab)
        else:
            g.s1("s_mov_b32", sO3, ee*4096)
        e.gstore("buffer_store_dwordx4", O, vWS, sWS, sO3, flags=opt.st_flags)
    kk = [0]
    def pair_epi(x, y, ee):
        O = V(64 + 4*(kk[0] & 3), 4); kk[0] += 1
        return [lambda: g.cvt(O[0], x[0], x[1]), lambda: g.cvt(O[1], x[2], x[3]), lambda: g.cvt(O[2], y[0], y[1]), lambda: g.cvt(O[3], y[2], y[3]),
                VM(C(lambda: store_e(O, ee), 24))]
    def epiA(b): return pair_epi(accA(b, 0), accA(b, 1), b) + pair_epi(accA(b, 2), accA(b, 3), 10 + b)
    def epiB(b):
        fs = pair_epi(accB(b, 0), accB(b, 1), 20 + b)
        O6 = V(104 + 4*((b >> 1) & 1), 4); d = accB(b, 2)
        fs += [lambda: g.cvt(O6[2*(b & 1)], d[0], d[1]), lambda: g.cvt(O6[2*(b & 1) + 1], d[2], d[3])]
        if b & 1: fs.append(VM(C(lambda: store_e(O6, 30 + (b >> 1)), 8)))
        return fs
    for b in range(10):
        nx = bend[(0, b)]
        hi = nx + 22 if b != 0 else 64 - 1
        spread(gp, epiA(b), nx + 3, hi)
    for b in range(9):
        nx = bend[(1, b)]
        spread(gp, epiB(b), nx + 3, nx + 20)
    tail = epiB(9)
    def signal(gen):
        lab = f"L_sig{gen}"
        e.raw(f"s_cmp_lg_u32 {sW}, 0"); e.raw(f"s_cbranch_scc1 {lab}")
        e.raw("s_mov_b64 exec, 0xffff")
        e.raw(f"v_mov_b32 v30, {sTok[0]}"); e.raw(f"v_mov_b32 v31, {sTok[1]}"); e.raw("v_lshlrev_b32 v29, 7, v1")
        e.raw(f"s_lshl_b32 s36, {sH}, 3"); e.raw(f"s_add_u32 s36, s36, {sCnt}"); e.raw(f"s_add_u32 s36, s36, {4096*gen}")
        e.raw(f"buffer_store_dwordx2 v[30:31], v29, {sDBG}, s36 offen sc1")
        e.raw("s_mov_b64 exec, -1")
        e.label(lab)
    if opt.fused:
        rd = Red(g)
        ST0 = {}
        def mark0(): ST0['seq'] = e.vm_issued
        gp.setdefault(bend[(0, 9)] + 23, []).append(C(mark0, 0))
        def sig0():
            e.wait_vm(ST0['seq']); e.barrier(); signal(0)
        b0 = int(opt.sig0_blk); b1 = int(opt.poll0_blk)
        gp.setdefault(bst[(1, b0)] + 4, []).append(C(sig0, 24))
        NL = 15 if opt.own_keep else 16
        ldA = [V(112 + 4*h, 4) for h in range(NL)]; ldB = [V(176 + 4*h, 4) for h in range(16)]
        vA0, vR0, vA1, vR1 = V(240), V(241), V(242), V(243)
        tq = [V(244), V(245), V(246), V(247)]
        def prep0():
            rd.setup_common(); rd.decode(0); rd.addr(vA0, vR0, tq)
        vt = V(248, 6)
        def prep0b():
            prep0(); rd.poll_setup(vt); rd.decode(1); rd.addr(vA1, vR1, tq)
            e.raw("s_mov_b32 s79, 0") if False else None
        gp.setdefault(bst[(1, 1)] + 12, []).append(C(prep0b, 100))
    sg.emit()
    g.stamp("outdone")
    g.run(tail)
    if opt.fused:
        acc = [V(64 + j) for j in range(8)]; tmp = [V(72 + j) for j in range(4)]
        if opt.own_keep: ldC = [V(32 + 4*h, 4) for h in range(8)] + [V(88 + 4*h, 4) for h in range(6)] + [V(172, 4)]
        else: ldC = [V(8 + 4*h, 4) if h < 14 else V(88 + 4*(h-14), 4) for h in range(16)]
        kA, kC = (keepA, keepC) if opt.own_keep else (None, None)
        vA2, vR2 = V(254), V(255)
        def flags_to_s44():
            e.raw(f"v_subrev_co_u32 {vt[4]}, vcc, {sT0[0]}, {vt[2]}"); e.raw("s_nop 1")
            e.raw(f"v_subb_co_u32 {vt[5]}, vcc, {vt[3]}, {vt[1]}, vcc")
            e.raw(f"v_lshrrev_b32 {vt[4]}, 24, {vt[4]}"); e.raw(f"v_or_b32 {vt[4]}, {vt[4]}, {vt[5]}")
            e.raw(f"v_cmp_eq_u32 vcc, 0, {vt[4]}"); e.raw("s_nop 4")
            e.raw("s_or_b32 s44, vcc_lo, s43")
        def raw_loads(ld, vA):
            snap = e.snapshot(); g.run(rd.loads(ld, vA, sO1)); e.restore(snap)
            for r_ in [x for l_ in ld for x in l_.regs()]: e.pend.pop(r_, None)
        e.wait_vm_all(); e.barrier(); signal(1)
        g.stamp("sig1")
        rd.decode(2); rd.addr(vA2, vR2, tq)
        e.raw("s_mov_b32 s47, s38")
        rd.pollw("0", 0xffff, vt, 0)
        g.stamp("poll0")
        e.raw("s_lshr_b32 s51, s44, 16"); e.raw("s_cmp_eq_u32 s51, 0xffff"); e.raw("s_cselect_b32 s51, 1, 0")
        raw_loads(ldA, vA0)
        e.raw(f"s_cmp_lg_u32 {sW}, 3"); e.raw("s_cbranch_scc1 L_x1")
        raw_loads(ldB, vA1)
        e.label("L_x1")
        e.raw("s_cmp_eq_u32 s51, 0"); e.raw("s_cbranch_scc1 L_x1b")
        e.raw("s_cmp_ge_u32 s47, 60"); e.raw("s_cbranch_scc1 L_x1b")
        raw_loads(ldC, vA2)
        e.label("L_x1b")
        e.raw(f"s_cmp_eq_u32 s51, 0"); e.raw("s_cbranch_scc1 L_x1d")
        e.raw(f"s_cmp_lg_u32 {sW}, 3"); e.raw("s_cbranch_scc1 L_x1e")
        e.raw(f"s_waitcnt vmcnt({NL})"); e.raw("s_branch L_x1f")
        e.label("L_x1e")
        e.raw("s_cmp_ge_u32 s47, 60"); e.raw("s_cbranch_scc1 L_x1d")
        e.raw(f"s_waitcnt vmcnt({NL})"); e.raw("s_branch L_x1f")
        e.label("L_x1d")
        e.raw("s_waitcnt vmcnt(0)")
        e.label("L_x1f")
        rd.sum_store(ldA, vR0, acc, tmp, V(76, 4), kA)
        e.raw("s_cmp_eq_u32 s51, 1"); e.raw("s_cbranch_scc1 L_x4")
        rd.pollw("1", 0xffff0000, vt, 1)
        e.raw("s_cmp_ge_u32 s47, 60"); e.raw("s_cbranch_scc1 L_x4")
        raw_loads(ldC, vA2)
        e.label("L_x4")
        g.stamp("poll1")
        e.raw(f"s_cmp_lg_u32 {sW}, 3"); e.raw("s_cbranch_scc1 L_x2")
        snap = e.snapshot()
        e.raw(f"s_waitcnt vmcnt({NL})")
        e.raw("s_cmp_lt_u32 s47, 60"); e.raw("s_cbranch_scc1 L_x2b")
        e.raw("s_waitcnt vmcnt(0)")
        e.label("L_x2b")
        rd.sum_store(ldB, vR1, acc, tmp, V(80, 4))
        e.restore(snap)
        e.label("L_x2")
        e.raw("s_cmp_ge_u32 s47, 60"); e.raw("s_cbranch_scc1 L_x5")
        e.raw("s_waitcnt vmcnt(0)"); e.vm_done = e.vm_issued
        rd.sum_store(ldC, vR2, acc, tmp, V(84, 4), kC)
        e.label("L_x5")
    if opt.stamps:
        e.wait_vm_all()
        g.stamp("end")
        g.stamp_flush()
    if opt.fallback:
        e.raw("s_endpgm")
        e.label("L_fallback")
        e.raw("s_waitcnt vmcnt(0) lgkmcnt(0)")
        e.raw("s_barrier")
        e.raw(f"s_mov_b32 {sExact}, 1")
        e.raw("s_branch L_restart")
    e.label("L_k1_end")
    e.raw("s_endpgm")
    return e

class Red:
    def __init__(self, g):
        self.g = g; self.e = g.e
        self.sRS, self.sOS = S(4, 4), S(8, 4)
    def setup_common(self):
        g, e = self.g, self.e
        g.s2("s_mul_i32", S(41), sH, PART_UNIT)
        g.s2("s_sub_u32", self.sRS[0], sWS[0], S(41)); e.salu(f"s_subb_u32 {self.sRS[1]}, {sWS[1]}, 0")
        g.s1("s_mov_b32", self.sRS[2], 16*PART_UNIT); g.s1("s_mov_b32", self.sRS[3], "0x00020000")
        e.raw("s_load_dwordx2 s[8:9], s[0:1], 80"); e.raw("s_waitcnt lgkmcnt(0)"); e.lg_done = e.lg_issued
        g.s1("s_mov_b32", self.sOS[2], 1280*1792); g.s1("s_mov_b32", self.sOS[3], "0x00020000")
    def decode(self, slot):
        g, e = self.g, self.e
        sPi, sWp, sE = S(38), S(39), S(40)
        if slot == 1:
            g.s2("s_lshr_b32", sE, sH, 2); g.s2("s_add_u32", sE, sE, 16); g.s2("s_and_b32", sWp, sH, 3)
            g.s2("s_add_u32", sPi, sH, 64)
        else:
            g.s2("s_lshl_b32", sPi, sH, 2); g.s2("s_add_u32", sPi, sPi, sW)
            g.s1("s_mov_b32", sWp, sW)
            if slot == 0: g.s1("s_mov_b32", sE, sH)
            else: g.s2("s_add_u32", sE, sH, 20)
    def addr(self, vA, vRow, tmp):
        g, e = self.g, self.e
        sWp, sE = S(39), S(40)
        q16, gg, t, u = tmp
        g.s2("s_lshl_b32", S(45), sWp, 10); g.s2("s_lshl_b32", S(46), sE, 12); g.s2("s_add_u32", S(45), S(45), S(46))
        g.v2("v_lshlrev_b32", vA, 4, vL); g.v2("v_add_u32", vA, S(45), vA)
        g.v2("v_and_b32", q16, 15, vL); g.v2("v_lshrrev_b32", gg, 4, vL)
        g.v2("v_and_b32", t, 1, gg); g.v2("v_lshrrev_b32", u, 1, gg); g.v2("v_lshlrev_b32", u, 3, u)
        sPP, sBlk = S(48), S(49)
        g.s2("s_mul_hi_u32", sPP, sE, 429496730)
        g.s2("s_mul_i32", sBlk, sPP, 10); g.s2("s_sub_u32", sBlk, sE, sBlk)
        g.s2("s_sub_u32", S(52), sE, 30); g.s2("s_lshl_b32", S(52), S(52), 1)
        g.s2("s_lshl_b32", S(53), sPP, 5)
        e.raw(f"s_cmp_lt_u32 {sE}, 30")
        e.raw(f"s_cselect_b32 s52, {sBlk}, s52"); e.raw("s_cselect_b32 s53, s53, 96")
        e.raw("s_cselect_b32 s54, 16, 0"); e.raw("s_cselect_b32 s55, 0, 16")
        g.s2("s_mul_i32", S(56), sBt, 160); g.s2("s_lshl_b32", S(52), S(52), 4); g.s2("s_add_u32", S(56), S(56), S(52))
        g.s2("s_mul_i32", S(50), sBr, 448); g.s2("s_mul_i32", S(58), sWp, 112); g.s2("s_add_u32", S(50), S(50), S(58)); g.s2("s_add_u32", S(50), S(50), S(53))
        g.v3("v_mad_u32_u24", vRow, t, S(55), q16); g.v2("v_add_u32", vRow, S(56), vRow)
        g.v3("v_mad_u32_u24", q16, t, S(54), u); g.v2("v_add_u32", q16, S(50), q16)
        g.s1("s_mov_b32", S(59), 1792)
        g.v2("v_lshlrev_b32", q16, 1, q16); g.v3("v_mad_u32_u24", vRow, vRow, S(59), q16)
    def loads(self, ld, vA, sreg):
        g, e = self.g, self.e; fs = []
        for k in range(len(ld)):
            def f(k=k):
                if len(ld) == 16: g.s1("s_mov_b32", sreg, k*PART_UNIT)
                else:
                    g.s2("s_add_u32", S(46), sH, k + 1); g.s2("s_and_b32", S(46), S(46), 15); g.s2("s_mul_i32", sreg, S(46), PART_UNIT)
                e.gload("buffer_load_dwordx4", ld[k], vA, self.sRS, sreg, flags=opt.red_flags)
            fs.append(VM(C(f, 8)))
        return fs
    def sum_store(self, ld, vRow, acc, tmp, O, keep=None):
        g, e = self.g, self.e
        if keep is not None: ld = [keep] + list(ld)
        for h in range(16):
            for j in range(4):
                if h == 0:
                    g.v2("v_lshlrev_b32", acc[2*j], 16, ld[h][j]); g.v2("v_and_b32", acc[2*j+1], "0xffff0000", ld[h][j])
                else:
                    a_, b_ = tmp[2*(j & 1)], tmp[2*(j & 1) + 1]
                    g.v2("v_lshlrev_b32", a_, 16, ld[h][j]); g.v2("v_and_b32", b_, "0xffff0000", ld[h][j])
                    g.v2("v_add_f32", acc[2*j], acc[2*j], a_); g.v2("v_add_f32", acc[2*j+1], acc[2*j+1], b_)
        for j in range(4): g.cvt(O[j], acc[2*j], acc[2*j+1])
        e.valu(f"v_permlane16_swap_b32 {O[0]}, {O[2]}", dst=[O[0], O[2]], src=[O[0], O[2]], permlane=True)
        e.valu(f"v_permlane16_swap_b32 {O[1]}, {O[3]}", dst=[O[1], O[3]], src=[O[1], O[3]], permlane=True)
        return e.gstore("buffer_store_dwordx4", O, vRow, self.sOS, None, flags=opt.out_flags)
    def pollw(self, name, need, vt, word):
        e = self.e
        lab = f"L_pw{name}"
        e.raw(f"s_cmp_lg_u32 {sW}, 0"); e.raw(f"s_cbranch_scc1 {lab}_bar")
        e.raw(f"s_mov_b32 s42, {int(opt.spin)}")
        e.label(lab)
        e.raw(f"buffer_load_dwordx2 {vt.sub(2, 2)}, {vt[0]}, {sDBG}, s41 offen sc1")
        e.raw("s_waitcnt vmcnt(0)")
        e.raw(f"v_subrev_co_u32 {vt[4]}, vcc, {sT0[0]}, {vt[2]}"); e.raw("s_nop 1")
        e.raw(f"v_subb_co_u32 {vt[5]}, vcc, {vt[3]}, {vt[1]}, vcc")
        e.raw(f"v_lshrrev_b32 {vt[4]}, 24, {vt[4]}"); e.raw(f"v_or_b32 {vt[4]}, {vt[4]}, {vt[5]}")
        e.raw(f"v_cmp_eq_u32 vcc, 0, {vt[4]}"); e.raw("s_nop 4")
        e.raw("s_or_b32 s44, vcc_lo, s43")
        e.raw(f"s_and_b32 s45, s44, {hex(need)}"); e.raw(f"s_cmp_eq_u32 s45, {hex(need)}"); e.raw(f"s_cbranch_scc1 {lab}_ok")
        e.raw("s_sub_u32 s42, s42, 1"); e.raw("s_cmp_eq_u32 s42, 0"); e.raw(f"s_cbranch_scc1 {lab}_ok")
        e.raw(f"s_sleep {int(opt.sleep)}")
        e.raw(f"s_branch {lab}")
        e.label(f"{lab}_ok")
        e.raw(f"v_mov_b32 {vt[4]}, s44"); e.raw(f"v_mov_b32 {vt[5]}, {12288 + 4*word}")
        e.raw(f"ds_write_b32 {vt[5]}, {vt[4]}"); e.raw("s_waitcnt lgkmcnt(0)")
        e.label(f"{lab}_bar")
        e.raw("s_barrier")
        e.raw(f"v_mov_b32 {vt[5]}, {12288 + 4*word}")
        e.raw(f"ds_read_b32 {vt[4]}, {vt[5]}"); e.raw("s_waitcnt lgkmcnt(0)")
        e.raw(f"v_readfirstlane_b32 s44, {vt[4]}"); e.raw("s_nop 3")
    def poll_setup(self, vt):
        e = self.e
        e.raw(f"v_and_b32 {vt[0]}, 15, v1"); e.raw(f"v_lshlrev_b32 {vt[0]}, 3, {vt[0]}")
        e.raw(f"v_bfe_u32 {vt[1]}, v1, 4, 1"); e.raw(f"v_lshl_add_u32 {vt[0]}, {vt[1]}, 12, {vt[0]}")
        e.raw(f"v_mov_b32 {vt[1]}, {sT0[1]}")
        e.raw(f"s_lshl_b32 s43, 0x10001, {sH}")
        e.raw(f"s_lshl_b32 s41, {sH}, 7"); e.raw(f"s_add_u32 s41, s41, {sCnt}")
    def poll(self, gen, vt):
        e = self.e
        lab = f"L_poll{gen}"
        e.raw(f"s_cmp_lg_u32 {sW}, 0"); e.raw(f"s_cbranch_scc1 {lab}_bar")
        e.raw(f"s_add_u32 s41, {sCnt}, {4096*gen}")
        e.raw(f"s_mov_b32 s42, {int(opt.spin)}")
        e.raw(f"v_and_b32 {vt[0]}, 15, v1"); e.raw(f"v_lshlrev_b32 {vt[0]}, 3, {vt[0]}"); e.raw(f"v_mov_b32 {vt[1]}, {sT0[1]}")
        e.label(lab)
        e.raw(f"buffer_load_dwordx2 {vt.sub(2, 2)}, {vt[0]}, {sDBG}, s41 offen sc1")
        e.raw("s_waitcnt vmcnt(0)")
        e.raw(f"v_subrev_co_u32 {vt[4]}, vcc, {sT0[0]}, {vt[2]}"); e.raw("s_nop 1")
        e.raw(f"v_subb_co_u32 {vt[5]}, vcc, {vt[3]}, {vt[1]}, vcc")
        e.raw(f"v_lshrrev_b32 {vt[4]}, 24, {vt[4]}"); e.raw(f"v_or_b32 {vt[4]}, {vt[4]}, {vt[5]}")
        e.raw(f"v_cmp_eq_u32 vcc, 0, {vt[4]}"); e.raw("s_nop 4")
        e.raw("s_cmp_eq_u64 vcc, -1"); e.raw(f"s_cbranch_scc1 {lab}_bar")
        e.raw("s_sub_u32 s42, s42, 1"); e.raw("s_cmp_eq_u32 s42, 0"); e.raw(f"s_cbranch_scc1 {lab}_bar")
        e.raw(f"s_sleep {int(opt.sleep)}")
        e.raw(f"s_branch {lab}")
        e.label(f"{lab}_bar")
        e.barrier()

def finish_dump(g):
    e = g.e
    e.wait_lg_all(); e.wait_vm_all(); e.barrier()
    t = V(240); u = V(244, 4)
    g.s2("s_mul_i32", S(38), sW, 20480)
    g.v2("v_lshlrev_b32", t, 4, vL); g.v2("v_add_u32", t, S(38), t)
    a = V(241); g.v2("v_add_u32", a, LDS_A, t)
    for i in range(20):
        e.ds_read("ds_read_b128", u, a, i*1024)
        g.s1("s_mov_b32", sO2, i*1024)
        e.gstore("buffer_store_dwordx4", u, t, sWS, sO2)
        e.wait_vm_all()
    e.label("L_fallback")
    e.label("L_k1_end")
    e.raw("s_endpgm")
    return e

import gen1
def assemble(path):
    k1 = build_k1()
    hdr = open("cdna_kernels/" + NAME + ".s.ref").read().split("; Override launch")[0]
    out = hdr
    KD = gen1.KD.replace("next_free_sgpr 96", "next_free_sgpr 102")
    if opt.fused:
        nm = NAME + "_kernel"
        out += f"; @launch grid=(256,1,1) block=(256,1,1) lds={LDS_TOTAL}\n"
        out += '.amdgcn_target "amdgcn-amd-amdhsa--gfx950"\n.text\n'
        out += f".globl {nm}\n.p2align 8\n.type {nm},@function\n{nm}:\n" + k1.text()
        out += '.section .rodata,"a"\n.p2align 6\n' + KD.format(name=nm, vgpr=512, acc=256)
    else:
        gen1.opt.k2_flags = opt.k2_flags; gen1.opt.stamps = opt.stamps
        k2 = gen1.build_k2()
        out += f"; @launch kernel=mha_k1_kernel grid=(256,1,1) block=(256,1,1) lds={LDS_TOTAL}\n"
        out += f"; @launch kernel=mha_k2_kernel grid=(560,1,1) block=(256,1,1) lds=0\n"
        out += '.amdgcn_target "amdgcn-amd-amdhsa--gfx950"\n.text\n'
        for nm, k in (("mha_k1_kernel", k1), ("mha_k2_kernel", k2)):
            out += f".globl {nm}\n.p2align 8\n.type {nm},@function\n{nm}:\n" + k.text()
        out += '.section .rodata,"a"\n.p2align 6\n' + KD.format(name="mha_k1_kernel", vgpr=512, acc=256)
        out += '.p2align 6\n' + KD.format(name="mha_k2_kernel", vgpr=96, acc=96)
    open(path, "w").write(out)
    if opt.stamps: print("STAMPS", ",".join(STAMPS))
    print("k1 stats", k1.stats, file=sys.stderr)

if __name__ == "__main__":
    path = sys.argv[1]
    for a in sys.argv[2:]:
        k, v = a.split("=")
        if v in ("True", "False"): v = (v == "True")
        elif v == "None": v = None
        setattr(opt, k, v)
    assemble(path)
```

```python
import sys, math, struct
from emit import *

NAME = "concat_heads__mha_block_cached__mha_block_cached__near_ridge"
LDS_M = 0; LDS_A = 16384; LDS_B = 98304; XS = 49152
LDS_TOTAL = 163840
PART_UNIT = 143360
PART_WAVE = 35840

class Opt:
    nt_kv = True
    st_flags = "sc1"
    k2_flags = ""
    dump = None
    stamps = False
    warm = False
    fallback = True
    force_fb = False
    pstamp = False
    only = None
    skip_dma = ''
    soft_mask = 'feacw'
    wait_batch = 4
    level = 8
    early_qw = True
    prog_sum = True
    lateK = None
    tail2 = False
    ep_blk = 8
    soft3_end = 22
    tlb_pf = False
    out_flags = ''
    wsched = 2
    pvstamp = False
    NR = 6
    rtst = False
    own_keep = True
    c_ds = 5
    c_dma = 20
    c_dsw = 24
    soft_pipe = True
    soft_d1 = 2
    soft_d2 = 4
    tr_gap = 2
    wlate = True
    skip_st = False
    ws_off = 0
    late_wq1 = True
    cheap_max = True
    inplace_p = True
    fused = True
    red_flags = 'sc1'
    spin = 20000
    sig0_blk = 9
    poll0_blk = 10
    early0 = False
    epoll_blk = 5
    echeck_d = 2
    sleep = 4
    code_pf = True
    pf_lines = 4
    vm_gap = 3
    qstamp = False
    rot = 1
    w_flags = ''
    wo_flags = ''
    warm_wo = False
    warm_at = 21
    kread = '{8:0,10:1,11:[2,3],12:4,13:5}'
    kfirst = '{2:0,4:1,6:2,8:3}'
    qa_lo = 20
opt = Opt()
STAMPS = []
def f2u(x): return struct.unpack("<I", struct.pack("<f", x))[0]

sX, sK, sV, sWQ, sWO, sWS = S(4,4), S(8,4), S(12,4), S(16,4), S(20,4), S(24,4)
sW, sRB, sWB, sXD, sO1, sO2, sC, sExact = S(28), S(29), S(30), S(31), S(32), S(33), S(34), S(35)
sH, sBt, sBr = S(60), S(61), S(62)
sO3 = S(57)
sDBG = S(96, 4)
sCnt = S(100)
sT0 = S(78, 2)
sE0, sE1 = S(62+39), S(35)
sTok = S(92, 2)
sXo = [S(64+c) for c in range(7)]
sWo = [S(71+c) for c in range(7)]

vL = V(1)
vB0, vB1, vK0, vK1 = V(2), V(3), V(4), V(5)
vTv = [V(6+i) for i in range(4)]
vD  = [V(10+i) for i in range(4)]
vVb, vWOb, vPW, vSTW, vSTR, vWS = V(14), V(15), V(16), V(18), V(19), V(20)
vM  = [V(21+i) for i in range(10)]
vSTM = V(31)
vDum = V(0)
vX0, vX1 = V(152), V(153)
vTq  = [V(154+i) for i in range(4)]
vDX  = [V(158+i) for i in range(5)]
vDWQ = [V(163+i) for i in range(4)]
vQW  = V(167)
vLs = [V(152+i) for i in range(10)]
vDW = [V(172+i) for i in range(4)]
vTmp = [V(162+i) for i in range(10)]
NB = 8
aB = [A(4*i, 4) for i in range(NB)]
aR = [A(32 + 16*i, 16) for i in range(4)] + [A(136 + 16*i, 16) for i in range(2)]
def Rs(n): return aR[n % 6]
aWQ = [[A(96 + 16*s + 4*t, 4) for t in range(4)] for s in range(2)]
def park(p, b):
    if opt.inplace_p and p == 0: return V(112 + 4*b, 4)
    if opt.inplace_p and p == 3: return V(176 + 4*b, 4)
    return A((208 if p == 1 else 168) + 4*b, 4)

def accQ(t, b):
    i = b*4 + t
    return V(32 + 4*i, 4) if i < 30 else V(176 + 4*(i-30), 4)
def accS(p, t, b): return V((32 if p % 2 == 0 else 176) + 8*b + 4*t, 4)
def accO(t, b):
    i = b*4 + t
    return V(32 + 4*i, 4) if i < 30 else A(96 + 4*(i-30), 4)
def accP0(t, b): return A(96 + 4*(b*4+t), 4)
def accP1(t, b): return V(32 + 4*(b*3+t), 4)

class G:
    def __init__(self):
        self.e = Emit(); self.nst = 0
    def v2(self, op, d, a, b):
        self.e.valu(f"{op} {d}, {a}, {b}", dst=[d], src=[x for x in (a, b) if isinstance(x, R)])
    def v1(self, op, d, a, trans=False):
        self.e.valu(f"{op} {d}, {a}", dst=[d], src=[a] if isinstance(a, R) else [], trans=trans)
    def v3(self, op, d, a, b, c, neg_c=False):
        cc = f"-{c}" if neg_c else f"{c}"
        self.e.valu(f"{op} {d}, {a}, {b}, {cc}", dst=[d], src=[x for x in (a, b, c) if isinstance(x, R)])
    def cvt(self, d, a, b):
        self.e.valu(f"v_cvt_pk_bf16_f32 {d}, {a}, {b}", dst=[d], src=[a, b])
    def accw(self, d, a):
        self.e.valu(f"v_accvgpr_write_b32 {d}, {a}", dst=[d], src=[a])
    def accr(self, d, a):
        self.e.valu(f"v_accvgpr_read_b32 {d}, {a}", dst=[d], src=[a])
    def s2(self, op, d, a, b):
        self.e.salu(f"{op} {d}, {a}, {b}", reads=[x for x in (a, b) if isinstance(x, R)])
    def s1(self, op, d, a):
        self.e.salu(f"{op} {d}, {a}", reads=[a] if isinstance(a, R) else [])
    def m0(self, sbase, imm):
        self.e.salu(f"s_add_u32 m0, {sbase}, {imm}", w_m0=True, reads=[sbase])
    m0state = None
    sstate = None
    def ensure(self, sbase, ldsoff, sreg, soff_imm):
        if self.sstate is None: self.sstate = {}
        if self.m0state != (str(sbase), ldsoff):
            self.m0(sbase, ldsoff); self.m0state = (str(sbase), ldsoff)
        key = (str(soff_imm[0]), soff_imm[1]) if isinstance(soff_imm, tuple) else soff_imm
        if self.sstate.get(str(sreg)) != key:
            if isinstance(soff_imm, tuple): self.s2("s_add_u32", sreg, soff_imm[0], soff_imm[1])
            else: self.s1("s_mov_b32", sreg, soff_imm)
            self.sstate[str(sreg)] = key
    def forget(self):
        self.m0state = None; self.sstate = {}
    def dma_group(self, voffs, srd, sbase, ldsoff, soff_imm, sreg, holder, key, flags=""):
        e = self.e; fs = []
        for i in range(len(voffs)):
            def f(i=i):
                kind = key[0] if key[0] != 'r' else ('k' if key[1] < 16 else ('v' if key[1] < 32 else 'o'))
                if kind in opt.skip_dma or (kind == 'wq' and 'q' in opt.skip_dma): holder[key] = e.vm_issued; return
                self.ensure(sbase, ldsoff + (4096 if i == 4 else 0), sreg, soff_imm)
                holder[key] = e.dma(voffs[i], srd, sreg, offset=(1024*i if i < 4 else 0), flags=flags)
            f.vm = True
            fs.append(C(f, int(opt.c_dma) + (8 if i == 0 else 0)))
        return fs
    def run(self, fs):
        for f in fs: f()
    def stamp(self, name):
        if not opt.stamps: return
        if opt.only and name not in opt.only.split(","): return
        i = self.nst; self.nst += 1; STAMPS.append(name)
        assert i < 12
        self.e.raw("s_memrealtime s[94:95]" if opt.rtst else "s_memtime s[94:95]"); self.e.raw("s_waitcnt lgkmcnt(0)"); self.e.raw(f"s_mov_b32 s{80+i}, s94")
        self.e.lg_done = self.e.lg_issued
    def stamp_flush(self):
        e = self.e
        e.raw("s_memrealtime s[94:95]"); e.raw("s_waitcnt lgkmcnt(0)")
        e.raw("s_load_dwordx2 s[36:37], s[0:1], 96"); e.raw("s_waitcnt lgkmcnt(0)")
        e.salu("s_add_u32 s36, s36, 0x4000000"); e.salu("s_addc_u32 s37, s37, 0")
        e.salu("s_mov_b32 s38, 0x100000"); e.salu("s_mov_b32 s39, 0x00020000")
        e.salu("s_lshl_b32 s40, s2, 8"); e.salu(f"s_lshl_b32 s41, {sW}, 6"); e.salu("s_add_u32 s40, s40, s41")
        z = V(170); d = V(171)
        self.v1("v_mov_b32", z, 0)
        for i, src in [(i, S(80+i)) for i in range(self.nst)] + [(15, S(94)), (14, S(78))]:
            self.v1("v_mov_b32", d, src); e.salu(f"s_add_u32 s41, s40, {4*i}")
            e.gstore("buffer_store_dword", d, z, S(36, 4), S(41))

def cost_of(f): return getattr(f, "cost", 4)
def C(f, c):
    f.cost = c; return f

def VM(f):
    f.vm = True; return f

class Gaps:
    def __init__(self):
        self.streams = []; self.fixed = {}
    def setdefault(self, k, d): return self.fixed.setdefault(k, d)

def spread(gaps, fs, start, end):
    if not fs: return
    assert end > start, (start, end)
    gaps.streams.append(dict(ops=list(fs), lo=start, hi=end))

def place(gaps, fs, start, step=None):
    if step is None: step = int(opt.vm_gap)
    pos = start
    for f in fs:
        gaps.setdefault(pos, []).append(f)
        if getattr(f, "vm", False): pos += step

def place_even(gaps, fs, start, end):
    n = len(fs)
    for k, f in enumerate(fs): gaps.setdefault(start + (k * (end - start)) // n, []).append(f)

def schedule(N, F, streams, base=8.0):
    out = {}
    for s_ in streams:
        s_["k"] = 0; s_["rem"] = sum(cost_of(f) for f in s_["ops"]); s_["hi"] = min(s_["hi"], N)
    pf = [0]*(N+1)
    for i in range(N): pf[i+1] = pf[i] + F[i]
    carry = 0.0
    last_vm = -100
    last_tr = -100
    VMG = int(opt.vm_gap)
    for i in range(N):
        act = [s_ for s_ in streams if s_["k"] < len(s_["ops"])]
        if not act: break
        L = base
        his = sorted(set(s_["hi"] for s_ in act if s_["hi"] > i))
        for h in his:
            need = pf[h] - pf[i] + sum(s_["rem"] for s_ in act if s_["hi"] <= h and s_["lo"] < h)
            lo = max(i, min(s_["lo"] for s_ in act if s_["hi"] <= h))
            need2 = pf[h] - pf[lo] + sum(s_["rem"] for s_ in act if s_["hi"] <= h)
            if lo <= i: L = max(L, need2 / (h - lo))
        budget = L - F[i] + carry
        placed = 0
        while True:
            cand = [s_ for s_ in streams if s_["k"] < len(s_["ops"]) and s_["lo"] <= i]
            def blocked(x):
                f_ = x["ops"][x["k"]]
                if getattr(f_, "trans", False) and i - last_tr < int(opt.tr_gap):
                    nt_ = sum(1 for q in x["ops"][x["k"]:] if getattr(q, "trans", False))
                    return (x["hi"] - i) * 1.0 / int(opt.tr_gap) > nt_
                if not getattr(f_, "vm", False) or i - last_vm >= VMG: return False
                nv = sum(1 for q in x["ops"][x["k"]:] if getattr(q, "vm", False))
                return (x["hi"] - i) > nv
            cand = [x for x in cand if not blocked(x)]
            if not cand: break
            cand.sort(key=lambda s_: (s_["hi"] - s_["rem"] / max(L - 2.0, 1.0), s_["hi"]))
            s_ = cand[0]
            f = s_["ops"][s_["k"]]; c = cost_of(f)
            forced = any(x["hi"] - 1 <= i for x in cand)
            if forced:
                s_ = [x for x in cand if x["hi"] - 1 <= i][0]; f = s_["ops"][s_["k"]]; c = cost_of(f)
            elif budget - placed < c - 1.99: break
            out.setdefault(i, []).append(f); s_["k"] += 1; s_["rem"] -= c; placed += c
            if getattr(f, "vm", False): last_vm = i
            if getattr(f, "trans", False): last_tr = i
        carry = max(-6.0, min(2.0, budget - placed))
    for s_ in streams: assert s_["k"] == len(s_["ops"]), (s_["lo"], s_["hi"], s_["k"], len(s_["ops"]))
    return out

class Seg:
    def __init__(self, g):
        self.g = g; self.groups = []
        self.gaps = Gaps()
        self.preB = {}
        self.nm = 0; self.gstart = []
    def add_group(self, mf, bsrc):
        self.gstart.append(self.nm); self.groups.append((mf, bsrc)); self.nm += len(mf)
    def emit(self, wait_batch=None):
        if wait_batch is None: wait_batch = int(opt.wait_batch)
        e = self.g.e; seq = {}
        n = len(self.groups); N = self.nm
        F = [0]*N
        for G in range(n):
            last = self.gstart[G] + len(self.groups[G][0]) - 1
            if G + NB < n: F[last] += int(opt.c_ds)
            if G % wait_batch == 0 and G > 0: F[self.gstart[G] - 1] += 4
        for k_, v_ in self.gaps.fixed.items(): F[k_] += sum(cost_of(f) for f in v_)
        sched = schedule(N, F, self.gaps.streams, base=float(opt.level))
        def rd(G):
            a, o = self.groups[G][1]
            seq[G] = e.ds_read("ds_read_b128", aB[G % NB], a, o)
        for G in range(min(NB, n)): rd(G)
        idx = 0
        for G, (mf, _) in enumerate(self.groups):
            if G % wait_batch == 0:
                last = min(n-1, G + wait_batch - 1)
                while last not in seq: last -= 1
                e.wait_lg(seq[last])
            for m in mf:
                m(aB[G % NB])
                for f in sched.get(idx, []): f()
                for f in self.gaps.fixed.get(idx, []): f()
                idx += 1
            for f in self.preB.get(G, []): f()
            if G + NB < n: rd(G + NB)

def build_k1():
    g = G(); e = g.e
    kvflag = "nt" if opt.nt_kv else ""
    H = {}
    e.raw("s_cmp_ge_u32 s2, 256"); e.raw("s_cbranch_scc1 L_k1_end")
    if opt.code_pf:
        nl = int(opt.pf_lines)
        e.raw("s_getpc_b64 s[36:37]")
        e.label("L_pc")
        e.raw("v_lshrrev_b32 v2, 6, v0")
        e.raw("s_lshr_b32 s38, s2, 3"); e.raw("s_lshl_b32 s38, s38, 2")
        e.raw("v_add_u32 v2, s38, v2")
        e.raw(f"v_and_b32 v3, {nl-1}, v0")
        e.raw(f"v_mad_u32_u24 v2, v2, {nl}, v3")
        e.raw("v_lshlrev_b32 v2, 7, v2")
        e.raw("s_mov_b32 s38, L_k1_end-L_pc-4")
        e.raw("v_min_u32 v2, s38, v2")
        e.raw("v_and_b32 v2, -4, v2")
        e.raw("global_load_dword v17, v2, s[36:37]")
        e.vm_issued += 1
    if opt.stamps:
        e.raw("s_memrealtime s[78:79]"); e.raw("s_waitcnt lgkmcnt(0)")
    g.stamp("start")
    e.raw("s_load_dwordx16 s[36:51], s[0:1], 0")
    e.raw("s_load_dwordx4 s[52:55], s[0:1], 64")
    e.raw("s_load_dwordx2 s[56:57], s[0:1], 96")
    if opt.fused and not opt.stamps: e.raw("s_memrealtime s[78:79]")
    if opt.tlb_pf: e.raw("s_load_dwordx2 s[92:93], s[0:1], 80")
    g.s2("s_and_b32", S(58), S(2), 7); g.s2("s_lshr_b32", S(59), S(2), 3)
    g.s2("s_and_b32", sH, S(58), 3); g.s2("s_lshl_b32", sH, sH, 2)
    g.s2("s_and_b32", sBt, S(59), 3); g.s2("s_add_u32", sH, sH, sBt)
    g.s2("s_lshr_b32", sBt, S(59), 2); g.s2("s_lshr_b32", sBr, S(58), 2)
    rot = int(opt.rot)
    md = 6 if rot == 2 else 7
    if rot == 3:
        g.s2("s_and_b32", S(58), sH, 3); g.s2("s_lshr_b32", S(59), sBt, 1); g.s2("s_add_u32", S(58), S(58), S(59)); g.s2("s_lshl_b32", S(58), S(58), 1)
        for _ in range(2):
            e.raw(f"s_cmp_ge_u32 s58, {md}"); e.raw(f"s_cselect_b32 s59, {md}, 0"); g.s2("s_sub_u32", S(58), S(58), S(59))
    elif rot == 4:
        g.s2("s_and_b32", S(58), sH, 1); g.s2("s_lshr_b32", S(59), sBt, 2); g.s2("s_lshl_b32", S(59), S(59), 1); g.s2("s_add_u32", S(58), S(58), S(59)); g.s2("s_mul_i32", S(58), S(58), 2)
        for _ in range(2):
            e.raw(f"s_cmp_ge_u32 s58, {md}"); e.raw(f"s_cselect_b32 s59, {md}, 0"); g.s2("s_sub_u32", S(58), S(58), S(59))
    elif rot:
        g.s2("s_and_b32", S(58), sH, 3); g.s2("s_lshl_b32", S(58), S(58), 1); g.s2("s_add_u32", S(58), S(58), sBt)
        for _ in range(2):
            e.raw(f"s_cmp_ge_u32 s58, {md}"); e.raw(f"s_cselect_b32 s59, {md}, 0"); g.s2("s_sub_u32", S(58), S(58), S(59))
    else:
        g.s1("s_mov_b32", S(58), 0)
    for c in range(7):
        if rot == 2 and c == 0:
            g.s1("s_mov_b32", sXo[0], 0); g.s1("s_mov_b32", sWo[0], 0); continue
        g.s2("s_add_u32", S(59), S(58), c if rot != 2 else c - 1)
        e.raw(f"s_cmp_ge_u32 s59, {md if rot else 7}"); e.raw(f"s_cselect_b32 s63, {md if rot else 7}, 0"); g.s2("s_sub_u32", S(59), S(59), S(63))
        if rot == 2: g.s2("s_add_u32", S(59), S(59), 1)
        g.s2("s_lshl_b32", sXo[c], S(59), 7); g.s2("s_lshl_b32", sWo[c], S(59), 19)
    g.v2("v_lshrrev_b32", V(32), 6, V(0))
    e.readfirstlane(sW, V(32))
    g.s1("s_mov_b32", sExact, 0)
    g.s2("s_lshl_b32", sRB, sW, 14); g.s2("s_add_u32", sRB, sRB, LDS_B)
    g.s2("s_mul_i32", sWB, sW, 12288)
    g.s2("s_mul_i32", sXD, sW, 5120); g.s2("s_add_u32", sXD, sXD, XS)
    g.s1("s_mov_b32", sC, hex(f2u(math.log2(math.e) / 16.0)))
    g.v2("v_and_b32", vL, 63, V(0))
    P = [V(32+i) for i in range(16)]
    q16, gg, r4, c4, prow, pg, t, u, w_v = P[0], P[1], P[2], P[3], P[4], P[5], P[6], P[7], P[8]
    def lanefields():
        g.v2("v_and_b32", q16, 15, vL); g.v2("v_lshrrev_b32", gg, 4, vL)
        g.v3("v_bfe_u32", r4, vL, 2, 2); g.v2("v_and_b32", c4, 3, vL)
        g.v2("v_lshrrev_b32", prow, 3, vL); g.v2("v_and_b32", pg, 7, vL)
        g.v1("v_mov_b32", w_v, sW)
    s896 = S(63)
    def xwq_offsets():
        g.s1("s_mov_b32", s896, 896)
        for i in range(5):
            g.v3("v_mad_u32_u24", t, w_v, 5, i)
            g.v2("v_and_b32", u, 1, t); g.v3("v_lshl_add_u32", u, u, 2, gg)
            g.v2("v_xor_b32", u, u, pg); g.v2("v_lshlrev_b32", u, 4, u)
            g.v3("v_lshl_add_u32", t, t, 3, prow)
            g.v3("v_mad_u32_u24", vDX[i], t, s896, u)
            if 0 < i < 4: g.v2("v_subrev_u32", vDX[i], 1024*i, vDX[i])
        for par in range(2):
            g.v3("v_bfe_u32", u, prow, 1, 1)
            if par: g.v2("v_or_b32", u, 2, u)
            g.v2("v_lshlrev_b32", u, 1, u); g.v2("v_xor_b32", u, u, pg); g.v2("v_lshlrev_b32", u, 4, u)
            g.v3("v_lshl_add_u32", u, w_v, 7, u)
            g.v2("v_lshlrev_b32", t, 13, prow); g.v2("v_add_u32", vDWQ[par], t, u)
        for jj in (2, 3): g.v2("v_add_u32", vDWQ[jj], 64512*jj, vDWQ[jj & 1])
        g.v2("v_add_u32", vDWQ[1], 64512, vDWQ[1])
    lanefields(); xwq_offsets()
    e.raw("s_waitcnt lgkmcnt(0)")
    if opt.pstamp: g.stamp("karg")
    e.raw(f"s_cmp_eq_u32 {sBr}, 0")
    for (pa, pb) in [(36,46),(42,52),(38,48),(40,50),(44,54)]:
        e.raw(f"s_cselect_b32 s{pa}, s{pa}, s{pb}"); e.raw(f"s_cselect_b32 s{pa+1}, s{pa+1}, s{pb+1}")
    def srd(dst, plo, off_sreg, nrec):
        g.s2("s_add_u32", dst[0], S(plo), off_sreg); e.salu(f"s_addc_u32 {dst[1]}, s{plo+1}, 0")
        g.s1("s_mov_b32", dst[2], nrec); g.s1("s_mov_b32", dst[3], "0x00020000")
    t0, t1 = S(58), S(59)
    g.s2("s_mul_i32", t0, sBt, 143360); srd(sX, 36, t0, 143360)
    g.s2("s_lshl_b32", t1, sH, 9); g.s2("s_sub_u32", t0, 3670016, t1); srd(sWQ, 42, t1, t0)
    def first_dmas():
        g.forget()
        g.run(g.dma_group(vDX, sX, sXD, 0, (sXo[0], 0), sO1, H, ('x', 0), flags=opt.w_flags))
        g.run(g.dma_group(vDWQ, sWQ, sWB, 0, (sWo[0], 0), sO2, H, ('wq', 0), flags=opt.w_flags))
    snap0 = e.snapshot()
    first_dmas()
    g.s2("s_lshl_b32", t0, sBt, 4); g.s2("s_add_u32", t0, t0, sH)
    g.s2("s_lshl_b32", t1, t0, 18); srd(sK, 38, t1, 262144); srd(sV, 40, t1, 262144)
    g.s2("s_lshl_b32", t1, sBr, 7); g.s2("s_add_u32", t0, t0, t1)
    g.s2("s_mul_i32", t1, t0, PART_UNIT)
    if int(opt.ws_off): g.s2("s_add_u32", t1, t1, hex(int(opt.ws_off) << 20))
    srd(sWS, 56, t1, PART_UNIT)
    g.s2("s_mul_i32", t1, sH, 229376); srd(sWO, 44, t1, 229376)
    if opt.fused:
        g.s2("s_add_u32", sDBG[0], S(56), "0x3000000"); e.salu(f"s_addc_u32 {sDBG[1]}, s57, 0")
        g.s1("s_mov_b32", sDBG[2], 131072); g.s1("s_mov_b32", sDBG[3], "0x00020000")
        g.s2("s_lshl_b32", t1, sBr, 3); g.s2("s_add_u32", t1, t1, sBt); g.s2("s_lshl_b32", sCnt, t1, 13)
    e.raw("s_branch L_first")
    e.label("L_restart")
    e.restore(snap0)
    lanefields(); xwq_offsets()
    first_dmas()
    e.label("L_first")
    g.forget()
    if opt.warm:
        g.s2("s_mul_i32", t0, sBt, 56); g.s2("s_mul_i32", t1, sW, 14); g.s2("s_add_u32", t0, t0, t1)
        g.v2("v_lshrrev_b32", t, 2, vL); g.v2("v_add_u32", t, t0, t); g.v2("v_lshlrev_b32", t, 13, t)
        g.v3("v_lshl_add_u32", t, c4, 7, t)
        e.raw(f"buffer_load_dword {vDum}, {t}, {sWQ}, 0 offen"); e.vm_issued += 1
        g.s2("s_and_b32", t0, sH, 3); g.s2("s_mul_i32", t0, t0, 280); g.s2("s_mul_i32", t1, sW, 70); g.s2("s_add_u32", t0, t0, t1)
        g.v2("v_add_u32", u, t0, vL); g.v2("v_lshlrev_b32", u, 7, u)
        e.raw(f"buffer_load_dword {vDum}, {u}, {sX}, 0 offen"); e.vm_issued += 1
    if opt.pstamp: g.stamp("warm")
    if not opt.late_wq1: g.run(g.dma_group(vDWQ, sWQ, sWB, 4096, (sWo[0], 262144), sO2, H, ('wq', 1), flags=opt.w_flags))
    if opt.pstamp: g.stamp("wq12")
    for par in range(2):
        g.v2("v_add_u32", u, 4*par, gg); g.v2("v_xor_b32", u, u, pg); g.v2("v_lshlrev_b32", u, 4, u)
        g.v3("v_lshl_add_u32", t, w_v, 5, prow); g.v2("v_lshlrev_b32", t, 9, t)
        g.v2("v_add_u32", vD[par], t, u)
    for jj in (2, 3): g.v2("v_add_u32", vD[jj], 3072*jj, vD[jj & 1])
    g.v2("v_add_u32", vD[1], 3072, vD[1])
    SLOT = {n: n & 3 for n in range(22)}
    SLOT.update({n: n & 3 for n in range(22, 48)})
    def dma_n(n):
        if n < 16:   return g.dma_group(vD, sK, sRB, 4096*SLOT[n], 65536*(n >> 2) + 128*(n & 3), sO1, H, ('r', n), flags=kvflag)
        if n < 32:   return g.dma_group(vD, sV, sRB, 4096*SLOT[n], 16384*(n-16), sO1, H, ('r', n), flags=kvflag)
        i = n - 32
        return g.dma_group(vDW, sWO, sRB, 4096*SLOT[n], 28672*(i % 8) + 128*(i // 8), sO2, H, ('r', n), flags=opt.wo_flags)
    def switchD(base):
        return [lambda jj=jj: (g.v1("v_mov_b32", vD[0], base) if jj == 0 else g.v2("v_add_u32", vD[jj], base[1]*jj, base[0])) for jj in range(4)]
    gv = P[9]
    g.v3("v_bfe_u32", u, prow, 1, 2); g.v2("v_lshlrev_b32", u, 1, u); g.v2("v_xor_b32", u, u, pg); g.v2("v_lshlrev_b32", gv, 4, u)
    g.v2("v_lshlrev_b32", u, 9, prow); g.v2("v_add_u32", u, u, gv); g.v3("v_lshl_add_u32", vVb, w_v, 7, u)
    s224 = S(58); g.s1("s_mov_b32", s224, 224)
    g.v3("v_mad_u32_u24", u, prow, s896, gv); g.v3("v_mad_u32_u24", vWOb, w_v, s224, u)
    g.v2("v_lshlrev_b32", t, 4, vL); g.v2("v_add_u32", vB0, LDS_A, t); g.v2("v_add_u32", vB1, LDS_A + 40960, t)
    g.v2("v_lshrrev_b32", u, 1, q16)
    for sp, (vx, vk) in enumerate([(vX0, vK0), (vX1, vK1)]):
        g.v2("v_add_u32", t, 4*sp, gg); g.v2("v_xor_b32", t, t, u); g.v2("v_lshlrev_b32", t, 4, t)
        g.v3("v_lshl_add_u32", t, q16, 7, t)
        g.v2("v_add_u32", vx, XS, t); g.v2("v_add_u32", vk, sRB, t)
    phq, phv, base = P[10], P[11], P[12]
    g.v2("v_lshrrev_b32", u, 1, r4)
    g.v2("v_and_b32", t, 1, gg); g.v3("v_lshl_or_b32", phq, t, 1, u)
    g.v3("v_lshl_add_u32", phv, gg, 1, u); g.v2("v_and_b32", phv, 3, phv)
    g.v3("v_lshl_add_u32", base, gg, 3, r4); g.v2("v_lshlrev_b32", base, 7, base); g.v3("v_lshl_add_u32", base, c4, 3, base)
    g.v2("v_add_u32", base, sWB, base)
    for tt in range(4):
        g.v2("v_xor_b32", t, tt, phq); g.v3("v_lshl_add_u32", vTq[tt], t, 5, base)
    g.v3("v_lshl_add_u32", base, gg, 2, r4); g.v2("v_lshlrev_b32", base, 7, base); g.v3("v_lshl_add_u32", base, c4, 3, base)
    g.v2("v_add_u32", base, sRB, base)
    for tt in range(4):
        g.v2("v_xor_b32", t, tt, phv); g.v3("v_lshl_add_u32", vTv[tt], t, 5, base)
    sA = S(59); g.s2("s_mul_i32", sA, sW, 20480); g.s2("s_add_u32", sA, sA, LDS_A)
    g.v2("v_lshrrev_b32", t, 1, gg); g.v2("v_and_b32", u, 1, gg); g.v3("v_lshl_or_b32", t, u, 1, t)
    g.v2("v_lshlrev_b32", t, 8, t); g.v3("v_lshl_add_u32", t, q16, 4, t); g.v2("v_add_u32", vQW, sA, t)
    g.v2("v_lshlrev_b32", t, 4, vL)
    g.s2("s_mul_i32", sA, sW, 10240); g.s2("s_add_u32", sA, sA, LDS_A); g.v2("v_add_u32", vPW, sA, t)
    g.s2("s_lshl_b32", sA, sW, 10); g.v2("v_add_u32", vWS, sA, t)
    g.v2("v_lshlrev_b32", vSTR, 4, q16); g.s2("s_lshl_b32", sA, sW, 2); g.v2("v_add_u32", vSTW, sA, vSTR)
    g.v2("v_lshlrev_b32", t, 2, vL); g.v2("v_add_u32", t, 8192, t)
    e.valu(f"v_cmp_eq_u32 vcc, 0, {gg}", src=[gg]); e.nop(2)
    e.valu(f"v_cndmask_b32 {vSTM}, {t}, {vSTW}, vcc", dst=[vSTM], src=[t, vSTW])
    for b in range(10): g.v1("v_mov_b32", vM[b], "0xff800000")

    def rdR(n):
        slot = n & 3; ls = SLOT[n]; fs = []
        if n < 16:
            for sp in range(2):
                for tt in range(2):
                    fs.append(lambda sp=sp, tt=tt: e.ds_read("ds_read_b128", Rs(n).sub(8*sp + 4*tt, 4), (vK0, vK1)[sp], 4096*ls + 2048*tt))
        else:
            for tt in range(4):
                for hf in range(2):
                    fs.append(lambda tt=tt, hf=hf: e.ds_read("ds_read_b64_tr_b16", Rs(n).sub(4*tt + 2*hf, 2), vTv[tt], 4096*ls + 2048*hf))
        return [lambda: e.wait_vm(H[('r', n)])] + fs
    RSEQ = {}
    def rdR_mark(n):
        fs = rdR(n)
        def mark(): RSEQ[n] = e.lg_issued
        return fs + [mark]
    def dma_after(n_read, n_dma):
        return [lambda: e.wait_lg(RSEQ[n_read])] + dma_n(n_dma)

    g.stamp("prolog")
    def rdA_wq(s):
        fs = []
        for tt in range(4):
            for hf in range(2):
                fs.append(lambda tt=tt, hf=hf: e.ds_read("ds_read_b64_tr_b16", aWQ[s & 1][tt].sub(2*hf, 2), vTq[tt], 4096*(s % 3) + 512*hf))
        return fs
    if opt.late_wq1:
        W0 = H[('wq', 0)]
        g.run(g.dma_group(vDWQ, sWQ, sWB, 4096, (sWo[0], 262144), sO2, H, ('wq', 1), flags=opt.w_flags))
    if opt.tlb_pf:
        ta, tz = V(48), V(49)
        g.v1("v_mov_b32", tz, 0)
        for srd_, off in ((sK, 0), (sV, 0), (sWO, 0), (sWO, 229372), (sDBG, 0)):
            g.s1("s_mov_b32", S(36), off)
            e.raw(f"buffer_load_dword {V(17)}, {tz}, {srd_}, s36 offen"); e.vm_issued += 1
        g.s2("s_mul_i32", S(36), sH, PART_UNIT); g.s2("s_sub_u32", S(38), sWS[0], S(36)); e.salu(f"s_subb_u32 s39, {sWS[1]}, 0")
        g.v2("v_and_b32", ta, 15, vL); g.s1("s_mov_b32", S(37), PART_UNIT); e.valu(f"v_mul_lo_u32 {ta}, {ta}, {S(37)}", dst=[ta], src=[ta, S(37)])
        e.raw(f"global_load_dword {V(17)}, {ta}, s[38:39]"); e.vm_issued += 1
        g.s2("s_mul_i32", S(36), sBt, 160*1792); g.v1("v_mov_b32", ta, S(36))
        e.raw(f"global_load_dword {V(17)}, {ta}, s[92:93]"); e.vm_issued += 1
    e.wait_vm(H[('wq', 0)])
    e.barrier()
    g.stamp("firstdata")
    g.run(rdA_wq(0))
    sg = Seg(g)
    NQ = 14
    for s in range(NQ):
        for b in range(10):
            mf = [lambda B, b=b, tt=tt, s=s: e.mfma(accQ(tt, b), aWQ[s & 1][tt], B, accQ(tt, b) if s > 0 else 0) for tt in range(4)]
            sg.add_group(mf, ((vX0, vX1)[s & 1], 20480*((s >> 1) & 1) + 2048*b))
    kread = eval(str(opt.kread))
    kfirst = eval(str(opt.kfirst))
    for s in range(NQ):
        o = 40*s; nxt = s + 1
        if s == 0:
            place(sg.gaps, g.dma_group(vDWQ, sWQ, sWB, 4096*2, (sWo[1], 0), sO2, H, ('wq', 2), flags=opt.w_flags), o + 0, 2)
            place(sg.gaps, g.dma_group(vDX, sX, sXD, 20480, (sXo[1], 0), sO1, H, ('x', 1), flags=opt.w_flags), o + 8, 3)
        if nxt < NQ:
            spread(sg.gaps, [lambda nxt=nxt: e.wait_vm(H[('wq', nxt)])] + [C(f, int(opt.c_ds)) for f in rdA_wq(nxt)], o + int(opt.qa_lo), o + 38)
            if nxt % 2 == 0:
                c = nxt // 2
                def bar(c=c):
                    e.wait_vm(H[('x', c)]); e.wait_lg_all(); e.barrier()
                sg.preB.setdefault(10*s + 2, []).append(bar)
                if c + 1 < 7:
                    place(sg.gaps, g.dma_group(vDX, sX, sXD, 20480*((c+1) & 1), (sXo[c+1], 0), sO1, H, ('x', c+1), flags=opt.w_flags), o + 19)
        if s + 3 < NQ:
            lo = 24 if s == 0 else 3
            place(sg.gaps, g.dma_group(vDWQ, sWQ, sWB, 4096*(s % 3), (sWo[(s+3) >> 1], 262144*((s+3) & 1)), sO2, H, ('wq', s+3), flags=opt.w_flags), o + lo)
        if opt.lateK:
            plan = eval(str(opt.lateK))[0]
            for k_, (kind, n) in enumerate(plan.get(s, [])):
                two = len(plan[s]) > 1
                lo = (1 + 20*k_) if two else 18
                if kind == 'd': place(sg.gaps, dma_n(n), o + lo + (0 if two else 4), 3 if two else 4)
                else:
                    spread(sg.gaps, [C(f, int(opt.c_ds)) for f in rdR_mark(n)], o + (lo if two else 2), o + (lo + 6 if two else 18))
                    place(sg.gaps, dma_after(n, n + 4), o + (lo + 7 if two else 22), 3 if two else 4)
            continue
        if s in kfirst:
            assert s % 2 == 0 or s >= 11
            place(sg.gaps, dma_n(kfirst[s]), o + 22)
        if s in kread:
            lst = kread[s] if isinstance(kread[s], (list, tuple)) else [kread[s]]
            for k_, n in enumerate(lst):
                if len(lst) == 1:
                    spread(sg.gaps, [C(f, int(opt.c_ds)) for f in rdR_mark(n)], o + 2, o + 18)
                    place(sg.gaps, dma_after(n, n + 4), o + 22)
                else:
                    spread(sg.gaps, [C(f, int(opt.c_ds)) for f in rdR_mark(n)], o + 1 + 20*k_, o + 7 + 20*k_)
                    place(sg.gaps, dma_after(n, n + 4), o + 8 + 20*k_, 3)
    if opt.qstamp:
        for s_ in range(1, 14): sg.gaps.setdefault(40*s_ - 1, []).append(lambda s_=s_: g.stamp(f"q{s_-1}"))
    def qcvt(b):
        fs = []
        for u in range(2):
            d, d2 = accQ(2*u, b), accQ(2*u + 1, b)
            fs.append(lambda d=d: g.cvt(d[0], d[0], d[1])); fs.append(lambda d=d: g.cvt(d[1], d[2], d[3]))
            fs.append(lambda d=d, d2=d2: g.cvt(d[2], d2[0], d2[1])); fs.append(lambda d=d, d2=d2: g.cvt(d[3], d2[2], d2[3]))
            fs.append(lambda d=d: e.valu(f"v_permlane16_swap_b32 {d[0]}, {d[2]}", dst=[d[0], d[2]], src=[d[0], d[2]], permlane=True))
            fs.append(lambda d=d: e.valu(f"v_permlane16_swap_b32 {d[1]}, {d[3]}", dst=[d[1], d[3]], src=[d[1], d[3]], permlane=True))
        return fs
    o13 = 40*(NQ - 1); qtail = []
    def qwrite(b): return [C(lambda u=u, b=b: e.ds_write("ds_write_b128", vQW, accQ(2*u, b), u*10240 + b*1024), int(opt.c_dsw)) for u in range(2)]
    if opt.early_qw:
        def barq():
            e.wait_lg_all(); e.barrier()
        sg.preB.setdefault(10*(NQ - 1) + 2, []).append(barq)
    for b in range(10):
        lo = max(o13 + 4*(b+1) + 3, o13 + 12)
        if b < 8: spread(sg.gaps, qcvt(b) + (qwrite(b) if opt.early_qw else []), lo, min(o13 + 40, lo + 8))
        else: qtail += qcvt(b) + (qwrite(b) if opt.early_qw else [])
    sg.emit()
    g.stamp("Qdone")
    g.run(qtail)
    if not opt.early_qw:
        e.wait_lg_all(); e.barrier()
        for b in range(10): g.run(qwrite(b))
    for b in range(10): g.v1("v_mov_b32", vLs[b], 0)
    e.wait_lg_all(); e.barrier()
    if opt.dump == 'Q': return finish_dump(g)
    def vBf(f): return (vB0, f*1024) if f < 40 else (vB1, (f-40)*1024)

    if opt.fallback:
        e.raw(f"s_cmp_eq_u32 {sExact}, 0"); e.raw("s_cbranch_scc1 L_nosweep")
        snap = e.snapshot()
        e.wait_vm_all(); e.wait_lg_all()
        sp_, ka = S(36), V(172)
        kq = V(173)
        g.v2("v_and_b32", kq, 15, vL); g.v2("v_lshlrev_b32", kq, 9, kq)
        g.v2("v_lshrrev_b32", ka, 4, vL); g.v3("v_lshl_add_u32", ka, ka, 4, kq)
        g.s2("s_lshl_b32", S(37), sW, 14); g.v2("v_add_u32", ka, S(37), ka)
        g.s1("s_mov_b32", sp_, 0)
        e.label("L_sweep")
        fa = [V(112, 4), V(116, 4)]; fb = V(120, 4)
        for s in range(8):
            for tt in range(2):
                g.s2("s_add_u32", S(38), sp_, 8192*tt)
                e.gload("buffer_load_dwordx4", fa[tt], ka, sK, S(38), offset=64*s)
            for b in range(10):
                a_, o_ = vBf(s*10 + b)
                e.ds_read("ds_read_b128", fb, a_, o_)
                for tt in range(2):
                    e.mfma(accS(0, tt, b), fa[tt], fb, accS(0, tt, b) if s > 0 else 0)
                e.nop(4)
        for b in range(10):
            s0, s1 = accS(0, 0, b), accS(0, 1, b)
            g.v3("v_max3_f32", vM[b], vM[b], s0[0], s0[1]); g.v3("v_max3_f32", vM[b], vM[b], s0[2], s0[3])
            g.v3("v_max3_f32", vM[b], vM[b], s1[0], s1[1]); g.v3("v_max3_f32", vM[b], vM[b], s1[2], s1[3])
        e.wait_lg_all(); e.wait_vm_all()
        g.s2("s_add_u32", sp_, sp_, 65536); e.raw(f"s_cmp_lt_u32 {sp_}, 0x40000"); e.raw("s_cbranch_scc1 L_sweep")
        e.nop(8)
        for sw in ("v_permlane32_swap_b32", "v_permlane16_swap_b32"):
            for b in range(10):
                tb = V(112 + b)
                g.v1("v_mov_b32", tb, vM[b])
                e.valu(f"{sw} {tb}, {vM[b]}", dst=[tb, vM[b]], src=[tb, vM[b]], permlane=True)
                g.v2("v_max_f32", vM[b], tb, vM[b])
        e.nop(8)
        e.restore(snap)
        e.label("L_nosweep")
    g.stamp("Qepi")

    sg = Seg(g)
    mstart = {}
    gstart = {}
    for n in range(16):
        p, cb = n >> 2, n & 3
        mstart[n] = sg.nm; gstart[n] = len(sg.groups)
        for sp in range(2):
            s = 2*cb + sp
            for b in range(10):
                mf = [lambda B, b=b, tt=tt, p=p, s=s, sp=sp, cb=cb: e.mfma(accS(p, tt, b), Rs(4*p + cb).sub(8*sp + 4*tt, 4), B, accS(p, tt, b) if s > 0 else 0) for tt in range(2)]
                sg.add_group(mf, vBf(s*10 + b))
    for j in range(16):
        n = 16 + j; c, wp = j >> 2, j & 3
        mstart[n] = sg.nm; gstart[n] = len(sg.groups)
        for b in range(10):
            mf = [lambda B, b=b, tt=tt, j=j, n=n: e.mfma(accO(tt, b), Rs(n).sub(4*tt, 4), B, accO(tt, b) if j > 0 else 0) for tt in range(4)]
            sg.add_group(mf, ((vB1 if (c & 1) else vB0), (wp*10 + b)*1024))
    gp = sg.gaps
    LA = 5
    catch = eval(str(opt.lateK))[1] if opt.lateK else {}
    for n in range(32):
        o = mstart[n]
        cu = catch.get(n, [])
        for k_, gq in enumerate(cu):
            lo = 1 + 10*k_
            spread(gp, [C(f, int(opt.c_ds)) for f in rdR_mark(gq)], o + lo, o + lo + 4)
            place(gp, dma_after(gq, gq + 4), o + lo + 4, 1)
        if n >= 1:
            lo = 1 + 10*len(cu)
            if n + LA < 32: spread(gp, [C(f, int(opt.c_ds)) for f in rdR_mark(n + LA)], o + lo, o + max(20, lo + 6))
            nd = n + LA + 4; pre = []
            if nd == 16: pre = [lambda: g.v1("v_mov_b32", vD[0], vVb)] + [lambda jj=jj: g.v2("v_add_u32", vD[jj], 3072*jj, vVb) for jj in (1, 2, 3)]
            if nd == 32: pre = [lambda: g.v1("v_mov_b32", vDW[0], vWOb)] + [lambda jj=jj: g.v2("v_add_u32", vDW[jj], 6144*jj, vWOb) for jj in (1, 2, 3)]
            if nd <= 35: place(gp, pre + dma_after(n + LA, nd), o + max(22, lo + 8))
    def Wreg(i):
        if i < 2: return A(208 + 16*i, 16)
        if i < 4: return V(224 + 16*(i-2), 16)
        if i < 7: return V(176 + 16*(i-4), 16)
        if i == 7: return A(168, 16)
        if i < 14: return aR[i-8].sub(0, 12)
        return A(184 + 12*(i-14), 12)
    def rdW(i):
        n = 32 + i; nt_ = 4 if i < 8 else 3; W = Wreg(i); fs = [lambda: e.wait_vm(H[('r', n)])]
        for tt in range(nt_):
            for hf in range(2):
                fs.append(C(lambda tt=tt, hf=hf: e.ds_read("ds_read_b64_tr_b16", W.sub(4*tt + 2*hf, 2), vTv[tt], 4096*SLOT[n] + 2048*hf), int(opt.c_ds)))
        def mark(): RSEQ[n] = e.lg_issued
        return fs + [C(mark, 0)]
    ms = mstart
    WS = {0: ([(27, 4), (27, 24), (28, 4), (28, 24)], [(29, 10), (30, 2), (30, 22), (31, 2)]),
          1: ([(27, 14), (28, 6), (28, 26), (29, 6)], [(30, 2), (30, 22), (31, 2), (31, 20)]),
          2: ([(28, 4), (28, 24), (29, 4), (29, 24)], [(30, 10), (31, 0), (31, 14), (31, 26)])}[int(opt.wsched)]
    for i, (st_, lo) in enumerate(WS[0]):
        spread(gp, rdW(i), ms[st_] + lo, ms[st_] + lo + 10)
        place(gp, dma_after(32 + i, 36 + i), ms[st_] + lo + 10, 1)
    for i, (st_, lo) in enumerate(WS[1]):
        spread(gp, rdW(4 + i), ms[st_] + lo, ms[st_] + lo + 10)
        place(gp, dma_after(36 + i, 40 + i), min(ms[st_] + lo + 10, ms[31] + 36), 1)
    def max_ops():
        fs = []
        for b in range(10):
            s0, s1 = accS(0, 0, b), accS(0, 1, b)
            prs = ((s0[0], s0[1]), (s0[2], s0[3]), (s1[0], s1[1]), (s1[2], s1[3]))
            if opt.cheap_max: prs = prs[:1]
            for (x, y) in prs:
                fs.append(lambda b=b, x=x, y=y: g.v3("v_max3_f32", vM[b], vM[b], x, y))
        return fs
    def xreduce_ops(op, regs, lds_off):
        ta = vTmp; fs = []
        for sw in ("v_permlane32_swap_b32", "v_permlane16_swap_b32"):
            for b in range(10): fs.append(lambda b=b: g.v1("v_mov_b32", ta[b], regs[b]))
            for b in range(10):
                fs.append(lambda b=b, sw=sw: e.valu(f"{sw} {ta[b]}, {regs[b]}", dst=[ta[b], regs[b]], src=[ta[b], regs[b]], permlane=True))
            for b in range(10): fs.append(lambda b=b: g.v2(op, regs[b], ta[b], regs[b]))
        for b in range(10): fs.append(lambda b=b: e.ds_write("ds_write_b32", vSTW, regs[b], lds_off + 256*b))
        return fs
    def soft_ops(p):
        Z = [(b, j) for b in range(10) for j in range(8)]
        def z(b, j): return accS(p, j >> 2, b)[j & 3]
        def fma(i): b, j = Z[i]; return lambda: g.v3("v_fma_f32", z(b, j), z(b, j), sC, vM[b], neg_c=True)
        def ex(i):
            b, j = Z[i]; f = C(lambda: g.v1("v_exp_f32", z(b, j), z(b, j), trans=True), 8); f.trans = True; return f
        def add(i): b, j = Z[i]; return lambda: g.v2("v_add_f32", vLs[b], vLs[b], z(b, j))
        def pack(i):
            b, j = Z[i]; pk = park(p, b); k = j >> 1
            if pk.f == 'v': return [lambda: g.cvt(pk[k], z(b, j-1), z(b, j))]
            return [lambda: g.cvt(z(b, j-1), z(b, j-1), z(b, j)), lambda: g.accw(pk[k], z(b, j-1))]
        fs = []
        D1, D2 = int(opt.soft_d1), int(opt.soft_d2)
        if not opt.soft_pipe:
            for b in range(10):
                for j in range(8): fs.append(fma(8*b + j))
                for j in range(8): fs.append(ex(8*b + j))
                for j in range(8): fs.append(add(8*b + j))
                for j in (1, 3, 5, 7): fs += pack(8*b + j)[:1]
                for j in (1, 3, 5, 7): fs += pack(8*b + j)[1:]
            return fs
        for i in range(80 + D2 + 3):
            if i < 80: fs.append(fma(i))
            if 0 <= i - D1 < 80: fs.append(ex(i - D1))
            if 0 <= i - D2 < 80: fs.append(add(i - D2))
            k = i - D2 - 1
            if 0 <= k < 80 and k % 2 == 1:
                pk_ = pack(k); fs.append(pk_[0])
                if len(pk_) > 1: fs.append(("late", pk_[1]))
        out = []; pend = None
        for f in fs:
            if isinstance(f, tuple):
                if pend is not None: out.append(pend)
                pend = f[1]
            else:
                out.append(f)
                if pend is not None and getattr(f, "trans", False): out.append(pend); pend = None
        if pend is not None: out.append(pend)
        return out
    def spread_steps(fs, steps, lo=0, hi=40, first_lo=None):
        l = first_lo if first_lo is not None else lo
        spread(gp, fs, mstart[steps[0]] + l, mstart[steps[-1]] + hi)
    if opt.cheap_max:
        pub = [lambda b=b: e.ds_write("ds_write_b32", vSTM, vM[b], 256*b) for b in range(10)]
        spread(gp, max_ops() + pub, mstart[4] + 2, mstart[4] + 24)
    else:
        spread(gp, max_ops() + xreduce_ops("v_max_f32", vM, 0), mstart[4] + 2, mstart[4] + 38)
    def bar_max():
        e.wait_lg_all(); e.barrier()
    gp.setdefault(mstart[4] + (27 if opt.cheap_max else 39), []).append(bar_max)
    st = [V(176 + 8*b + 4, 4) if False else V(112 + 4*b, 4) for b in range(10)]
    fs = [lambda b=b: e.ds_read("ds_read_b128", st[b], vSTR, 256*b) for b in range(10)]
    for b in range(10):
        fs.append(lambda b=b: g.v3("v_max3_f32", vM[b], st[b][0], st[b][1], st[b][2]))
        fs.append(lambda b=b: g.v2("v_max_f32", vM[b], vM[b], st[b][3]))
        fs.append(lambda b=b: g.v2("v_mul_f32", vM[b], sC, vM[b]))
    if opt.cheap_max:
        spread(gp, fs, mstart[4] + 28, mstart[5] + 4)
        spread_steps(soft_ops(0), [5, 6, 7], first_lo=4)
    else:
        spread(gp, fs, mstart[5] + 0, mstart[5] + 14)
        spread_steps(soft_ops(0), [5, 6, 7], first_lo=14)
    spread_steps(soft_ops(1), [8, 9, 10, 11])
    spread_steps(soft_ops(2), [12, 13, 14, 15])
    S3E = int(opt.soft3_end)
    spread_steps(soft_ops(3), list(range(16, S3E + 1)))
    def pwrite(c): return [C(lambda b=b, c=c: e.ds_write("ds_write_b128", vPW, park(c, b), (c & 1)*40960 + b*1024), int(opt.c_dsw)) for b in range(10)]
    def bar():
        e.wait_lg_all(); e.barrier()
    sg.preB.setdefault(gstart[14] + 0, []).append(bar)
    place_even(gp, pwrite(0), mstart[14] + 4, mstart[15] + 18)
    sg.preB.setdefault(gstart[15] + 11, []).append(bar)
    sg.preB.setdefault(gstart[16] + 1, []).append(bar)
    place_even(gp, pwrite(1), mstart[16] + 10, mstart[18] + 38)
    spread(gp, xreduce_ops("v_add_f32", vLs, 4096), mstart[S3E + 1], mstart[S3E + 1] + 11)
    sg.preB.setdefault(gstart[19] + 2, []).append(bar)
    place_even(gp, pwrite(2), mstart[19] + 14, mstart[22] + 38)
    sg.preB.setdefault(gstart[23] + 2, []).append(bar)
    place_even(gp, pwrite(3), mstart[23] + 14, mstart[26] + 38)
    sg.preB.setdefault(gstart[27] + 2, []).append(bar)
    stl = [V((216 if opt.inplace_p else 176) + 4*b, 4) for b in range(10)]
    fs = [lambda b=b: e.ds_read("ds_read_b128", stl[b], vSTR, 4096 + 256*b) for b in range(10)]
    for b in range(10):
        fs.append(lambda b=b: g.v2("v_add_f32", stl[b][0], stl[b][0], stl[b][1]))
        fs.append(lambda b=b: g.v2("v_add_f32", stl[b][2], stl[b][2], stl[b][3]))
        fs.append(lambda b=b: g.v2("v_add_f32", vLs[b], stl[b][0], stl[b][2]))
    if opt.fallback:
        ts = vTmp[1]
        fs.append(lambda: g.v2("v_add_f32", ts, vLs[0], vLs[1]))
        for b in range(2, 10): fs.append(lambda b=b: g.v2("v_add_f32", ts, ts, vLs[b]))
        def check():
            thr = 0.0 if opt.force_fb else 2.0**24
            g.s1("s_mov_b32", S(36), hex(f2u(thr)))
            e.valu(f"v_cmp_nge_f32 vcc, {S(36)}, {ts}", src=[S(36), ts])
            e.nop(4)
            e.raw("s_cmp_lg_u64 vcc, 0")
            e.raw(f"s_cselect_b32 s37, 1, 0")
            e.raw(f"s_andn2_b32 s37, s37, {sExact}")
            e.raw("s_cmp_lg_u32 s37, 0")
            e.raw("s_cbranch_scc1 L_fallback")
        fs.append(check)
    for b in range(10): fs.append(lambda b=b: g.v1("v_rcp_f32", vLs[b], vLs[b], trans=True))
    spread(gp, fs, mstart[S3E + 2] + 0, mstart[S3E + 3] + 20)
    if opt.warm_wo:
        def warm_wo():
            t_, s_ = vTmp[9], S(36)
            g.s2("s_mul_i32", s_, sBt, 224); g.s2("s_mul_i32", S(37), sW, 56); g.s2("s_add_u32", s_, s_, S(37))
            g.v2("v_add_u32", t_, s_, vL); g.v2("v_lshlrev_b32", t_, 7, t_)
            e.raw(f"buffer_load_dword {vDum}, {t_}, {sWO}, 0 offen"); e.vm_issued += 1
        gp.setdefault(mstart[int(opt.warm_at)] + 30, []).append(warm_wo)
    vOW0, vOW1 = V(17), V(31)
    otmp = V(164, 8)
    def opost(b):
        fs = []
        for u in range(2):
            tl = [accO(2*u + h2, b) for h2 in range(2)]
            if tl[0].f == 'a':
                z = [otmp[j] for j in range(8)]
                for h2 in range(2):
                    for r in range(4): fs.append(lambda h2=h2, r=r, tl=tl, z=z: g.accr(z[4*h2 + r], tl[h2][r]))
            else:
                z = [tl[h2][r] for h2 in range(2) for r in range(4)]
            for j in range(8): fs.append(lambda j=j, z=z, b=b: g.v2("v_mul_f32", z[j], z[j], vLs[b]))
            o4 = V(z[0].i, 4)
            for j in range(4): fs.append(lambda j=j, z=z, o4=o4: g.cvt(o4[j], z[2*j], z[2*j+1]))
            fs.append(C(lambda o4=o4, u=u, b=b: e.ds_write("ds_write_b128", vOW0 if b < 5 else vOW1, o4, (b % 5)*8192 + u*1024), 8))
        return fs
    def setup_ow():
        g.s2("s_lshl_b32", S(36), sW, 11); g.s2("s_add_u32", S(36), S(36), LDS_A)
        g.v2("v_lshlrev_b32", vOW0, 4, vL); g.v2("v_add_u32", vOW0, S(36), vOW0); g.v2("v_add_u32", vOW1, 40960, vOW0)
    gp.setdefault(mstart[26] + 2, []).append(C(setup_ow, 20))
    o31 = mstart[31]
    ptail = []
    for b in range(5):
        lo = o31 + 4*(b+1) + 3
        if b < 3: spread(gp, opost(b), lo, min(o31 + 40, lo + 12))
        else: ptail += opost(b)
    if opt.pvstamp:
        for n_ in range(20, 32): gp.setdefault(mstart[n_] - 1, []).append(lambda n_=n_: g.stamp(f"n{n_-1}"))
    if opt.stamps:
        for n_, nm_ in ((4, "S0"), (8, "S1"), (12, "S2"), (16, "S3"), (20, "PV0"), (24, "PV1"), (28, "PV2")):
            gp.setdefault(mstart[n_] - 1, []).append(lambda nm_=nm_: g.stamp(nm_))
    sg.emit()
    g.stamp("PVdone")
    g.run(ptail)
    if opt.fused:
        e.raw("s_memrealtime s[92:93]"); e.raw("s_waitcnt lgkmcnt(0)"); e.lg_done = e.lg_issued
    e.wait_lg_all(); e.barrier()
    if opt.dump == 'O':
        for b in range(5, 10): g.run(opost(b))
        return finish_dump(g)
    g.stamp("Opost")

    if opt.fused and opt.own_keep: g.s1("s_mov_b32", sExact, "0x7ff00000")
    sg = Seg(g); gp = sg.gaps
    accA = lambda b, t: V(32 + 16*(b & 1) + 4*t, 4)
    accB = lambda b, t: V(80 + 12*(b & 1) + 4*t, 4)
    bst = {}
    def Bsrc(b, j): return (vB0, (b*8 + j)*1024) if b < 5 else (vB1, ((b-5)*8 + j)*1024)
    for st in range(2):
        nt_ = 4 if st == 0 else 3; acc = accA if st == 0 else accB
        order = [(b, j) for b in range(10) for j in range(8)]
        if st == 0:
            order = [(0, j) for j in range(5)] + [(1, j) for j in range(5)] + [(0, j) for j in range(5, 8)] + [(1, j) for j in range(5, 8)] + order[16:]
        for (b, j) in order:
            if (st, b) not in bst: bst[(st, b)] = sg.nm
            W = Wreg(8*st + j)
            mf = [lambda B, b=b, tt=tt, j=j, W=W, acc=acc: e.mfma(acc(b, tt), W.sub(4*tt, 4), B, acc(b, tt) if j > 0 else 0) for tt in range(nt_)]
            sg.add_group(mf, Bsrc(b, j))
    bend = {(0, 0): 13*4, (0, 1): 16*4}
    for b in range(2, 10): bend[(0, b)] = bst[(0, b)] + 32
    for b in range(10): bend[(1, b)] = bst[(1, b)] + 24
    if opt.stamps:
        for nm_, pos in (("ob1", 63), ("ob4", bst[(0, 5)] - 1), ("ost1", bst[(1, 0)] - 1), ("ob2_4", bst[(1, 5)] - 1)):
            gp.setdefault(pos, []).append(lambda nm_=nm_: g.stamp(nm_))
    for k_ in range(4):
        lo = 8 + 16*k_
        spread(gp, rdW(8 + k_), lo, lo + 14)
        place(gp, dma_after(40 + k_, 44 + k_), lo + 14, 2)
    for k_ in range(4):
        lo = bst[(0, 8)] + 14*k_
        spread(gp, rdW(12 + k_), lo, lo + 14)
    u1 = []
    for b in range(5, 10): u1 += opost(b)
    spread(gp, u1, 0, bst[(0, 4)] - 1)
    sg.preB.setdefault(31, []).append(bar)
    keepA, keepC = V(21, 4), V(25, 4)
    def store_e(O, ee):
        if opt.skip_st: return
        own = ee if ee < 16 else (ee - 20 if ee >= 20 else None)
        if opt.fused and opt.own_keep and own is not None:
            kp = keepA if ee < 16 else keepC
            lab = f"L_keep{ee}"
            e.raw(f"s_cmp_eq_u32 {sH}, {own}"); e.raw(f"s_cselect_b32 {sO3}, {sExact}, {ee*4096}")
            e.raw(f"s_cbranch_scc0 {lab}")
            for j in range(4): g.v1("v_mov_b32", kp[j], O[j])
            e.label(lab)
        else:
            g.s1("s_mov_b32", sO3, ee*4096)
        e.gstore("buffer_store_dwordx4", O, vWS, sWS, sO3, flags=opt.st_flags)
    kk = [0]
    def pair_epi(x, y, ee):
        O = V(64 + 4*(kk[0] & 3), 4); kk[0] += 1
        return [lambda: g.cvt(O[0], x[0], x[1]), lambda: g.cvt(O[1], x[2], x[3]), lambda: g.cvt(O[2], y[0], y[1]), lambda: g.cvt(O[3], y[2], y[3]),
                VM(C(lambda: store_e(O, ee), 24))]
    def epiA(b): return pair_epi(accA(b, 0), accA(b, 1), b) + pair_epi(accA(b, 2), accA(b, 3), 10 + b)
    def epiB(b):
        fs = pair_epi(accB(b, 0), accB(b, 1), 20 + b)
        O6 = V(104 + 4*((b >> 1) & 1), 4); d = accB(b, 2)
        fs += [lambda: g.cvt(O6[2*(b & 1)], d[0], d[1]), lambda: g.cvt(O6[2*(b & 1) + 1], d[2], d[3])]
        if b & 1: fs.append(VM(C(lambda: store_e(O6, 30 + (b >> 1)), 8)))
        return fs
    for b in range(10):
        nx = bend[(0, b)]
        hi = nx + 22 if b != 0 else 64 - 1
        spread(gp, epiA(b), nx + 3, hi)
    for b in range(9):
        nx = bend[(1, b)]
        spread(gp, epiB(b), nx + 3, nx + 20)
    tail = epiB(9)
    def signal(gen):
        lab = f"L_sig{gen}"
        e.raw(f"s_cmp_lg_u32 {sW}, 0"); e.raw(f"s_cbranch_scc1 {lab}")
        e.raw("s_mov_b64 exec, 0xffff")
        e.raw(f"v_mov_b32 v30, {sTok[0]}"); e.raw(f"v_mov_b32 v31, {sTok[1]}"); e.raw("v_lshlrev_b32 v29, 7, v1")
        e.raw(f"s_lshl_b32 s36, {sH}, 3"); e.raw(f"s_add_u32 s36, s36, {sCnt}"); e.raw(f"s_add_u32 s36, s36, {4096*gen}")
        e.raw(f"buffer_store_dwordx2 v[30:31], v29, {sDBG}, s36 offen sc1")
        e.raw("s_mov_b64 exec, -1")
        e.label(lab)
    if opt.fused:
        rd = Red(g)
        ST0 = {}
        def mark0(): ST0['seq'] = e.vm_issued
        gp.setdefault(bend[(0, 9)] + 23, []).append(C(mark0, 0))
        def sig0():
            e.wait_vm(ST0['seq']); e.barrier(); signal(0)
        b0 = int(opt.sig0_blk); b1 = int(opt.poll0_blk)
        gp.setdefault(bst[(1, b0)] + 4, []).append(C(sig0, 24))
        NL = 15 if opt.own_keep else 16
        ldA = [V(112 + 4*h, 4) for h in range(NL)]; ldB = [V(176 + 4*h, 4) for h in range(16)]
        vA0, vR0, vA1, vR1 = V(240), V(241), V(242), V(243)
        tq = [V(244), V(245), V(246), V(247)]
        def prep0():
            rd.setup_common(); rd.decode(0); rd.addr(vA0, vR0, tq)
        vt = V(248, 6)
        def prep0b():
            prep0(); rd.poll_setup(vt); rd.decode(1); rd.addr(vA1, vR1, tq)
            e.raw("s_mov_b32 s79, 0") if False else None
        gp.setdefault(bst[(1, 1)] + 12, []).append(C(prep0b, 100))
        EP = {}
        if opt.tail2:
            def epoll():
                e.raw(f"buffer_load_dwordx2 {vt.sub(2, 2)}, {vt[0]}, {sDBG}, s41 offen sc1"); e.vm_issued += 1
                EP['seq'] = e.vm_issued
            gp.setdefault(bst[(1, int(opt.ep_blk))] + 2, []).append(VM(C(epoll, 4)))
    sg.emit()
    g.stamp("outdone")
    g.run(tail)
    if opt.fused:
        acc = [V(64 + j) for j in range(8)]; tmp = [V(72 + j) for j in range(4)]
        if opt.own_keep: ldC = [V(32 + 4*h, 4) for h in range(8)] + [V(88 + 4*h, 4) for h in range(6)] + [V(172, 4)]
        else: ldC = [V(8 + 4*h, 4) if h < 14 else V(88 + 4*(h-14), 4) for h in range(16)]
        kA, kC = (keepA, keepC) if opt.own_keep else (None, None)
        vA2, vR2 = V(254), V(255)
        def flags_to_s44():
            e.raw(f"v_subrev_co_u32 {vt[4]}, vcc, {sT0[0]}, {vt[2]}"); e.raw("s_nop 1")
            e.raw(f"v_subb_co_u32 {vt[5]}, vcc, {vt[3]}, {vt[1]}, vcc")
            e.raw(f"v_lshrrev_b32 {vt[4]}, 24, {vt[4]}"); e.raw(f"v_or_b32 {vt[4]}, {vt[4]}, {vt[5]}")
            e.raw(f"v_cmp_eq_u32 vcc, 0, {vt[4]}"); e.raw("s_nop 4")
            e.raw("s_or_b32 s44, vcc_lo, s43")
        def raw_loads(ld, vA):
            snap = e.snapshot(); g.run(rd.loads(ld, vA, sO1)); e.restore(snap)
            for r_ in [x for l_ in ld for x in l_.regs()]: e.pend.pop(r_, None)
        if opt.tail2:
            e.wait_vm(EP['seq'])
            rd.flags(vt)
            e.raw("s_and_b32 s45, s44, 0xffff"); e.raw("s_cmp_eq_u32 s45, 0xffff"); e.raw(f"s_cselect_b32 {sE0}, 1, 0")
            e.raw(f"s_cbranch_scc0 L_t0")
            raw_loads(ldA, vA0)
            e.raw(f"s_cmp_lg_u32 {sW}, 3"); e.raw("s_cbranch_scc1 L_t1")
            raw_loads(ldB, vA1)
            e.raw(f"s_waitcnt vmcnt({NL + 16})"); e.raw("s_branch L_t2")
            e.label("L_t1")
            e.raw(f"s_waitcnt vmcnt({NL})"); e.raw("s_branch L_t2")
            e.label("L_t0")
            e.raw("s_waitcnt vmcnt(0)")
            e.label("L_t2")
            e.vm_done = e.vm_issued
            e.barrier(); signal(1)
            g.stamp("sig1")
            rd.decode(2); rd.addr(vA2, vR2, tq)
            e.raw("s_mov_b32 s47, s38")
            e.raw(f"s_cmp_eq_u32 {sE0}, 1"); e.raw("s_cbranch_scc1 L_t3")
            rd.pollp("0", 0xffff, vt)
            raw_loads(ldA, vA0)
            e.raw(f"s_cmp_lg_u32 {sW}, 3"); e.raw("s_cbranch_scc1 L_t3")
            raw_loads(ldB, vA1)
            e.label("L_t3")
            g.stamp("poll0")
            e.raw(f"buffer_load_dwordx2 {vt.sub(2, 2)}, {vt[0]}, {sDBG}, s41 offen sc1")
            e.raw("s_waitcnt vmcnt(1)")
            rd.sum_store(ldA, vR0, acc, tmp, V(76, 4), kA)
            e.raw(f"s_cmp_lg_u32 {sW}, 3"); e.raw("s_cbranch_scc1 L_t4")
            snap = e.snapshot()
            rd.sum_store(ldB, vR1, acc, tmp, V(80, 4))
            e.restore(snap)
            e.label("L_t4")
            e.raw("s_cmp_ge_u32 s47, 60"); e.raw("s_cbranch_scc1 L_t6")
            e.raw("s_waitcnt vmcnt(2)")
            e.raw(f"s_cmp_eq_u32 {sW}, 3"); e.raw("s_cbranch_scc1 L_t4b")
            e.raw("s_waitcnt vmcnt(1)")
            e.label("L_t4b")
            rd.flags(vt)
            e.raw("s_lshr_b32 s51, s44, 16"); e.raw("s_cmp_eq_u32 s51, 0xffff"); e.raw("s_cbranch_scc1 L_t5")
            rd.pollp("1", 0xffff0000, vt)
            e.label("L_t5")
            g.stamp("poll1")
            raw_loads(ldC, vA2)
            e.raw("s_waitcnt vmcnt(0)"); e.vm_done = e.vm_issued
            rd.sum_store(ldC, vR2, acc, tmp, V(84, 4), kC)
            e.label("L_t6")
        else:
            e.wait_vm_all(); e.barrier(); signal(1)
            g.stamp("sig1")
            rd.decode(2); rd.addr(vA2, vR2, tq)
            e.raw("s_mov_b32 s47, s38")
            rd.pollw("0", 0xffff, vt, 0)
            g.stamp("poll0")
            e.raw("s_lshr_b32 s51, s44, 16"); e.raw("s_cmp_eq_u32 s51, 0xffff"); e.raw("s_cselect_b32 s51, 1, 0")
            raw_loads(ldA, vA0)
            e.raw(f"s_cmp_lg_u32 {sW}, 3"); e.raw("s_cbranch_scc1 L_x1")
            raw_loads(ldB, vA1)
            e.label("L_x1")
            e.raw("s_cmp_eq_u32 s51, 1"); e.raw("s_cbranch_scc1 L_x3")
            rd.pollw("1", 0xffff0000, vt, 1)
            e.label("L_x3")
            g.stamp("poll1")
            e.raw("s_cmp_ge_u32 s47, 60"); e.raw("s_cbranch_scc1 L_x4")
            raw_loads(ldC, vA2)
            e.label("L_x4")
            e.raw("s_cmp_ge_u32 s47, 60"); e.raw("s_cbranch_scc1 L_x1d")
            e.raw(f"s_waitcnt vmcnt({NL})"); e.raw("s_branch L_x1f")
            e.label("L_x1d")
            e.raw("s_waitcnt vmcnt(0)")
            e.label("L_x1f")
            rd.sum_store(ldA, vR0, acc, tmp, V(76, 4), kA)
            e.raw(f"s_cmp_lg_u32 {sW}, 3"); e.raw("s_cbranch_scc1 L_x2")
            snap = e.snapshot()
            rd.sum_store(ldB, vR1, acc, tmp, V(80, 4))
            e.restore(snap)
            e.label("L_x2")
            e.raw("s_cmp_ge_u32 s47, 60"); e.raw("s_cbranch_scc1 L_x5")
            e.vm_done = e.vm_issued
            rd.sum_store(ldC, vR2, acc, tmp, V(84, 4), kC, prog=True)
            e.label("L_x5")
    if opt.stamps:
        e.wait_vm_all()
        g.stamp("end")
        g.stamp_flush()
    if opt.fallback:
        e.raw("s_endpgm")
        e.label("L_fallback")
        e.raw("s_waitcnt vmcnt(0) lgkmcnt(0)")
        e.raw("s_barrier")
        e.raw(f"s_mov_b32 {sExact}, 1")
        e.raw("s_branch L_restart")
    e.label("L_k1_end")
    e.raw("s_endpgm")
    return e

class Red:
    def __init__(self, g):
        self.g = g; self.e = g.e
        self.sRS, self.sOS = S(4, 4), S(8, 4)
    def setup_common(self):
        g, e = self.g, self.e
        g.s2("s_mul_i32", S(41), sH, PART_UNIT)
        g.s2("s_sub_u32", self.sRS[0], sWS[0], S(41)); e.salu(f"s_subb_u32 {self.sRS[1]}, {sWS[1]}, 0")
        g.s1("s_mov_b32", self.sRS[2], 16*PART_UNIT); g.s1("s_mov_b32", self.sRS[3], "0x00020000")
        e.raw("s_load_dwordx2 s[8:9], s[0:1], 80"); e.raw("s_waitcnt lgkmcnt(0)"); e.lg_done = e.lg_issued
        g.s1("s_mov_b32", self.sOS[2], 1280*1792); g.s1("s_mov_b32", self.sOS[3], "0x00020000")
    def decode(self, slot):
        g, e = self.g, self.e
        sPi, sWp, sE = S(38), S(39), S(40)
        if slot == 1:
            g.s2("s_lshr_b32", sE, sH, 2); g.s2("s_add_u32", sE, sE, 16); g.s2("s_and_b32", sWp, sH, 3)
            g.s2("s_add_u32", sPi, sH, 64)
        else:
            g.s2("s_lshl_b32", sPi, sH, 2); g.s2("s_add_u32", sPi, sPi, sW)
            g.s1("s_mov_b32", sWp, sW)
            if slot == 0: g.s1("s_mov_b32", sE, sH)
            else: g.s2("s_add_u32", sE, sH, 20)
    def addr(self, vA, vRow, tmp):
        g, e = self.g, self.e
        sWp, sE = S(39), S(40)
        q16, gg, t, u = tmp
        g.s2("s_lshl_b32", S(45), sWp, 10); g.s2("s_lshl_b32", S(46), sE, 12); g.s2("s_add_u32", S(45), S(45), S(46))
        g.v2("v_lshlrev_b32", vA, 4, vL); g.v2("v_add_u32", vA, S(45), vA)
        g.v2("v_and_b32", q16, 15, vL); g.v2("v_lshrrev_b32", gg, 4, vL)
        g.v2("v_and_b32", t, 1, gg); g.v2("v_lshrrev_b32", u, 1, gg); g.v2("v_lshlrev_b32", u, 3, u)
        sPP, sBlk = S(48), S(49)
        g.s2("s_mul_hi_u32", sPP, sE, 429496730)
        g.s2("s_mul_i32", sBlk, sPP, 10); g.s2("s_sub_u32", sBlk, sE, sBlk)
        g.s2("s_sub_u32", S(52), sE, 30); g.s2("s_lshl_b32", S(52), S(52), 1)
        g.s2("s_lshl_b32", S(53), sPP, 5)
        e.raw(f"s_cmp_lt_u32 {sE}, 30")
        e.raw(f"s_cselect_b32 s52, {sBlk}, s52"); e.raw("s_cselect_b32 s53, s53, 96")
        e.raw("s_cselect_b32 s54, 16, 0"); e.raw("s_cselect_b32 s55, 0, 16")
        g.s2("s_mul_i32", S(56), sBt, 160); g.s2("s_lshl_b32", S(52), S(52), 4); g.s2("s_add_u32", S(56), S(56), S(52))
        g.s2("s_mul_i32", S(50), sBr, 448); g.s2("s_mul_i32", S(58), sWp, 112); g.s2("s_add_u32", S(50), S(50), S(58)); g.s2("s_add_u32", S(50), S(50), S(53))
        g.v3("v_mad_u32_u24", vRow, t, S(55), q16); g.v2("v_add_u32", vRow, S(56), vRow)
        g.v3("v_mad_u32_u24", q16, t, S(54), u); g.v2("v_add_u32", q16, S(50), q16)
        g.s1("s_mov_b32", S(59), 1792)
        g.v2("v_lshlrev_b32", q16, 1, q16); g.v3("v_mad_u32_u24", vRow, vRow, S(59), q16)
    def loads(self, ld, vA, sreg):
        g, e = self.g, self.e; fs = []
        for k in range(len(ld)):
            def f(k=k):
                if len(ld) == 16: g.s1("s_mov_b32", sreg, k*PART_UNIT)
                else:
                    g.s2("s_add_u32", S(46), sH, k + 1); g.s2("s_and_b32", S(46), S(46), 15); g.s2("s_mul_i32", sreg, S(46), PART_UNIT)
                e.gload("buffer_load_dwordx4", ld[k], vA, self.sRS, sreg, flags=opt.red_flags)
            fs.append(VM(C(f, 8)))
        return fs
    def sum_store(self, ld, vRow, acc, tmp, O, keep=None, prog=False):
        g, e = self.g, self.e
        nld = len(ld)
        if keep is not None: ld = [keep] + list(ld)
        for h in range(16):
            k_ = h - (1 if keep is not None else 0)
            if prog and k_ >= 0 and (k_ % 2 == 0): e.raw(f"s_waitcnt vmcnt({max(0, nld - 2 - k_)})")
            for j in range(4):
                if h == 0:
                    g.v2("v_lshlrev_b32", acc[2*j], 16, ld[h][j]); g.v2("v_and_b32", acc[2*j+1], "0xffff0000", ld[h][j])
                else:
                    a_, b_ = tmp[2*(j & 1)], tmp[2*(j & 1) + 1]
                    g.v2("v_lshlrev_b32", a_, 16, ld[h][j]); g.v2("v_and_b32", b_, "0xffff0000", ld[h][j])
                    g.v2("v_add_f32", acc[2*j], acc[2*j], a_); g.v2("v_add_f32", acc[2*j+1], acc[2*j+1], b_)
        for j in range(4): g.cvt(O[j], acc[2*j], acc[2*j+1])
        e.valu(f"v_permlane16_swap_b32 {O[0]}, {O[2]}", dst=[O[0], O[2]], src=[O[0], O[2]], permlane=True)
        e.valu(f"v_permlane16_swap_b32 {O[1]}, {O[3]}", dst=[O[1], O[3]], src=[O[1], O[3]], permlane=True)
        return e.gstore("buffer_store_dwordx4", O, vRow, self.sOS, None, flags=opt.out_flags)
    def pollw(self, name, need, vt, word):
        e = self.e
        lab = f"L_pw{name}"
        e.raw(f"s_cmp_lg_u32 {sW}, 0"); e.raw(f"s_cbranch_scc1 {lab}_bar")
        e.raw(f"s_mov_b32 s42, {int(opt.spin)}")
        e.label(lab)
        e.raw(f"buffer_load_dwordx2 {vt.sub(2, 2)}, {vt[0]}, {sDBG}, s41 offen sc1")
        e.raw("s_waitcnt vmcnt(0)")
        e.raw(f"v_subrev_co_u32 {vt[4]}, vcc, {sT0[0]}, {vt[2]}"); e.raw("s_nop 1")
        e.raw(f"v_subb_co_u32 {vt[5]}, vcc, {vt[3]}, {vt[1]}, vcc")
        e.raw(f"v_lshrrev_b32 {vt[4]}, 24, {vt[4]}"); e.raw(f"v_or_b32 {vt[4]}, {vt[4]}, {vt[5]}")
        e.raw(f"v_cmp_eq_u32 vcc, 0, {vt[4]}"); e.raw("s_nop 4")
        e.raw("s_or_b32 s44, vcc_lo, s43")
        e.raw(f"s_and_b32 s45, s44, {hex(need)}"); e.raw(f"s_cmp_eq_u32 s45, {hex(need)}"); e.raw(f"s_cbranch_scc1 {lab}_ok")
        e.raw("s_sub_u32 s42, s42, 1"); e.raw("s_cmp_eq_u32 s42, 0"); e.raw(f"s_cbranch_scc1 {lab}_ok")
        e.raw(f"s_sleep {int(opt.sleep)}")
        e.raw(f"s_branch {lab}")
        e.label(f"{lab}_ok")
        e.raw(f"v_mov_b32 {vt[4]}, s44"); e.raw(f"v_mov_b32 {vt[5]}, {12288 + 4*word}")
        e.raw(f"ds_write_b32 {vt[5]}, {vt[4]}"); e.raw("s_waitcnt lgkmcnt(0)")
        e.label(f"{lab}_bar")
        e.raw("s_barrier")
        e.raw(f"v_mov_b32 {vt[5]}, {12288 + 4*word}")
        e.raw(f"ds_read_b32 {vt[4]}, {vt[5]}"); e.raw("s_waitcnt lgkmcnt(0)")
        e.raw(f"v_readfirstlane_b32 s44, {vt[4]}"); e.raw("s_nop 3")
    def pollp(self, name, need, vt):
        e = self.e
        lab = f"L_pp{name}"
        e.raw(f"s_mov_b32 s42, {int(opt.spin)}")
        e.label(lab)
        e.raw(f"buffer_load_dwordx2 {vt.sub(2, 2)}, {vt[0]}, {sDBG}, s41 offen sc1")
        e.raw("s_waitcnt vmcnt(0)")
        self.flags(vt)
        e.raw(f"s_and_b32 s45, s44, {hex(need)}"); e.raw(f"s_cmp_eq_u32 s45, {hex(need)}"); e.raw(f"s_cbranch_scc1 {lab}_ok")
        e.raw("s_sub_u32 s42, s42, 1"); e.raw("s_cmp_eq_u32 s42, 0"); e.raw(f"s_cbranch_scc1 {lab}_ok")
        e.raw(f"s_sleep {int(opt.sleep)}")
        e.raw(f"s_branch {lab}")
        e.label(f"{lab}_ok")
    def flags(self, vt):
        e = self.e
        e.raw(f"v_subrev_co_u32 {vt[4]}, vcc, {sT0[0]}, {vt[2]}"); e.raw("s_nop 1")
        e.raw(f"v_subb_co_u32 {vt[5]}, vcc, {vt[3]}, {vt[1]}, vcc")
        e.raw(f"v_lshrrev_b32 {vt[4]}, 24, {vt[4]}"); e.raw(f"v_or_b32 {vt[4]}, {vt[4]}, {vt[5]}")
        e.raw(f"v_cmp_eq_u32 vcc, 0, {vt[4]}"); e.raw("s_nop 4")
        e.raw("s_or_b32 s44, vcc_lo, s43")
    def poll_setup(self, vt):
        e = self.e
        e.raw(f"v_and_b32 {vt[0]}, 15, v1"); e.raw(f"v_lshlrev_b32 {vt[0]}, 3, {vt[0]}")
        e.raw(f"v_bfe_u32 {vt[1]}, v1, 4, 1"); e.raw(f"v_lshl_add_u32 {vt[0]}, {vt[1]}, 12, {vt[0]}")
        e.raw(f"v_mov_b32 {vt[1]}, {sT0[1]}")
        e.raw(f"s_lshl_b32 s43, 0x10001, {sH}")
        e.raw(f"s_lshl_b32 s41, {sH}, 7"); e.raw(f"s_add_u32 s41, s41, {sCnt}")
    def poll(self, gen, vt):
        e = self.e
        lab = f"L_poll{gen}"
        e.raw(f"s_cmp_lg_u32 {sW}, 0"); e.raw(f"s_cbranch_scc1 {lab}_bar")
        e.raw(f"s_add_u32 s41, {sCnt}, {4096*gen}")
        e.raw(f"s_mov_b32 s42, {int(opt.spin)}")
        e.raw(f"v_and_b32 {vt[0]}, 15, v1"); e.raw(f"v_lshlrev_b32 {vt[0]}, 3, {vt[0]}"); e.raw(f"v_mov_b32 {vt[1]}, {sT0[1]}")
        e.label(lab)
        e.raw(f"buffer_load_dwordx2 {vt.sub(2, 2)}, {vt[0]}, {sDBG}, s41 offen sc1")
        e.raw("s_waitcnt vmcnt(0)")
        e.raw(f"v_subrev_co_u32 {vt[4]}, vcc, {sT0[0]}, {vt[2]}"); e.raw("s_nop 1")
        e.raw(f"v_subb_co_u32 {vt[5]}, vcc, {vt[3]}, {vt[1]}, vcc")
        e.raw(f"v_lshrrev_b32 {vt[4]}, 24, {vt[4]}"); e.raw(f"v_or_b32 {vt[4]}, {vt[4]}, {vt[5]}")
        e.raw(f"v_cmp_eq_u32 vcc, 0, {vt[4]}"); e.raw("s_nop 4")
        e.raw("s_cmp_eq_u64 vcc, -1"); e.raw(f"s_cbranch_scc1 {lab}_bar")
        e.raw("s_sub_u32 s42, s42, 1"); e.raw("s_cmp_eq_u32 s42, 0"); e.raw(f"s_cbranch_scc1 {lab}_bar")
        e.raw(f"s_sleep {int(opt.sleep)}")
        e.raw(f"s_branch {lab}")
        e.label(f"{lab}_bar")
        e.barrier()

def finish_dump(g):
    e = g.e
    e.wait_lg_all(); e.wait_vm_all(); e.barrier()
    t = V(240); u = V(244, 4)
    g.s2("s_mul_i32", S(38), sW, 20480)
    g.v2("v_lshlrev_b32", t, 4, vL); g.v2("v_add_u32", t, S(38), t)
    a = V(241); g.v2("v_add_u32", a, LDS_A, t)
    for i in range(20):
        e.ds_read("ds_read_b128", u, a, i*1024)
        g.s1("s_mov_b32", sO2, i*1024)
        e.gstore("buffer_store_dwordx4", u, t, sWS, sO2)
        e.wait_vm_all()
    e.label("L_fallback")
    e.label("L_k1_end")
    e.raw("s_endpgm")
    return e

import gen1
def assemble(path):
    k1 = build_k1()
    hdr = open("cdna_kernels/" + NAME + ".s.ref").read().split("; Override launch")[0]
    out = hdr
    KD = gen1.KD.replace("next_free_sgpr 96", "next_free_sgpr 102")
    if opt.fused:
        nm = NAME + "_kernel"
        out += f"; @launch grid=(256,1,1) block=(256,1,1) lds={LDS_TOTAL}\n"
        out += '.amdgcn_target "amdgcn-amd-amdhsa--gfx950"\n.text\n'
        out += f".globl {nm}\n.p2align 8\n.type {nm},@function\n{nm}:\n" + k1.text()
        out += '.section .rodata,"a"\n.p2align 6\n' + KD.format(name=nm, vgpr=512, acc=256)
    else:
        gen1.opt.k2_flags = opt.k2_flags; gen1.opt.stamps = opt.stamps
        k2 = gen1.build_k2()
        out += f"; @launch kernel=mha_k1_kernel grid=(256,1,1) block=(256,1,1) lds={LDS_TOTAL}\n"
        out += f"; @launch kernel=mha_k2_kernel grid=(560,1,1) block=(256,1,1) lds=0\n"
        out += '.amdgcn_target "amdgcn-amd-amdhsa--gfx950"\n.text\n'
        for nm, k in (("mha_k1_kernel", k1), ("mha_k2_kernel", k2)):
            out += f".globl {nm}\n.p2align 8\n.type {nm},@function\n{nm}:\n" + k.text()
        out += '.section .rodata,"a"\n.p2align 6\n' + KD.format(name="mha_k1_kernel", vgpr=512, acc=256)
        out += '.p2align 6\n' + KD.format(name="mha_k2_kernel", vgpr=96, acc=96)
    open(path, "w").write(out)
    if opt.stamps: print("STAMPS", ",".join(STAMPS))
    print("k1 stats", k1.stats, file=sys.stderr)

if __name__ == "__main__":
    path = sys.argv[1]
    for a in sys.argv[2:]:
        k, v = a.split("=")
        if v in ("True", "False"): v = (v == "True")
        elif v == "None": v = None
        setattr(opt, k, v)
    assemble(path)
```

```python
import sys, math, struct
from emit import *

NAME = "concat_heads__mha_block_cached__mha_block_cached__near_ridge"
LDS_M = 0; LDS_A = 16384; LDS_B = 98304; XS = 49152
LDS_TOTAL = 163840
PART_UNIT = 143360
PART_WAVE = 35840

class Opt:
    nt_kv = True
    st_flags = "sc1"
    k2_flags = ""
    dump = None
    stamps = False
    warm = False
    fallback = True
    force_fb = False
    pstamp = False
    only = None
    skip_dma = ''
    soft_mask = 'feacw'
    wait_batch = 4
    level = 8
    spread_prep = True
    early_qw = True
    prog_sum = True
    lateK = None
    tail2 = False
    ep_blk = 8
    soft3_end = 22
    tlb_pf = False
    out_flags = ''
    wsched = 2
    pvstamp = False
    NR = 6
    rtst = False
    own_keep = True
    c_ds = 5
    c_dma = 20
    c_dsw = 24
    soft_pipe = True
    soft_d1 = 2
    soft_d2 = 4
    tr_gap = 2
    wlate = True
    skip_st = False
    ws_off = 0
    late_wq1 = True
    cheap_max = True
    inplace_p = True
    fused = True
    red_flags = 'sc1'
    spin = 20000
    sig0_blk = 9
    poll0_blk = 10
    early0 = False
    epoll_blk = 5
    echeck_d = 2
    sleep = 4
    code_pf = True
    pf_lines = 4
    vm_gap = 3
    qstamp = False
    rot = 1
    w_flags = ''
    wo_flags = ''
    warm_wo = False
    warm_at = 21
    kread = '{8:0,10:1,11:[2,3],12:4,13:5}'
    kfirst = '{2:0,4:1,6:2,8:3}'
    qa_lo = 20
opt = Opt()
STAMPS = []
def f2u(x): return struct.unpack("<I", struct.pack("<f", x))[0]

sX, sK, sV, sWQ, sWO, sWS = S(4,4), S(8,4), S(12,4), S(16,4), S(20,4), S(24,4)
sW, sRB, sWB, sXD, sO1, sO2, sC, sExact = S(28), S(29), S(30), S(31), S(32), S(33), S(34), S(35)
sH, sBt, sBr = S(60), S(61), S(62)
sO3 = S(57)
sDBG = S(96, 4)
sCnt = S(100)
sT0 = S(78, 2)
sE0, sE1 = S(62+39), S(35)
sTok = S(92, 2)
sXo = [S(64+c) for c in range(7)]
sWo = [S(71+c) for c in range(7)]

vL = V(1)
vB0, vB1, vK0, vK1 = V(2), V(3), V(4), V(5)
vTv = [V(6+i) for i in range(4)]
vD  = [V(10+i) for i in range(4)]
vVb, vWOb, vPW, vSTW, vSTR, vWS = V(14), V(15), V(16), V(18), V(19), V(20)
vM  = [V(21+i) for i in range(10)]
vSTM = V(31)
vDum = V(0)
vX0, vX1 = V(152), V(153)
vTq  = [V(154+i) for i in range(4)]
vDX  = [V(158+i) for i in range(5)]
vDWQ = [V(163+i) for i in range(4)]
vQW  = V(167)
vLs = [V(152+i) for i in range(10)]
vDW = [V(172+i) for i in range(4)]
vTmp = [V(162+i) for i in range(10)]
NB = 8
aB = [A(4*i, 4) for i in range(NB)]
aR = [A(32 + 16*i, 16) for i in range(4)] + [A(136 + 16*i, 16) for i in range(2)]
def Rs(n): return aR[n % 6]
aWQ = [[A(96 + 16*s + 4*t, 4) for t in range(4)] for s in range(2)]
def park(p, b):
    if opt.inplace_p and p == 0: return V(112 + 4*b, 4)
    if opt.inplace_p and p == 3: return V(176 + 4*b, 4)
    return A((208 if p == 1 else 168) + 4*b, 4)

def accQ(t, b):
    i = b*4 + t
    return V(32 + 4*i, 4) if i < 30 else V(176 + 4*(i-30), 4)
def accS(p, t, b): return V((32 if p % 2 == 0 else 176) + 8*b + 4*t, 4)
def accO(t, b):
    i = b*4 + t
    return V(32 + 4*i, 4) if i < 30 else A(96 + 4*(i-30), 4)
def accP0(t, b): return A(96 + 4*(b*4+t), 4)
def accP1(t, b): return V(32 + 4*(b*3+t), 4)

class G:
    def __init__(self):
        self.e = Emit(); self.nst = 0
    def v2(self, op, d, a, b):
        self.e.valu(f"{op} {d}, {a}, {b}", dst=[d], src=[x for x in (a, b) if isinstance(x, R)])
    def v1(self, op, d, a, trans=False):
        self.e.valu(f"{op} {d}, {a}", dst=[d], src=[a] if isinstance(a, R) else [], trans=trans)
    def v3(self, op, d, a, b, c, neg_c=False):
        cc = f"-{c}" if neg_c else f"{c}"
        self.e.valu(f"{op} {d}, {a}, {b}, {cc}", dst=[d], src=[x for x in (a, b, c) if isinstance(x, R)])
    def cvt(self, d, a, b):
        self.e.valu(f"v_cvt_pk_bf16_f32 {d}, {a}, {b}", dst=[d], src=[a, b])
    def accw(self, d, a):
        self.e.valu(f"v_accvgpr_write_b32 {d}, {a}", dst=[d], src=[a])
    def accr(self, d, a):
        self.e.valu(f"v_accvgpr_read_b32 {d}, {a}", dst=[d], src=[a])
    def s2(self, op, d, a, b):
        self.e.salu(f"{op} {d}, {a}, {b}", reads=[x for x in (a, b) if isinstance(x, R)])
    def s1(self, op, d, a):
        self.e.salu(f"{op} {d}, {a}", reads=[a] if isinstance(a, R) else [])
    def m0(self, sbase, imm):
        self.e.salu(f"s_add_u32 m0, {sbase}, {imm}", w_m0=True, reads=[sbase])
    m0state = None
    sstate = None
    def ensure(self, sbase, ldsoff, sreg, soff_imm):
        if self.sstate is None: self.sstate = {}
        if self.m0state != (str(sbase), ldsoff):
            self.m0(sbase, ldsoff); self.m0state = (str(sbase), ldsoff)
        key = (str(soff_imm[0]), soff_imm[1]) if isinstance(soff_imm, tuple) else soff_imm
        if self.sstate.get(str(sreg)) != key:
            if isinstance(soff_imm, tuple): self.s2("s_add_u32", sreg, soff_imm[0], soff_imm[1])
            else: self.s1("s_mov_b32", sreg, soff_imm)
            self.sstate[str(sreg)] = key
    def forget(self):
        self.m0state = None; self.sstate = {}
    def dma_group(self, voffs, srd, sbase, ldsoff, soff_imm, sreg, holder, key, flags=""):
        e = self.e; fs = []
        for i in range(len(voffs)):
            def f(i=i):
                kind = key[0] if key[0] != 'r' else ('k' if key[1] < 16 else ('v' if key[1] < 32 else 'o'))
                if kind in opt.skip_dma or (kind == 'wq' and 'q' in opt.skip_dma): holder[key] = e.vm_issued; return
                self.ensure(sbase, ldsoff + (4096 if i == 4 else 0), sreg, soff_imm)
                holder[key] = e.dma(voffs[i], srd, sreg, offset=(1024*i if i < 4 else 0), flags=flags)
            f.vm = True
            fs.append(C(f, int(opt.c_dma) + (8 if i == 0 else 0)))
        return fs
    def run(self, fs):
        for f in fs: f()
    def stamp(self, name):
        if not opt.stamps: return
        if opt.only and name not in opt.only.split(","): return
        i = self.nst; self.nst += 1; STAMPS.append(name)
        assert i < 10
        self.e.raw("s_memrealtime s[94:95]" if opt.rtst else "s_memtime s[94:95]"); self.e.raw("s_waitcnt lgkmcnt(0)"); self.e.raw(f"s_mov_b32 s{80+i}, s94")
        self.e.lg_done = self.e.lg_issued
    def stamp_flush(self):
        e = self.e
        e.raw("s_memrealtime s[94:95]"); e.raw("s_waitcnt lgkmcnt(0)")
        e.raw("s_load_dwordx2 s[36:37], s[0:1], 96"); e.raw("s_waitcnt lgkmcnt(0)")
        e.salu("s_add_u32 s36, s36, 0x4000000"); e.salu("s_addc_u32 s37, s37, 0")
        e.salu("s_mov_b32 s38, 0x100000"); e.salu("s_mov_b32 s39, 0x00020000")
        e.salu("s_lshl_b32 s40, s2, 8"); e.salu(f"s_lshl_b32 s41, {sW}, 6"); e.salu("s_add_u32 s40, s40, s41")
        z = V(170); d = V(171)
        self.v1("v_mov_b32", z, 0)
        for i, src in [(i, S(80+i)) for i in range(self.nst)] + [(15, S(94)), (14, S(78))]:
            self.v1("v_mov_b32", d, src); e.salu(f"s_add_u32 s41, s40, {4*i}")
            e.gstore("buffer_store_dword", d, z, S(36, 4), S(41))

def cost_of(f): return getattr(f, "cost", 4)
def C(f, c):
    f.cost = c; return f

def VM(f):
    f.vm = True; return f

class Gaps:
    def __init__(self):
        self.streams = []; self.fixed = {}
    def setdefault(self, k, d): return self.fixed.setdefault(k, d)

def spread(gaps, fs, start, end):
    if not fs: return
    assert end > start, (start, end)
    gaps.streams.append(dict(ops=list(fs), lo=start, hi=end))

def place(gaps, fs, start, step=None):
    if step is None: step = int(opt.vm_gap)
    pos = start
    for f in fs:
        gaps.setdefault(pos, []).append(f)
        if getattr(f, "vm", False): pos += step

def place_even(gaps, fs, start, end):
    n = len(fs)
    for k, f in enumerate(fs): gaps.setdefault(start + (k * (end - start)) // n, []).append(f)

def schedule(N, F, streams, base=8.0):
    out = {}
    for s_ in streams:
        s_["k"] = 0; s_["rem"] = sum(cost_of(f) for f in s_["ops"]); s_["hi"] = min(s_["hi"], N)
    pf = [0]*(N+1)
    for i in range(N): pf[i+1] = pf[i] + F[i]
    carry = 0.0
    last_vm = -100
    last_tr = -100
    VMG = int(opt.vm_gap)
    for i in range(N):
        act = [s_ for s_ in streams if s_["k"] < len(s_["ops"])]
        if not act: break
        L = base
        his = sorted(set(s_["hi"] for s_ in act if s_["hi"] > i))
        for h in his:
            need = pf[h] - pf[i] + sum(s_["rem"] for s_ in act if s_["hi"] <= h and s_["lo"] < h)
            lo = max(i, min(s_["lo"] for s_ in act if s_["hi"] <= h))
            need2 = pf[h] - pf[lo] + sum(s_["rem"] for s_ in act if s_["hi"] <= h)
            if lo <= i: L = max(L, need2 / (h - lo))
        budget = L - F[i] + carry
        placed = 0
        while True:
            cand = [s_ for s_ in streams if s_["k"] < len(s_["ops"]) and s_["lo"] <= i]
            def blocked(x):
                f_ = x["ops"][x["k"]]
                if getattr(f_, "trans", False) and i - last_tr < int(opt.tr_gap):
                    nt_ = sum(1 for q in x["ops"][x["k"]:] if getattr(q, "trans", False))
                    return (x["hi"] - i) * 1.0 / int(opt.tr_gap) > nt_
                if not getattr(f_, "vm", False) or i - last_vm >= VMG: return False
                nv = sum(1 for q in x["ops"][x["k"]:] if getattr(q, "vm", False))
                return (x["hi"] - i) > nv
            cand = [x for x in cand if not blocked(x)]
            if not cand: break
            cand.sort(key=lambda s_: (s_["hi"] - s_["rem"] / max(L - 2.0, 1.0), s_["hi"]))
            s_ = cand[0]
            f = s_["ops"][s_["k"]]; c = cost_of(f)
            forced = any(x["hi"] - 1 <= i for x in cand)
            if forced:
                s_ = [x for x in cand if x["hi"] - 1 <= i][0]; f = s_["ops"][s_["k"]]; c = cost_of(f)
            elif budget - placed < c - 1.99: break
            out.setdefault(i, []).append(f); s_["k"] += 1; s_["rem"] -= c; placed += c
            if getattr(f, "vm", False): last_vm = i
            if getattr(f, "trans", False): last_tr = i
        carry = max(-6.0, min(2.0, budget - placed))
    for s_ in streams: assert s_["k"] == len(s_["ops"]), (s_["lo"], s_["hi"], s_["k"], len(s_["ops"]))
    return out

class Seg:
    def __init__(self, g):
        self.g = g; self.groups = []
        self.gaps = Gaps()
        self.preB = {}
        self.nm = 0; self.gstart = []
    def add_group(self, mf, bsrc):
        self.gstart.append(self.nm); self.groups.append((mf, bsrc)); self.nm += len(mf)
    def emit(self, wait_batch=None):
        if wait_batch is None: wait_batch = int(opt.wait_batch)
        e = self.g.e; seq = {}
        n = len(self.groups); N = self.nm
        F = [0]*N
        for G in range(n):
            last = self.gstart[G] + len(self.groups[G][0]) - 1
            if G + NB < n: F[last] += int(opt.c_ds)
            if G % wait_batch == 0 and G > 0: F[self.gstart[G] - 1] += 4
        for k_, v_ in self.gaps.fixed.items(): F[k_] += sum(cost_of(f) for f in v_)
        sched = schedule(N, F, self.gaps.streams, base=float(opt.level))
        def rd(G):
            a, o = self.groups[G][1]
            seq[G] = e.ds_read("ds_read_b128", aB[G % NB], a, o)
        for G in range(min(NB, n)): rd(G)
        idx = 0
        for G, (mf, _) in enumerate(self.groups):
            if G % wait_batch == 0:
                last = min(n-1, G + wait_batch - 1)
                while last not in seq: last -= 1
                e.wait_lg(seq[last])
            for m in mf:
                m(aB[G % NB])
                for f in sched.get(idx, []): f()
                for f in self.gaps.fixed.get(idx, []): f()
                idx += 1
            for f in self.preB.get(G, []): f()
            if G + NB < n: rd(G + NB)

def build_k1():
    g = G(); e = g.e
    kvflag = "nt" if opt.nt_kv else ""
    H = {}
    e.raw("s_cmp_ge_u32 s2, 256"); e.raw("s_cbranch_scc1 L_k1_end")
    if opt.code_pf:
        nl = int(opt.pf_lines)
        e.raw("s_getpc_b64 s[36:37]")
        e.label("L_pc")
        e.raw("v_lshrrev_b32 v2, 6, v0")
        e.raw("s_lshr_b32 s38, s2, 3"); e.raw("s_lshl_b32 s38, s38, 2")
        e.raw("v_add_u32 v2, s38, v2")
        e.raw(f"v_and_b32 v3, {nl-1}, v0")
        e.raw(f"v_mad_u32_u24 v2, v2, {nl}, v3")
        e.raw("v_lshlrev_b32 v2, 7, v2")
        e.raw("s_mov_b32 s38, L_k1_end-L_pc-4")
        e.raw("v_min_u32 v2, s38, v2")
        e.raw("v_and_b32 v2, -4, v2")
        e.raw("global_load_dword v17, v2, s[36:37]")
        e.vm_issued += 1
    if opt.stamps:
        e.raw("s_memrealtime s[78:79]"); e.raw("s_waitcnt lgkmcnt(0)")
    g.stamp("start")
    e.raw("s_load_dwordx16 s[36:51], s[0:1], 0")
    e.raw("s_load_dwordx4 s[52:55], s[0:1], 64")
    e.raw("s_load_dwordx2 s[56:57], s[0:1], 96")
    if opt.fused and not opt.stamps: e.raw("s_memrealtime s[78:79]")
    if opt.fused: e.raw("s_load_dwordx2 s[90:91], s[0:1], 80")
    if opt.tlb_pf: e.raw("s_load_dwordx2 s[92:93], s[0:1], 80")
    g.s2("s_and_b32", S(58), S(2), 7); g.s2("s_lshr_b32", S(59), S(2), 3)
    g.s2("s_and_b32", sH, S(58), 3); g.s2("s_lshl_b32", sH, sH, 2)
    g.s2("s_and_b32", sBt, S(59), 3); g.s2("s_add_u32", sH, sH, sBt)
    g.s2("s_lshr_b32", sBt, S(59), 2); g.s2("s_lshr_b32", sBr, S(58), 2)
    rot = int(opt.rot)
    md = 6 if rot == 2 else 7
    if rot == 3:
        g.s2("s_and_b32", S(58), sH, 3); g.s2("s_lshr_b32", S(59), sBt, 1); g.s2("s_add_u32", S(58), S(58), S(59)); g.s2("s_lshl_b32", S(58), S(58), 1)
        for _ in range(2):
            e.raw(f"s_cmp_ge_u32 s58, {md}"); e.raw(f"s_cselect_b32 s59, {md}, 0"); g.s2("s_sub_u32", S(58), S(58), S(59))
    elif rot == 4:
        g.s2("s_and_b32", S(58), sH, 1); g.s2("s_lshr_b32", S(59), sBt, 2); g.s2("s_lshl_b32", S(59), S(59), 1); g.s2("s_add_u32", S(58), S(58), S(59)); g.s2("s_mul_i32", S(58), S(58), 2)
        for _ in range(2):
            e.raw(f"s_cmp_ge_u32 s58, {md}"); e.raw(f"s_cselect_b32 s59, {md}, 0"); g.s2("s_sub_u32", S(58), S(58), S(59))
    elif rot:
        g.s2("s_and_b32", S(58), sH, 3); g.s2("s_lshl_b32", S(58), S(58), 1); g.s2("s_add_u32", S(58), S(58), sBt)
        for _ in range(2):
            e.raw(f"s_cmp_ge_u32 s58, {md}"); e.raw(f"s_cselect_b32 s59, {md}, 0"); g.s2("s_sub_u32", S(58), S(58), S(59))
    else:
        g.s1("s_mov_b32", S(58), 0)
    for c in range(7):
        if rot == 2 and c == 0:
            g.s1("s_mov_b32", sXo[0], 0); g.s1("s_mov_b32", sWo[0], 0); continue
        g.s2("s_add_u32", S(59), S(58), c if rot != 2 else c - 1)
        e.raw(f"s_cmp_ge_u32 s59, {md if rot else 7}"); e.raw(f"s_cselect_b32 s63, {md if rot else 7}, 0"); g.s2("s_sub_u32", S(59), S(59), S(63))
        if rot == 2: g.s2("s_add_u32", S(59), S(59), 1)
        g.s2("s_lshl_b32", sXo[c], S(59), 7); g.s2("s_lshl_b32", sWo[c], S(59), 19)
    g.v2("v_lshrrev_b32", V(32), 6, V(0))
    e.readfirstlane(sW, V(32))
    g.s1("s_mov_b32", sExact, 0)
    g.s2("s_lshl_b32", sRB, sW, 14); g.s2("s_add_u32", sRB, sRB, LDS_B)
    g.s2("s_mul_i32", sWB, sW, 12288)
    g.s2("s_mul_i32", sXD, sW, 5120); g.s2("s_add_u32", sXD, sXD, XS)
    g.s1("s_mov_b32", sC, hex(f2u(math.log2(math.e) / 16.0)))
    g.v2("v_and_b32", vL, 63, V(0))
    P = [V(32+i) for i in range(16)]
    q16, gg, r4, c4, prow, pg, t, u, w_v = P[0], P[1], P[2], P[3], P[4], P[5], P[6], P[7], P[8]
    def lanefields():
        g.v2("v_and_b32", q16, 15, vL); g.v2("v_lshrrev_b32", gg, 4, vL)
        g.v3("v_bfe_u32", r4, vL, 2, 2); g.v2("v_and_b32", c4, 3, vL)
        g.v2("v_lshrrev_b32", prow, 3, vL); g.v2("v_and_b32", pg, 7, vL)
        g.v1("v_mov_b32", w_v, sW)
    s896 = S(63)
    def xwq_offsets():
        g.s1("s_mov_b32", s896, 896)
        for i in range(5):
            g.v3("v_mad_u32_u24", t, w_v, 5, i)
            g.v2("v_and_b32", u, 1, t); g.v3("v_lshl_add_u32", u, u, 2, gg)
            g.v2("v_xor_b32", u, u, pg); g.v2("v_lshlrev_b32", u, 4, u)
            g.v3("v_lshl_add_u32", t, t, 3, prow)
            g.v3("v_mad_u32_u24", vDX[i], t, s896, u)
            if 0 < i < 4: g.v2("v_subrev_u32", vDX[i], 1024*i, vDX[i])
        for par in range(2):
            g.v3("v_bfe_u32", u, prow, 1, 1)
            if par: g.v2("v_or_b32", u, 2, u)
            g.v2("v_lshlrev_b32", u, 1, u); g.v2("v_xor_b32", u, u, pg); g.v2("v_lshlrev_b32", u, 4, u)
            g.v3("v_lshl_add_u32", u, w_v, 7, u)
            g.v2("v_lshlrev_b32", t, 13, prow); g.v2("v_add_u32", vDWQ[par], t, u)
        for jj in (2, 3): g.v2("v_add_u32", vDWQ[jj], 64512*jj, vDWQ[jj & 1])
        g.v2("v_add_u32", vDWQ[1], 64512, vDWQ[1])
    lanefields(); xwq_offsets()
    e.raw("s_waitcnt lgkmcnt(0)")
    if opt.pstamp: g.stamp("karg")
    e.raw(f"s_cmp_eq_u32 {sBr}, 0")
    for (pa, pb) in [(36,46),(42,52),(38,48),(40,50),(44,54)]:
        e.raw(f"s_cselect_b32 s{pa}, s{pa}, s{pb}"); e.raw(f"s_cselect_b32 s{pa+1}, s{pa+1}, s{pb+1}")
    def srd(dst, plo, off_sreg, nrec):
        g.s2("s_add_u32", dst[0], S(plo), off_sreg); e.salu(f"s_addc_u32 {dst[1]}, s{plo+1}, 0")
        g.s1("s_mov_b32", dst[2], nrec); g.s1("s_mov_b32", dst[3], "0x00020000")
    t0, t1 = S(58), S(59)
    g.s2("s_mul_i32", t0, sBt, 143360); srd(sX, 36, t0, 143360)
    g.s2("s_lshl_b32", t1, sH, 9); g.s2("s_sub_u32", t0, 3670016, t1); srd(sWQ, 42, t1, t0)
    def first_dmas():
        g.forget()
        g.run(g.dma_group(vDX, sX, sXD, 0, (sXo[0], 0), sO1, H, ('x', 0), flags=opt.w_flags))
        g.run(g.dma_group(vDWQ, sWQ, sWB, 0, (sWo[0], 0), sO2, H, ('wq', 0), flags=opt.w_flags))
    snap0 = e.snapshot()
    first_dmas()
    g.s2("s_lshl_b32", t0, sBt, 4); g.s2("s_add_u32", t0, t0, sH)
    g.s2("s_lshl_b32", t1, t0, 18); srd(sK, 38, t1, 262144); srd(sV, 40, t1, 262144)
    g.s2("s_lshl_b32", t1, sBr, 7); g.s2("s_add_u32", t0, t0, t1)
    g.s2("s_mul_i32", t1, t0, PART_UNIT)
    if int(opt.ws_off): g.s2("s_add_u32", t1, t1, hex(int(opt.ws_off) << 20))
    srd(sWS, 56, t1, PART_UNIT)
    g.s2("s_mul_i32", t1, sH, 229376); srd(sWO, 44, t1, 229376)
    if opt.fused:
        g.s2("s_add_u32", sDBG[0], S(56), "0x3000000"); e.salu(f"s_addc_u32 {sDBG[1]}, s57, 0")
        g.s1("s_mov_b32", sDBG[2], 131072); g.s1("s_mov_b32", sDBG[3], "0x00020000")
        g.s2("s_lshl_b32", t1, sBr, 3); g.s2("s_add_u32", t1, t1, sBt); g.s2("s_lshl_b32", sCnt, t1, 13)
    e.raw("s_branch L_first")
    e.label("L_restart")
    e.restore(snap0)
    lanefields(); xwq_offsets()
    first_dmas()
    e.label("L_first")
    g.forget()
    if opt.warm:
        g.s2("s_mul_i32", t0, sBt, 56); g.s2("s_mul_i32", t1, sW, 14); g.s2("s_add_u32", t0, t0, t1)
        g.v2("v_lshrrev_b32", t, 2, vL); g.v2("v_add_u32", t, t0, t); g.v2("v_lshlrev_b32", t, 13, t)
        g.v3("v_lshl_add_u32", t, c4, 7, t)
        e.raw(f"buffer_load_dword {vDum}, {t}, {sWQ}, 0 offen"); e.vm_issued += 1
        g.s2("s_and_b32", t0, sH, 3); g.s2("s_mul_i32", t0, t0, 280); g.s2("s_mul_i32", t1, sW, 70); g.s2("s_add_u32", t0, t0, t1)
        g.v2("v_add_u32", u, t0, vL); g.v2("v_lshlrev_b32", u, 7, u)
        e.raw(f"buffer_load_dword {vDum}, {u}, {sX}, 0 offen"); e.vm_issued += 1
    if opt.pstamp: g.stamp("warm")
    if not opt.late_wq1: g.run(g.dma_group(vDWQ, sWQ, sWB, 4096, (sWo[0], 262144), sO2, H, ('wq', 1), flags=opt.w_flags))
    if opt.pstamp: g.stamp("wq12")
    for par in range(2):
        g.v2("v_add_u32", u, 4*par, gg); g.v2("v_xor_b32", u, u, pg); g.v2("v_lshlrev_b32", u, 4, u)
        g.v3("v_lshl_add_u32", t, w_v, 5, prow); g.v2("v_lshlrev_b32", t, 9, t)
        g.v2("v_add_u32", vD[par], t, u)
    for jj in (2, 3): g.v2("v_add_u32", vD[jj], 3072*jj, vD[jj & 1])
    g.v2("v_add_u32", vD[1], 3072, vD[1])
    SLOT = {n: n & 3 for n in range(22)}
    SLOT.update({n: n & 3 for n in range(22, 48)})
    def dma_n(n):
        if n < 16:   return g.dma_group(vD, sK, sRB, 4096*SLOT[n], 65536*(n >> 2) + 128*(n & 3), sO1, H, ('r', n), flags=kvflag)
        if n < 32:   return g.dma_group(vD, sV, sRB, 4096*SLOT[n], 16384*(n-16), sO1, H, ('r', n), flags=kvflag)
        i = n - 32
        return g.dma_group(vDW, sWO, sRB, 4096*SLOT[n], 28672*(i % 8) + 128*(i // 8), sO2, H, ('r', n), flags=opt.wo_flags)
    def switchD(base):
        return [lambda jj=jj: (g.v1("v_mov_b32", vD[0], base) if jj == 0 else g.v2("v_add_u32", vD[jj], base[1]*jj, base[0])) for jj in range(4)]
    gv = P[9]
    g.v3("v_bfe_u32", u, prow, 1, 2); g.v2("v_lshlrev_b32", u, 1, u); g.v2("v_xor_b32", u, u, pg); g.v2("v_lshlrev_b32", gv, 4, u)
    g.v2("v_lshlrev_b32", u, 9, prow); g.v2("v_add_u32", u, u, gv); g.v3("v_lshl_add_u32", vVb, w_v, 7, u)
    s224 = S(58); g.s1("s_mov_b32", s224, 224)
    g.v3("v_mad_u32_u24", u, prow, s896, gv); g.v3("v_mad_u32_u24", vWOb, w_v, s224, u)
    g.v2("v_lshlrev_b32", t, 4, vL); g.v2("v_add_u32", vB0, LDS_A, t); g.v2("v_add_u32", vB1, LDS_A + 40960, t)
    g.v2("v_lshrrev_b32", u, 1, q16)
    for sp, (vx, vk) in enumerate([(vX0, vK0), (vX1, vK1)]):
        g.v2("v_add_u32", t, 4*sp, gg); g.v2("v_xor_b32", t, t, u); g.v2("v_lshlrev_b32", t, 4, t)
        g.v3("v_lshl_add_u32", t, q16, 7, t)
        g.v2("v_add_u32", vx, XS, t); g.v2("v_add_u32", vk, sRB, t)
    phq, phv, base = P[10], P[11], P[12]
    g.v2("v_lshrrev_b32", u, 1, r4)
    g.v2("v_and_b32", t, 1, gg); g.v3("v_lshl_or_b32", phq, t, 1, u)
    g.v3("v_lshl_add_u32", phv, gg, 1, u); g.v2("v_and_b32", phv, 3, phv)
    g.v3("v_lshl_add_u32", base, gg, 3, r4); g.v2("v_lshlrev_b32", base, 7, base); g.v3("v_lshl_add_u32", base, c4, 3, base)
    g.v2("v_add_u32", base, sWB, base)
    for tt in range(4):
        g.v2("v_xor_b32", t, tt, phq); g.v3("v_lshl_add_u32", vTq[tt], t, 5, base)
    g.v3("v_lshl_add_u32", base, gg, 2, r4); g.v2("v_lshlrev_b32", base, 7, base); g.v3("v_lshl_add_u32", base, c4, 3, base)
    g.v2("v_add_u32", base, sRB, base)
    for tt in range(4):
        g.v2("v_xor_b32", t, tt, phv); g.v3("v_lshl_add_u32", vTv[tt], t, 5, base)
    sA = S(59); g.s2("s_mul_i32", sA, sW, 20480); g.s2("s_add_u32", sA, sA, LDS_A)
    g.v2("v_lshrrev_b32", t, 1, gg); g.v2("v_and_b32", u, 1, gg); g.v3("v_lshl_or_b32", t, u, 1, t)
    g.v2("v_lshlrev_b32", t, 8, t); g.v3("v_lshl_add_u32", t, q16, 4, t); g.v2("v_add_u32", vQW, sA, t)
    g.v2("v_lshlrev_b32", t, 4, vL)
    g.s2("s_mul_i32", sA, sW, 10240); g.s2("s_add_u32", sA, sA, LDS_A); g.v2("v_add_u32", vPW, sA, t)
    g.s2("s_lshl_b32", sA, sW, 10); g.v2("v_add_u32", vWS, sA, t)
    g.v2("v_lshlrev_b32", vSTR, 4, q16); g.s2("s_lshl_b32", sA, sW, 2); g.v2("v_add_u32", vSTW, sA, vSTR)
    g.v2("v_lshlrev_b32", t, 2, vL); g.v2("v_add_u32", t, 8192, t)
    e.valu(f"v_cmp_eq_u32 vcc, 0, {gg}", src=[gg]); e.nop(2)
    e.valu(f"v_cndmask_b32 {vSTM}, {t}, {vSTW}, vcc", dst=[vSTM], src=[t, vSTW])
    for b in range(10): g.v1("v_mov_b32", vM[b], "0xff800000")

    def rdR(n):
        slot = n & 3; ls = SLOT[n]; fs = []
        if n < 16:
            for sp in range(2):
                for tt in range(2):
                    fs.append(lambda sp=sp, tt=tt: e.ds_read("ds_read_b128", Rs(n).sub(8*sp + 4*tt, 4), (vK0, vK1)[sp], 4096*ls + 2048*tt))
        else:
            for tt in range(4):
                for hf in range(2):
                    fs.append(lambda tt=tt, hf=hf: e.ds_read("ds_read_b64_tr_b16", Rs(n).sub(4*tt + 2*hf, 2), vTv[tt], 4096*ls + 2048*hf))
        return [lambda: e.wait_vm(H[('r', n)])] + fs
    RSEQ = {}
    def rdR_mark(n):
        fs = rdR(n)
        def mark(): RSEQ[n] = e.lg_issued
        return fs + [mark]
    def dma_after(n_read, n_dma):
        return [lambda: e.wait_lg(RSEQ[n_read])] + dma_n(n_dma)

    g.stamp("prolog")
    def rdA_wq(s):
        fs = []
        for tt in range(4):
            for hf in range(2):
                fs.append(lambda tt=tt, hf=hf: e.ds_read("ds_read_b64_tr_b16", aWQ[s & 1][tt].sub(2*hf, 2), vTq[tt], 4096*(s % 3) + 512*hf))
        return fs
    if opt.late_wq1:
        W0 = H[('wq', 0)]
        g.run(g.dma_group(vDWQ, sWQ, sWB, 4096, (sWo[0], 262144), sO2, H, ('wq', 1), flags=opt.w_flags))
    if opt.tlb_pf:
        ta, tz = V(48), V(49)
        g.v1("v_mov_b32", tz, 0)
        for srd_, off in ((sK, 0), (sV, 0), (sWO, 0), (sWO, 229372), (sDBG, 0)):
            g.s1("s_mov_b32", S(36), off)
            e.raw(f"buffer_load_dword {V(17)}, {tz}, {srd_}, s36 offen"); e.vm_issued += 1
        g.s2("s_mul_i32", S(36), sH, PART_UNIT); g.s2("s_sub_u32", S(38), sWS[0], S(36)); e.salu(f"s_subb_u32 s39, {sWS[1]}, 0")
        g.v2("v_and_b32", ta, 15, vL); g.s1("s_mov_b32", S(37), PART_UNIT); e.valu(f"v_mul_lo_u32 {ta}, {ta}, {S(37)}", dst=[ta], src=[ta, S(37)])
        e.raw(f"global_load_dword {V(17)}, {ta}, s[38:39]"); e.vm_issued += 1
        g.s2("s_mul_i32", S(36), sBt, 160*1792); g.v1("v_mov_b32", ta, S(36))
        e.raw(f"global_load_dword {V(17)}, {ta}, s[92:93]"); e.vm_issued += 1
    e.wait_vm(H[('wq', 0)])
    e.barrier()
    g.stamp("firstdata")
    g.run(rdA_wq(0))
    sg = Seg(g)
    NQ = 14
    for s in range(NQ):
        for b in range(10):
            mf = [lambda B, b=b, tt=tt, s=s: e.mfma(accQ(tt, b), aWQ[s & 1][tt], B, accQ(tt, b) if s > 0 else 0) for tt in range(4)]
            sg.add_group(mf, ((vX0, vX1)[s & 1], 20480*((s >> 1) & 1) + 2048*b))
    kread = eval(str(opt.kread))
    kfirst = eval(str(opt.kfirst))
    for s in range(NQ):
        o = 40*s; nxt = s + 1
        if s == 0:
            place(sg.gaps, g.dma_group(vDWQ, sWQ, sWB, 4096*2, (sWo[1], 0), sO2, H, ('wq', 2), flags=opt.w_flags), o + 0, 2)
            place(sg.gaps, g.dma_group(vDX, sX, sXD, 20480, (sXo[1], 0), sO1, H, ('x', 1), flags=opt.w_flags), o + 8, 3)
        if nxt < NQ:
            spread(sg.gaps, [lambda nxt=nxt: e.wait_vm(H[('wq', nxt)])] + [C(f, int(opt.c_ds)) for f in rdA_wq(nxt)], o + int(opt.qa_lo), o + 38)
            if nxt % 2 == 0:
                c = nxt // 2
                def bar(c=c):
                    e.wait_vm(H[('x', c)]); e.wait_lg_all(); e.barrier()
                sg.preB.setdefault(10*s + 2, []).append(bar)
                if c + 1 < 7:
                    place(sg.gaps, g.dma_group(vDX, sX, sXD, 20480*((c+1) & 1), (sXo[c+1], 0), sO1, H, ('x', c+1), flags=opt.w_flags), o + 19)
        if s + 3 < NQ:
            lo = 24 if s == 0 else 3
            place(sg.gaps, g.dma_group(vDWQ, sWQ, sWB, 4096*(s % 3), (sWo[(s+3) >> 1], 262144*((s+3) & 1)), sO2, H, ('wq', s+3), flags=opt.w_flags), o + lo)
        if opt.lateK:
            plan = eval(str(opt.lateK))[0]
            for k_, (kind, n) in enumerate(plan.get(s, [])):
                two = len(plan[s]) > 1
                lo = (1 + 20*k_) if two else 18
                if kind == 'd': place(sg.gaps, dma_n(n), o + lo + (0 if two else 4), 3 if two else 4)
                else:
                    spread(sg.gaps, [C(f, int(opt.c_ds)) for f in rdR_mark(n)], o + (lo if two else 2), o + (lo + 6 if two else 18))
                    place(sg.gaps, dma_after(n, n + 4), o + (lo + 7 if two else 22), 3 if two else 4)
            continue
        if s in kfirst:
            assert s % 2 == 0 or s >= 11
            place(sg.gaps, dma_n(kfirst[s]), o + 22)
        if s in kread:
            lst = kread[s] if isinstance(kread[s], (list, tuple)) else [kread[s]]
            for k_, n in enumerate(lst):
                if len(lst) == 1:
                    spread(sg.gaps, [C(f, int(opt.c_ds)) for f in rdR_mark(n)], o + 2, o + 18)
                    place(sg.gaps, dma_after(n, n + 4), o + 22)
                else:
                    spread(sg.gaps, [C(f, int(opt.c_ds)) for f in rdR_mark(n)], o + 1 + 20*k_, o + 7 + 20*k_)
                    place(sg.gaps, dma_after(n, n + 4), o + 8 + 20*k_, 3)
    if opt.qstamp:
        for s_ in range(1, 14): sg.gaps.setdefault(40*s_ - 1, []).append(lambda s_=s_: g.stamp(f"q{s_-1}"))
    def qcvt(b):
        fs = []
        for u in range(2):
            d, d2 = accQ(2*u, b), accQ(2*u + 1, b)
            fs.append(lambda d=d: g.cvt(d[0], d[0], d[1])); fs.append(lambda d=d: g.cvt(d[1], d[2], d[3]))
            fs.append(lambda d=d, d2=d2: g.cvt(d[2], d2[0], d2[1])); fs.append(lambda d=d, d2=d2: g.cvt(d[3], d2[2], d2[3]))
            fs.append(lambda d=d: e.valu(f"v_permlane16_swap_b32 {d[0]}, {d[2]}", dst=[d[0], d[2]], src=[d[0], d[2]], permlane=True))
            fs.append(lambda d=d: e.valu(f"v_permlane16_swap_b32 {d[1]}, {d[3]}", dst=[d[1], d[3]], src=[d[1], d[3]], permlane=True))
        return fs
    o13 = 40*(NQ - 1); qtail = []
    def qwrite(b): return [C(lambda u=u, b=b: e.ds_write("ds_write_b128", vQW, accQ(2*u, b), u*10240 + b*1024), int(opt.c_dsw)) for u in range(2)]
    if opt.early_qw:
        def barq():
            e.wait_lg_all(); e.barrier()
        sg.preB.setdefault(10*(NQ - 1) + 2, []).append(barq)
    for b in range(10):
        lo = max(o13 + 4*(b+1) + 3, o13 + 12)
        if b < 8: spread(sg.gaps, qcvt(b) + (qwrite(b) if opt.early_qw else []), lo, min(o13 + 40, lo + 8))
        else: qtail += qcvt(b) + (qwrite(b) if opt.early_qw else [])
    sg.emit()
    g.stamp("Qdone")
    g.run(qtail)
    if not opt.early_qw:
        e.wait_lg_all(); e.barrier()
        for b in range(10): g.run(qwrite(b))
    for b in range(10): g.v1("v_mov_b32", vLs[b], 0)
    e.wait_lg_all(); e.barrier()
    if opt.dump == 'Q': return finish_dump(g)
    def vBf(f): return (vB0, f*1024) if f < 40 else (vB1, (f-40)*1024)

    if opt.fallback:
        e.raw(f"s_cmp_eq_u32 {sExact}, 0"); e.raw("s_cbranch_scc1 L_nosweep")
        snap = e.snapshot()
        e.wait_vm_all(); e.wait_lg_all()
        sp_, ka = S(36), V(172)
        kq = V(173)
        g.v2("v_and_b32", kq, 15, vL); g.v2("v_lshlrev_b32", kq, 9, kq)
        g.v2("v_lshrrev_b32", ka, 4, vL); g.v3("v_lshl_add_u32", ka, ka, 4, kq)
        g.s2("s_lshl_b32", S(37), sW, 14); g.v2("v_add_u32", ka, S(37), ka)
        g.s1("s_mov_b32", sp_, 0)
        e.label("L_sweep")
        fa = [V(112, 4), V(116, 4)]; fb = V(120, 4)
        for s in range(8):
            for tt in range(2):
                g.s2("s_add_u32", S(38), sp_, 8192*tt)
                e.gload("buffer_load_dwordx4", fa[tt], ka, sK, S(38), offset=64*s)
            for b in range(10):
                a_, o_ = vBf(s*10 + b)
                e.ds_read("ds_read_b128", fb, a_, o_)
                for tt in range(2):
                    e.mfma(accS(0, tt, b), fa[tt], fb, accS(0, tt, b) if s > 0 else 0)
                e.nop(4)
        for b in range(10):
            s0, s1 = accS(0, 0, b), accS(0, 1, b)
            g.v3("v_max3_f32", vM[b], vM[b], s0[0], s0[1]); g.v3("v_max3_f32", vM[b], vM[b], s0[2], s0[3])
            g.v3("v_max3_f32", vM[b], vM[b], s1[0], s1[1]); g.v3("v_max3_f32", vM[b], vM[b], s1[2], s1[3])
        e.wait_lg_all(); e.wait_vm_all()
        g.s2("s_add_u32", sp_, sp_, 65536); e.raw(f"s_cmp_lt_u32 {sp_}, 0x40000"); e.raw("s_cbranch_scc1 L_sweep")
        e.nop(8)
        for sw in ("v_permlane32_swap_b32", "v_permlane16_swap_b32"):
            for b in range(10):
                tb = V(112 + b)
                g.v1("v_mov_b32", tb, vM[b])
                e.valu(f"{sw} {tb}, {vM[b]}", dst=[tb, vM[b]], src=[tb, vM[b]], permlane=True)
                g.v2("v_max_f32", vM[b], tb, vM[b])
        e.nop(8)
        e.restore(snap)
        e.label("L_nosweep")
    g.stamp("Qepi")

    sg = Seg(g)
    mstart = {}
    gstart = {}
    for n in range(16):
        p, cb = n >> 2, n & 3
        mstart[n] = sg.nm; gstart[n] = len(sg.groups)
        for sp in range(2):
            s = 2*cb + sp
            for b in range(10):
                mf = [lambda B, b=b, tt=tt, p=p, s=s, sp=sp, cb=cb: e.mfma(accS(p, tt, b), Rs(4*p + cb).sub(8*sp + 4*tt, 4), B, accS(p, tt, b) if s > 0 else 0) for tt in range(2)]
                sg.add_group(mf, vBf(s*10 + b))
    for j in range(16):
        n = 16 + j; c, wp = j >> 2, j & 3
        mstart[n] = sg.nm; gstart[n] = len(sg.groups)
        for b in range(10):
            mf = [lambda B, b=b, tt=tt, j=j, n=n: e.mfma(accO(tt, b), Rs(n).sub(4*tt, 4), B, accO(tt, b) if j > 0 else 0) for tt in range(4)]
            sg.add_group(mf, ((vB1 if (c & 1) else vB0), (wp*10 + b)*1024))
    gp = sg.gaps
    LA = 5
    catch = eval(str(opt.lateK))[1] if opt.lateK else {}
    for n in range(32):
        o = mstart[n]
        cu = catch.get(n, [])
        for k_, gq in enumerate(cu):
            lo = 1 + 10*k_
            spread(gp, [C(f, int(opt.c_ds)) for f in rdR_mark(gq)], o + lo, o + lo + 4)
            place(gp, dma_after(gq, gq + 4), o + lo + 4, 1)
        if n >= 1:
            lo = 1 + 10*len(cu)
            if n + LA < 32: spread(gp, [C(f, int(opt.c_ds)) for f in rdR_mark(n + LA)], o + lo, o + max(20, lo + 6))
            nd = n + LA + 4; pre = []
            if nd == 16: pre = [lambda: g.v1("v_mov_b32", vD[0], vVb)] + [lambda jj=jj: g.v2("v_add_u32", vD[jj], 3072*jj, vVb) for jj in (1, 2, 3)]
            if nd == 32: pre = [lambda: g.v1("v_mov_b32", vDW[0], vWOb)] + [lambda jj=jj: g.v2("v_add_u32", vDW[jj], 6144*jj, vWOb) for jj in (1, 2, 3)]
            if nd <= 35: place(gp, pre + dma_after(n + LA, nd), o + max(22, lo + 8))
    def Wreg(i):
        if i < 2: return A(208 + 16*i, 16)
        if i < 4: return V(224 + 16*(i-2), 16)
        if i < 7: return V(176 + 16*(i-4), 16)
        if i == 7: return A(168, 16)
        if i < 14: return aR[i-8].sub(0, 12)
        return A(184 + 12*(i-14), 12)
    def rdW(i):
        n = 32 + i; nt_ = 4 if i < 8 else 3; W = Wreg(i); fs = [lambda: e.wait_vm(H[('r', n)])]
        for tt in range(nt_):
            for hf in range(2):
                fs.append(C(lambda tt=tt, hf=hf: e.ds_read("ds_read_b64_tr_b16", W.sub(4*tt + 2*hf, 2), vTv[tt], 4096*SLOT[n] + 2048*hf), int(opt.c_ds)))
        def mark(): RSEQ[n] = e.lg_issued
        return fs + [C(mark, 0)]
    ms = mstart
    WS = {0: ([(27, 4), (27, 24), (28, 4), (28, 24)], [(29, 10), (30, 2), (30, 22), (31, 2)]),
          1: ([(27, 14), (28, 6), (28, 26), (29, 6)], [(30, 2), (30, 22), (31, 2), (31, 20)]),
          2: ([(28, 4), (28, 24), (29, 4), (29, 24)], [(30, 10), (31, 0), (31, 14), (31, 26)])}[int(opt.wsched)]
    for i, (st_, lo) in enumerate(WS[0]):
        spread(gp, rdW(i), ms[st_] + lo, ms[st_] + lo + 10)
        place(gp, dma_after(32 + i, 36 + i), ms[st_] + lo + 10, 1)
    for i, (st_, lo) in enumerate(WS[1]):
        spread(gp, rdW(4 + i), ms[st_] + lo, ms[st_] + lo + 10)
        place(gp, dma_after(36 + i, 40 + i), min(ms[st_] + lo + 10, ms[31] + 36), 1)
    def max_ops():
        fs = []
        for b in range(10):
            s0, s1 = accS(0, 0, b), accS(0, 1, b)
            prs = ((s0[0], s0[1]), (s0[2], s0[3]), (s1[0], s1[1]), (s1[2], s1[3]))
            if opt.cheap_max: prs = prs[:1]
            for (x, y) in prs:
                fs.append(lambda b=b, x=x, y=y: g.v3("v_max3_f32", vM[b], vM[b], x, y))
        return fs
    def xreduce_ops(op, regs, lds_off):
        ta = vTmp; fs = []
        for sw in ("v_permlane32_swap_b32", "v_permlane16_swap_b32"):
            for b in range(10): fs.append(lambda b=b: g.v1("v_mov_b32", ta[b], regs[b]))
            for b in range(10):
                fs.append(lambda b=b, sw=sw: e.valu(f"{sw} {ta[b]}, {regs[b]}", dst=[ta[b], regs[b]], src=[ta[b], regs[b]], permlane=True))
            for b in range(10): fs.append(lambda b=b: g.v2(op, regs[b], ta[b], regs[b]))
        for b in range(10): fs.append(lambda b=b: e.ds_write("ds_write_b32", vSTW, regs[b], lds_off + 256*b))
        return fs
    def soft_ops(p):
        Z = [(b, j) for b in range(10) for j in range(8)]
        def z(b, j): return accS(p, j >> 2, b)[j & 3]
        def fma(i): b, j = Z[i]; return lambda: g.v3("v_fma_f32", z(b, j), z(b, j), sC, vM[b], neg_c=True)
        def ex(i):
            b, j = Z[i]; f = C(lambda: g.v1("v_exp_f32", z(b, j), z(b, j), trans=True), 8); f.trans = True; return f
        def add(i): b, j = Z[i]; return lambda: g.v2("v_add_f32", vLs[b], vLs[b], z(b, j))
        def pack(i):
            b, j = Z[i]; pk = park(p, b); k = j >> 1
            if pk.f == 'v': return [lambda: g.cvt(pk[k], z(b, j-1), z(b, j))]
            return [lambda: g.cvt(z(b, j-1), z(b, j-1), z(b, j)), lambda: g.accw(pk[k], z(b, j-1))]
        fs = []
        D1, D2 = int(opt.soft_d1), int(opt.soft_d2)
        if not opt.soft_pipe:
            for b in range(10):
                for j in range(8): fs.append(fma(8*b + j))
                for j in range(8): fs.append(ex(8*b + j))
                for j in range(8): fs.append(add(8*b + j))
                for j in (1, 3, 5, 7): fs += pack(8*b + j)[:1]
                for j in (1, 3, 5, 7): fs += pack(8*b + j)[1:]
            return fs
        for i in range(80 + D2 + 3):
            if i < 80: fs.append(fma(i))
            if 0 <= i - D1 < 80: fs.append(ex(i - D1))
            if 0 <= i - D2 < 80: fs.append(add(i - D2))
            k = i - D2 - 1
            if 0 <= k < 80 and k % 2 == 1:
                pk_ = pack(k); fs.append(pk_[0])
                if len(pk_) > 1: fs.append(("late", pk_[1]))
        out = []; pend = None
        for f in fs:
            if isinstance(f, tuple):
                if pend is not None: out.append(pend)
                pend = f[1]
            else:
                out.append(f)
                if pend is not None and getattr(f, "trans", False): out.append(pend); pend = None
        if pend is not None: out.append(pend)
        return out
    def spread_steps(fs, steps, lo=0, hi=40, first_lo=None):
        l = first_lo if first_lo is not None else lo
        spread(gp, fs, mstart[steps[0]] + l, mstart[steps[-1]] + hi)
    if opt.cheap_max:
        pub = [lambda b=b: e.ds_write("ds_write_b32", vSTM, vM[b], 256*b) for b in range(10)]
        spread(gp, max_ops() + pub, mstart[4] + 2, mstart[4] + 24)
    else:
        spread(gp, max_ops() + xreduce_ops("v_max_f32", vM, 0), mstart[4] + 2, mstart[4] + 38)
    def bar_max():
        e.wait_lg_all(); e.barrier()
    gp.setdefault(mstart[4] + (27 if opt.cheap_max else 39), []).append(bar_max)
    st = [V(176 + 8*b + 4, 4) if False else V(112 + 4*b, 4) for b in range(10)]
    fs = [lambda b=b: e.ds_read("ds_read_b128", st[b], vSTR, 256*b) for b in range(10)]
    for b in range(10):
        fs.append(lambda b=b: g.v3("v_max3_f32", vM[b], st[b][0], st[b][1], st[b][2]))
        fs.append(lambda b=b: g.v2("v_max_f32", vM[b], vM[b], st[b][3]))
        fs.append(lambda b=b: g.v2("v_mul_f32", vM[b], sC, vM[b]))
    if opt.cheap_max:
        spread(gp, fs, mstart[4] + 28, mstart[5] + 4)
        spread_steps(soft_ops(0), [5, 6, 7], first_lo=4)
    else:
        spread(gp, fs, mstart[5] + 0, mstart[5] + 14)
        spread_steps(soft_ops(0), [5, 6, 7], first_lo=14)
    spread_steps(soft_ops(1), [8, 9, 10, 11])
    spread_steps(soft_ops(2), [12, 13, 14, 15])
    S3E = int(opt.soft3_end)
    spread_steps(soft_ops(3), list(range(16, S3E + 1)))
    def pwrite(c): return [C(lambda b=b, c=c: e.ds_write("ds_write_b128", vPW, park(c, b), (c & 1)*40960 + b*1024), int(opt.c_dsw)) for b in range(10)]
    def bar():
        e.wait_lg_all(); e.barrier()
    sg.preB.setdefault(gstart[14] + 0, []).append(bar)
    place_even(gp, pwrite(0), mstart[14] + 4, mstart[15] + 18)
    sg.preB.setdefault(gstart[15] + 11, []).append(bar)
    sg.preB.setdefault(gstart[16] + 1, []).append(bar)
    place_even(gp, pwrite(1), mstart[16] + 10, mstart[18] + 38)
    spread(gp, xreduce_ops("v_add_f32", vLs, 4096), mstart[S3E + 1], mstart[S3E + 1] + 11)
    sg.preB.setdefault(gstart[19] + 2, []).append(bar)
    place_even(gp, pwrite(2), mstart[19] + 14, mstart[22] + 38)
    sg.preB.setdefault(gstart[23] + 2, []).append(bar)
    place_even(gp, pwrite(3), mstart[23] + 14, mstart[26] + 38)
    sg.preB.setdefault(gstart[27] + 2, []).append(bar)
    stl = [V((216 if opt.inplace_p else 176) + 4*b, 4) for b in range(10)]
    fs = [lambda b=b: e.ds_read("ds_read_b128", stl[b], vSTR, 4096 + 256*b) for b in range(10)]
    for b in range(10):
        fs.append(lambda b=b: g.v2("v_add_f32", stl[b][0], stl[b][0], stl[b][1]))
        fs.append(lambda b=b: g.v2("v_add_f32", stl[b][2], stl[b][2], stl[b][3]))
        fs.append(lambda b=b: g.v2("v_add_f32", vLs[b], stl[b][0], stl[b][2]))
    if opt.fallback:
        ts = vTmp[1]
        fs.append(lambda: g.v2("v_add_f32", ts, vLs[0], vLs[1]))
        for b in range(2, 10): fs.append(lambda b=b: g.v2("v_add_f32", ts, ts, vLs[b]))
        def check():
            thr = 0.0 if opt.force_fb else 2.0**24
            g.s1("s_mov_b32", S(36), hex(f2u(thr)))
            e.valu(f"v_cmp_nge_f32 vcc, {S(36)}, {ts}", src=[S(36), ts])
            e.nop(4)
            e.raw("s_cmp_lg_u64 vcc, 0")
            e.raw(f"s_cselect_b32 s37, 1, 0")
            e.raw(f"s_andn2_b32 s37, s37, {sExact}")
            e.raw("s_cmp_lg_u32 s37, 0")
            e.raw("s_cbranch_scc1 L_fallback")
        fs.append(check)
    for b in range(10): fs.append(lambda b=b: g.v1("v_rcp_f32", vLs[b], vLs[b], trans=True))
    spread(gp, fs, mstart[S3E + 2] + 0, mstart[S3E + 3] + 20)
    if opt.warm_wo:
        def warm_wo():
            t_, s_ = vTmp[9], S(36)
            g.s2("s_mul_i32", s_, sBt, 224); g.s2("s_mul_i32", S(37), sW, 56); g.s2("s_add_u32", s_, s_, S(37))
            g.v2("v_add_u32", t_, s_, vL); g.v2("v_lshlrev_b32", t_, 7, t_)
            e.raw(f"buffer_load_dword {vDum}, {t_}, {sWO}, 0 offen"); e.vm_issued += 1
        gp.setdefault(mstart[int(opt.warm_at)] + 30, []).append(warm_wo)
    vOW0, vOW1 = V(17), V(31)
    otmp = V(164, 8)
    def opost(b):
        fs = []
        for u in range(2):
            tl = [accO(2*u + h2, b) for h2 in range(2)]
            if tl[0].f == 'a':
                z = [otmp[j] for j in range(8)]
                for h2 in range(2):
                    for r in range(4): fs.append(lambda h2=h2, r=r, tl=tl, z=z: g.accr(z[4*h2 + r], tl[h2][r]))
            else:
                z = [tl[h2][r] for h2 in range(2) for r in range(4)]
            for j in range(8): fs.append(lambda j=j, z=z, b=b: g.v2("v_mul_f32", z[j], z[j], vLs[b]))
            o4 = V(z[0].i, 4)
            for j in range(4): fs.append(lambda j=j, z=z, o4=o4: g.cvt(o4[j], z[2*j], z[2*j+1]))
            fs.append(C(lambda o4=o4, u=u, b=b: e.ds_write("ds_write_b128", vOW0 if b < 5 else vOW1, o4, (b % 5)*8192 + u*1024), 8))
        return fs
    def setup_ow():
        g.s2("s_lshl_b32", S(36), sW, 11); g.s2("s_add_u32", S(36), S(36), LDS_A)
        g.v2("v_lshlrev_b32", vOW0, 4, vL); g.v2("v_add_u32", vOW0, S(36), vOW0); g.v2("v_add_u32", vOW1, 40960, vOW0)
    gp.setdefault(mstart[26] + 2, []).append(C(setup_ow, 20))
    o31 = mstart[31]
    ptail = []
    for b in range(5):
        lo = o31 + 4*(b+1) + 3
        if b < 3: spread(gp, opost(b), lo, min(o31 + 40, lo + 12))
        else: ptail += opost(b)
    if opt.pvstamp:
        for n_ in range(20, 32): gp.setdefault(mstart[n_] - 1, []).append(lambda n_=n_: g.stamp(f"n{n_-1}"))
    if opt.stamps:
        for n_, nm_ in ((4, "S0"), (8, "S1"), (12, "S2"), (16, "S3"), (20, "PV0"), (24, "PV1"), (28, "PV2")):
            gp.setdefault(mstart[n_] - 1, []).append(lambda nm_=nm_: g.stamp(nm_))
    sg.emit()
    g.stamp("PVdone")
    g.run(ptail)
    if opt.fused:
        e.raw("s_memrealtime s[92:93]"); e.raw("s_waitcnt lgkmcnt(0)"); e.lg_done = e.lg_issued
    e.wait_lg_all(); e.barrier()
    if opt.dump == 'O':
        for b in range(5, 10): g.run(opost(b))
        return finish_dump(g)
    g.stamp("Opost")

    if opt.fused and opt.own_keep: g.s1("s_mov_b32", sExact, "0x7ff00000")
    sg = Seg(g); gp = sg.gaps
    accA = lambda b, t: V(32 + 16*(b & 1) + 4*t, 4)
    accB = lambda b, t: V(80 + 12*(b & 1) + 4*t, 4)
    bst = {}
    def Bsrc(b, j): return (vB0, (b*8 + j)*1024) if b < 5 else (vB1, ((b-5)*8 + j)*1024)
    for st in range(2):
        nt_ = 4 if st == 0 else 3; acc = accA if st == 0 else accB
        order = [(b, j) for b in range(10) for j in range(8)]
        if st == 0:
            order = [(0, j) for j in range(5)] + [(1, j) for j in range(5)] + [(0, j) for j in range(5, 8)] + [(1, j) for j in range(5, 8)] + order[16:]
        for (b, j) in order:
            if (st, b) not in bst: bst[(st, b)] = sg.nm
            W = Wreg(8*st + j)
            mf = [lambda B, b=b, tt=tt, j=j, W=W, acc=acc: e.mfma(acc(b, tt), W.sub(4*tt, 4), B, acc(b, tt) if j > 0 else 0) for tt in range(nt_)]
            sg.add_group(mf, Bsrc(b, j))
    bend = {(0, 0): 13*4, (0, 1): 16*4}
    for b in range(2, 10): bend[(0, b)] = bst[(0, b)] + 32
    for b in range(10): bend[(1, b)] = bst[(1, b)] + 24
    if opt.stamps:
        for nm_, pos in (("ob1", 63), ("ob4", bst[(0, 5)] - 1), ("ost1", bst[(1, 0)] - 1), ("ob2_4", bst[(1, 5)] - 1)):
            gp.setdefault(pos, []).append(lambda nm_=nm_: g.stamp(nm_))
    for k_ in range(4):
        lo = 8 + 16*k_
        spread(gp, rdW(8 + k_), lo, lo + 14)
        place(gp, dma_after(40 + k_, 44 + k_), lo + 14, 2)
    for k_ in range(4):
        lo = bst[(0, 8)] + 14*k_
        spread(gp, rdW(12 + k_), lo, lo + 14)
    u1 = []
    for b in range(5, 10): u1 += opost(b)
    spread(gp, u1, 0, bst[(0, 4)] - 1)
    sg.preB.setdefault(31, []).append(bar)
    keepA, keepC = V(21, 4), V(25, 4)
    def store_e(O, ee):
        if opt.skip_st: return
        own = ee if ee < 16 else (ee - 20 if ee >= 20 else None)
        if opt.fused and opt.own_keep and own is not None:
            kp = keepA if ee < 16 else keepC
            lab = f"L_keep{ee}"
            e.raw(f"s_cmp_eq_u32 {sH}, {own}"); e.raw(f"s_cselect_b32 {sO3}, {sExact}, {ee*4096}")
            e.raw(f"s_cbranch_scc0 {lab}")
            for j in range(4): g.v1("v_mov_b32", kp[j], O[j])
            e.label(lab)
        else:
            g.s1("s_mov_b32", sO3, ee*4096)
        e.gstore("buffer_store_dwordx4", O, vWS, sWS, sO3, flags=opt.st_flags)
    kk = [0]
    def pair_epi(x, y, ee):
        O = V(64 + 4*(kk[0] & 3), 4); kk[0] += 1
        return [lambda: g.cvt(O[0], x[0], x[1]), lambda: g.cvt(O[1], x[2], x[3]), lambda: g.cvt(O[2], y[0], y[1]), lambda: g.cvt(O[3], y[2], y[3]),
                VM(C(lambda: store_e(O, ee), 24))]
    def epiA(b): return pair_epi(accA(b, 0), accA(b, 1), b) + pair_epi(accA(b, 2), accA(b, 3), 10 + b)
    def epiB(b):
        fs = pair_epi(accB(b, 0), accB(b, 1), 20 + b)
        O6 = V(104 + 4*((b >> 1) & 1), 4); d = accB(b, 2)
        fs += [lambda: g.cvt(O6[2*(b & 1)], d[0], d[1]), lambda: g.cvt(O6[2*(b & 1) + 1], d[2], d[3])]
        if b & 1: fs.append(VM(C(lambda: store_e(O6, 30 + (b >> 1)), 8)))
        return fs
    for b in range(10):
        nx = bend[(0, b)]
        hi = nx + 22 if b != 0 else 64 - 1
        spread(gp, epiA(b), nx + 3, hi)
    for b in range(9):
        nx = bend[(1, b)]
        spread(gp, epiB(b), nx + 3, nx + 20)
    tail = epiB(9)
    def signal(gen):
        lab = f"L_sig{gen}"
        e.raw(f"s_cmp_lg_u32 {sW}, 0"); e.raw(f"s_cbranch_scc1 {lab}")
        e.raw("s_mov_b64 exec, 0xffff")
        e.raw(f"v_mov_b32 v30, {sTok[0]}"); e.raw(f"v_mov_b32 v31, {sTok[1]}"); e.raw("v_lshlrev_b32 v29, 7, v1")
        e.raw(f"s_lshl_b32 s36, {sH}, 3"); e.raw(f"s_add_u32 s36, s36, {sCnt}"); e.raw(f"s_add_u32 s36, s36, {4096*gen}")
        e.raw(f"buffer_store_dwordx2 v[30:31], v29, {sDBG}, s36 offen sc1")
        e.raw("s_mov_b64 exec, -1")
        e.label(lab)
    if opt.fused:
        rd = Red(g)
        ST0 = {}
        def mark0(): ST0['seq'] = e.vm_issued
        gp.setdefault(bend[(0, 9)] + 23, []).append(C(mark0, 0))
        def sig0():
            e.wait_vm(ST0['seq']); e.barrier(); signal(0)
        b0 = int(opt.sig0_blk); b1 = int(opt.poll0_blk)
        gp.setdefault(bst[(1, b0)] + 4, []).append(C(sig0, 24))
        NL = 15 if opt.own_keep else 16
        ldA = [V(112 + 4*h, 4) for h in range(NL)]; ldB = [V(176 + 4*h, 4) for h in range(16)]
        vA0, vR0, vA1, vR1 = V(240), V(241), V(242), V(243)
        tq = [V(244), V(245), V(246), V(247)]
        def prep0():
            rd.setup_common(); rd.decode(0); rd.addr(vA0, vR0, tq)
        vt = V(248, 6)
        def prep0b():
            prep0(); rd.poll_setup(vt); rd.decode(1); rd.addr(vA1, vR1, tq)
            e.raw("s_mov_b32 s79, 0") if False else None
        if opt.spread_prep:
            with Rec(e) as rec: prep0b()
            spread(gp, rec.closures(), bst[(1, 0)] + 24, bst[(1, 8)])
        else:
            gp.setdefault(bst[(1, 1)] + 12, []).append(C(prep0b, 100))
        EP = {}
        if opt.tail2:
            def epoll():
                e.raw(f"buffer_load_dwordx2 {vt.sub(2, 2)}, {vt[0]}, {sDBG}, s41 offen sc1"); e.vm_issued += 1
                EP['seq'] = e.vm_issued
            gp.setdefault(bst[(1, int(opt.ep_blk))] + 2, []).append(VM(C(epoll, 4)))
    sg.emit()
    g.stamp("outdone")
    g.run(tail)
    if opt.fused:
        acc = [V(64 + j) for j in range(8)]; tmp = [V(72 + j) for j in range(4)]
        if opt.own_keep: ldC = [V(32 + 4*h, 4) for h in range(8)] + [V(88 + 4*h, 4) for h in range(6)] + [V(172, 4)]
        else: ldC = [V(8 + 4*h, 4) if h < 14 else V(88 + 4*(h-14), 4) for h in range(16)]
        kA, kC = (keepA, keepC) if opt.own_keep else (None, None)
        vA2, vR2 = V(254), V(255)
        def flags_to_s44():
            e.raw(f"v_subrev_co_u32 {vt[4]}, vcc, {sT0[0]}, {vt[2]}"); e.raw("s_nop 1")
            e.raw(f"v_subb_co_u32 {vt[5]}, vcc, {vt[3]}, {vt[1]}, vcc")
            e.raw(f"v_lshrrev_b32 {vt[4]}, 24, {vt[4]}"); e.raw(f"v_or_b32 {vt[4]}, {vt[4]}, {vt[5]}")
            e.raw(f"v_cmp_eq_u32 vcc, 0, {vt[4]}"); e.raw("s_nop 4")
            e.raw("s_or_b32 s44, vcc_lo, s43")
        def raw_loads(ld, vA):
            snap = e.snapshot(); g.run(rd.loads(ld, vA, sO1)); e.restore(snap)
            for r_ in [x for l_ in ld for x in l_.regs()]: e.pend.pop(r_, None)
        if opt.tail2:
            e.wait_vm(EP['seq'])
            rd.flags(vt)
            e.raw("s_and_b32 s45, s44, 0xffff"); e.raw("s_cmp_eq_u32 s45, 0xffff"); e.raw(f"s_cselect_b32 {sE0}, 1, 0")
            e.raw(f"s_cbranch_scc0 L_t0")
            raw_loads(ldA, vA0)
            e.raw(f"s_cmp_lg_u32 {sW}, 3"); e.raw("s_cbranch_scc1 L_t1")
            raw_loads(ldB, vA1)
            e.raw(f"s_waitcnt vmcnt({NL + 16})"); e.raw("s_branch L_t2")
            e.label("L_t1")
            e.raw(f"s_waitcnt vmcnt({NL})"); e.raw("s_branch L_t2")
            e.label("L_t0")
            e.raw("s_waitcnt vmcnt(0)")
            e.label("L_t2")
            e.vm_done = e.vm_issued
            e.barrier(); signal(1)
            g.stamp("sig1")
            rd.decode(2); rd.addr(vA2, vR2, tq)
            e.raw("s_mov_b32 s47, s38")
            e.raw(f"s_cmp_eq_u32 {sE0}, 1"); e.raw("s_cbranch_scc1 L_t3")
            rd.pollp("0", 0xffff, vt)
            raw_loads(ldA, vA0)
            e.raw(f"s_cmp_lg_u32 {sW}, 3"); e.raw("s_cbranch_scc1 L_t3")
            raw_loads(ldB, vA1)
            e.label("L_t3")
            g.stamp("poll0")
            e.raw(f"buffer_load_dwordx2 {vt.sub(2, 2)}, {vt[0]}, {sDBG}, s41 offen sc1")
            e.raw("s_waitcnt vmcnt(1)")
            rd.sum_store(ldA, vR0, acc, tmp, V(76, 4), kA)
            e.raw(f"s_cmp_lg_u32 {sW}, 3"); e.raw("s_cbranch_scc1 L_t4")
            snap = e.snapshot()
            rd.sum_store(ldB, vR1, acc, tmp, V(80, 4))
            e.restore(snap)
            e.label("L_t4")
            e.raw("s_cmp_ge_u32 s47, 60"); e.raw("s_cbranch_scc1 L_t6")
            e.raw("s_waitcnt vmcnt(2)")
            e.raw(f"s_cmp_eq_u32 {sW}, 3"); e.raw("s_cbranch_scc1 L_t4b")
            e.raw("s_waitcnt vmcnt(1)")
            e.label("L_t4b")
            rd.flags(vt)
            e.raw("s_lshr_b32 s51, s44, 16"); e.raw("s_cmp_eq_u32 s51, 0xffff"); e.raw("s_cbranch_scc1 L_t5")
            rd.pollp("1", 0xffff0000, vt)
            e.label("L_t5")
            g.stamp("poll1")
            raw_loads(ldC, vA2)
            e.raw("s_waitcnt vmcnt(0)"); e.vm_done = e.vm_issued
            rd.sum_store(ldC, vR2, acc, tmp, V(84, 4), kC)
            e.label("L_t6")
        else:
            e.wait_vm_all(); e.barrier(); signal(1)
            g.stamp("sig1")
            rd.decode(2); rd.addr(vA2, vR2, tq)
            e.raw("s_mov_b32 s47, s38")
            rd.pollw("0", 0xffff, vt, 0)
            g.stamp("poll0")
            e.raw("s_lshr_b32 s51, s44, 16"); e.raw("s_cmp_eq_u32 s51, 0xffff"); e.raw("s_cselect_b32 s51, 1, 0")
            raw_loads(ldA, vA0)
            e.raw(f"s_cmp_lg_u32 {sW}, 3"); e.raw("s_cbranch_scc1 L_x1")
            raw_loads(ldB, vA1)
            e.label("L_x1")
            e.raw("s_cmp_eq_u32 s51, 1"); e.raw("s_cbranch_scc1 L_x3")
            rd.pollw("1", 0xffff0000, vt, 1)
            e.label("L_x3")
            g.stamp("poll1")
            e.raw("s_cmp_ge_u32 s47, 60"); e.raw("s_cbranch_scc1 L_x4")
            raw_loads(ldC, vA2)
            e.label("L_x4")
            e.raw("s_cmp_ge_u32 s47, 60"); e.raw("s_cbranch_scc1 L_x1d")
            e.raw(f"s_waitcnt vmcnt({NL})"); e.raw("s_branch L_x1f")
            e.label("L_x1d")
            e.raw("s_waitcnt vmcnt(0)")
            e.label("L_x1f")
            rd.sum_store(ldA, vR0, acc, tmp, V(76, 4), kA)
            e.raw(f"s_cmp_lg_u32 {sW}, 3"); e.raw("s_cbranch_scc1 L_x2")
            snap = e.snapshot()
            rd.sum_store(ldB, vR1, acc, tmp, V(80, 4))
            e.restore(snap)
            e.label("L_x2")
            e.raw("s_cmp_ge_u32 s47, 60"); e.raw("s_cbranch_scc1 L_x5")
            e.vm_done = e.vm_issued
            rd.sum_store(ldC, vR2, acc, tmp, V(84, 4), kC, prog=True)
            e.label("L_x5")
    if opt.stamps:
        e.wait_vm_all()
        g.stamp("end")
        g.stamp_flush()
    if opt.fallback:
        e.raw("s_endpgm")
        e.label("L_fallback")
        e.raw("s_waitcnt vmcnt(0) lgkmcnt(0)")
        e.raw("s_barrier")
        e.raw(f"s_mov_b32 {sExact}, 1")
        e.raw("s_branch L_restart")
    e.label("L_k1_end")
    e.raw("s_endpgm")
    return e

class Rec:
    def __init__(self, e): self.e = e; self.ops = []
    def __enter__(self):
        e = self.e; self.saved = (e.raw, e.salu, e.valu)
        def mk(fn):
            def w(*a, **k): self.ops.append((fn, a, k))
            return w
        e.raw, e.salu, e.valu = mk(self.saved[0]), mk(self.saved[1]), mk(self.saved[2])
        return self
    def __exit__(self, *x):
        self.e.raw, self.e.salu, self.e.valu = self.saved
    def closures(self):
        out = []; cur = []
        def flush():
            if cur:
                grp = list(cur); cur.clear()
                out.append(C(lambda grp=grp: [fn(*a, **k) for fn, a, k in grp], 4*len(grp)))
        n = len(self.ops)
        for i, (fn, a, k) in enumerate(self.ops):
            cur.append((fn, a, k))
            t = a[0].split()[0]
            nxt = self.ops[i+1][1][0].split()[0] if i + 1 < n else ""
            if t in ("s_cmp_eq_u32", "s_cmp_lt_u32", "s_cmp_ge_u32") or nxt in ("s_addc_u32", "s_subb_u32", "s_cselect_b32"): continue
            flush()
        flush()
        return out

class Red:
    def __init__(self, g):
        self.g = g; self.e = g.e
        self.sRS, self.sOS = S(4, 4), S(8, 4)
    def setup_common(self):
        g, e = self.g, self.e
        g.s2("s_mul_i32", S(41), sH, PART_UNIT)
        g.s2("s_sub_u32", self.sRS[0], sWS[0], S(41)); e.salu(f"s_subb_u32 {self.sRS[1]}, {sWS[1]}, 0")
        g.s1("s_mov_b32", self.sRS[2], 16*PART_UNIT); g.s1("s_mov_b32", self.sRS[3], "0x00020000")
        g.s1("s_mov_b32", self.sOS[0], S(90)); g.s1("s_mov_b32", self.sOS[1], S(91))
        g.s1("s_mov_b32", self.sOS[2], 1280*1792); g.s1("s_mov_b32", self.sOS[3], "0x00020000")
    def decode(self, slot):
        g, e = self.g, self.e
        sPi, sWp, sE = S(38), S(39), S(40)
        if slot == 1:
            g.s2("s_lshr_b32", sE, sH, 2); g.s2("s_add_u32", sE, sE, 16); g.s2("s_and_b32", sWp, sH, 3)
            g.s2("s_add_u32", sPi, sH, 64)
        else:
            g.s2("s_lshl_b32", sPi, sH, 2); g.s2("s_add_u32", sPi, sPi, sW)
            g.s1("s_mov_b32", sWp, sW)
            if slot == 0: g.s1("s_mov_b32", sE, sH)
            else: g.s2("s_add_u32", sE, sH, 20)
    def addr(self, vA, vRow, tmp):
        g, e = self.g, self.e
        sWp, sE = S(39), S(40)
        q16, gg, t, u = tmp
        g.s2("s_lshl_b32", S(45), sWp, 10); g.s2("s_lshl_b32", S(46), sE, 12); g.s2("s_add_u32", S(45), S(45), S(46))
        g.v2("v_lshlrev_b32", vA, 4, vL); g.v2("v_add_u32", vA, S(45), vA)
        g.v2("v_and_b32", q16, 15, vL); g.v2("v_lshrrev_b32", gg, 4, vL)
        g.v2("v_and_b32", t, 1, gg); g.v2("v_lshrrev_b32", u, 1, gg); g.v2("v_lshlrev_b32", u, 3, u)
        sPP, sBlk = S(48), S(49)
        g.s2("s_mul_hi_u32", sPP, sE, 429496730)
        g.s2("s_mul_i32", sBlk, sPP, 10); g.s2("s_sub_u32", sBlk, sE, sBlk)
        g.s2("s_sub_u32", S(52), sE, 30); g.s2("s_lshl_b32", S(52), S(52), 1)
        g.s2("s_lshl_b32", S(53), sPP, 5)
        e.raw(f"s_cmp_lt_u32 {sE}, 30")
        e.raw(f"s_cselect_b32 s52, {sBlk}, s52"); e.raw("s_cselect_b32 s53, s53, 96")
        e.raw("s_cselect_b32 s54, 16, 0"); e.raw("s_cselect_b32 s55, 0, 16")
        g.s2("s_mul_i32", S(56), sBt, 160); g.s2("s_lshl_b32", S(52), S(52), 4); g.s2("s_add_u32", S(56), S(56), S(52))
        g.s2("s_mul_i32", S(50), sBr, 448); g.s2("s_mul_i32", S(58), sWp, 112); g.s2("s_add_u32", S(50), S(50), S(58)); g.s2("s_add_u32", S(50), S(50), S(53))
        g.v3("v_mad_u32_u24", vRow, t, S(55), q16); g.v2("v_add_u32", vRow, S(56), vRow)
        g.v3("v_mad_u32_u24", q16, t, S(54), u); g.v2("v_add_u32", q16, S(50), q16)
        g.s1("s_mov_b32", S(59), 1792)
        g.v2("v_lshlrev_b32", q16, 1, q16); g.v3("v_mad_u32_u24", vRow, vRow, S(59), q16)
    def loads(self, ld, vA, sreg):
        g, e = self.g, self.e; fs = []
        for k in range(len(ld)):
            def f(k=k):
                if len(ld) == 16: g.s1("s_mov_b32", sreg, k*PART_UNIT)
                else:
                    g.s2("s_add_u32", S(46), sH, k + 1); g.s2("s_and_b32", S(46), S(46), 15); g.s2("s_mul_i32", sreg, S(46), PART_UNIT)
                e.gload("buffer_load_dwordx4", ld[k], vA, self.sRS, sreg, flags=opt.red_flags)
            fs.append(VM(C(f, 8)))
        return fs
    def sum_store(self, ld, vRow, acc, tmp, O, keep=None, prog=False):
        g, e = self.g, self.e
        nld = len(ld)
        if keep is not None: ld = [keep] + list(ld)
        for h in range(16):
            k_ = h - (1 if keep is not None else 0)
            if prog and k_ >= 0 and (k_ % 2 == 0): e.raw(f"s_waitcnt vmcnt({max(0, nld - 2 - k_)})")
            for j in range(4):
                if h == 0:
                    g.v2("v_lshlrev_b32", acc[2*j], 16, ld[h][j]); g.v2("v_and_b32", acc[2*j+1], "0xffff0000", ld[h][j])
                else:
                    a_, b_ = tmp[2*(j & 1)], tmp[2*(j & 1) + 1]
                    g.v2("v_lshlrev_b32", a_, 16, ld[h][j]); g.v2("v_and_b32", b_, "0xffff0000", ld[h][j])
                    g.v2("v_add_f32", acc[2*j], acc[2*j], a_); g.v2("v_add_f32", acc[2*j+1], acc[2*j+1], b_)
        for j in range(4): g.cvt(O[j], acc[2*j], acc[2*j+1])
        e.valu(f"v_permlane16_swap_b32 {O[0]}, {O[2]}", dst=[O[0], O[2]], src=[O[0], O[2]], permlane=True)
        e.valu(f"v_permlane16_swap_b32 {O[1]}, {O[3]}", dst=[O[1], O[3]], src=[O[1], O[3]], permlane=True)
        return e.gstore("buffer_store_dwordx4", O, vRow, self.sOS, None, flags=opt.out_flags)
    def pollw(self, name, need, vt, word):
        e = self.e
        lab = f"L_pw{name}"
        e.raw(f"s_cmp_lg_u32 {sW}, 0"); e.raw(f"s_cbranch_scc1 {lab}_bar")
        e.raw(f"s_mov_b32 s42, {int(opt.spin)}")
        e.label(lab)
        e.raw(f"buffer_load_dwordx2 {vt.sub(2, 2)}, {vt[0]}, {sDBG}, s41 offen sc1")
        e.raw("s_waitcnt vmcnt(0)")
        e.raw(f"v_subrev_co_u32 {vt[4]}, vcc, {sT0[0]}, {vt[2]}"); e.raw("s_nop 1")
        e.raw(f"v_subb_co_u32 {vt[5]}, vcc, {vt[3]}, {vt[1]}, vcc")
        e.raw(f"v_lshrrev_b32 {vt[4]}, 24, {vt[4]}"); e.raw(f"v_or_b32 {vt[4]}, {vt[4]}, {vt[5]}")
        e.raw(f"v_cmp_eq_u32 vcc, 0, {vt[4]}"); e.raw("s_nop 4")
        e.raw("s_or_b32 s44, vcc_lo, s43")
        e.raw(f"s_and_b32 s45, s44, {hex(need)}"); e.raw(f"s_cmp_eq_u32 s45, {hex(need)}"); e.raw(f"s_cbranch_scc1 {lab}_ok")
        e.raw("s_sub_u32 s42, s42, 1"); e.raw("s_cmp_eq_u32 s42, 0"); e.raw(f"s_cbranch_scc1 {lab}_ok")
        e.raw(f"s_sleep {int(opt.sleep)}")
        e.raw(f"s_branch {lab}")
        e.label(f"{lab}_ok")
        e.raw(f"v_mov_b32 {vt[4]}, s44"); e.raw(f"v_mov_b32 {vt[5]}, {12288 + 4*word}")
        e.raw(f"ds_write_b32 {vt[5]}, {vt[4]}"); e.raw("s_waitcnt lgkmcnt(0)")
        e.label(f"{lab}_bar")
        e.raw("s_barrier")
        e.raw(f"v_mov_b32 {vt[5]}, {12288 + 4*word}")
        e.raw(f"ds_read_b32 {vt[4]}, {vt[5]}"); e.raw("s_waitcnt lgkmcnt(0)")
        e.raw(f"v_readfirstlane_b32 s44, {vt[4]}"); e.raw("s_nop 3")
    def pollp(self, name, need, vt):
        e = self.e
        lab = f"L_pp{name}"
        e.raw(f"s_mov_b32 s42, {int(opt.spin)}")
        e.label(lab)
        e.raw(f"buffer_load_dwordx2 {vt.sub(2, 2)}, {vt[0]}, {sDBG}, s41 offen sc1")
        e.raw("s_waitcnt vmcnt(0)")
        self.flags(vt)
        e.raw(f"s_and_b32 s45, s44, {hex(need)}"); e.raw(f"s_cmp_eq_u32 s45, {hex(need)}"); e.raw(f"s_cbranch_scc1 {lab}_ok")
        e.raw("s_sub_u32 s42, s42, 1"); e.raw("s_cmp_eq_u32 s42, 0"); e.raw(f"s_cbranch_scc1 {lab}_ok")
        e.raw(f"s_sleep {int(opt.sleep)}")
        e.raw(f"s_branch {lab}")
        e.label(f"{lab}_ok")
    def flags(self, vt):
        e = self.e
        e.raw(f"v_subrev_co_u32 {vt[4]}, vcc, {sT0[0]}, {vt[2]}"); e.raw("s_nop 1")
        e.raw(f"v_subb_co_u32 {vt[5]}, vcc, {vt[3]}, {vt[1]}, vcc")
        e.raw(f"v_lshrrev_b32 {vt[4]}, 24, {vt[4]}"); e.raw(f"v_or_b32 {vt[4]}, {vt[4]}, {vt[5]}")
        e.raw(f"v_cmp_eq_u32 vcc, 0, {vt[4]}"); e.raw("s_nop 4")
        e.raw("s_or_b32 s44, vcc_lo, s43")
    def poll_setup(self, vt):
        e = self.e
        e.raw(f"v_and_b32 {vt[0]}, 15, v1"); e.raw(f"v_lshlrev_b32 {vt[0]}, 3, {vt[0]}")
        e.raw(f"v_bfe_u32 {vt[1]}, v1, 4, 1"); e.raw(f"v_lshl_add_u32 {vt[0]}, {vt[1]}, 12, {vt[0]}")
        e.raw(f"v_mov_b32 {vt[1]}, {sT0[1]}")
        e.raw(f"s_lshl_b32 s43, 0x10001, {sH}")
        e.raw(f"s_lshl_b32 s41, {sH}, 7"); e.raw(f"s_add_u32 s41, s41, {sCnt}")
    def poll(self, gen, vt):
        e = self.e
        lab = f"L_poll{gen}"
        e.raw(f"s_cmp_lg_u32 {sW}, 0"); e.raw(f"s_cbranch_scc1 {lab}_bar")
        e.raw(f"s_add_u32 s41, {sCnt}, {4096*gen}")
        e.raw(f"s_mov_b32 s42, {int(opt.spin)}")
        e.raw(f"v_and_b32 {vt[0]}, 15, v1"); e.raw(f"v_lshlrev_b32 {vt[0]}, 3, {vt[0]}"); e.raw(f"v_mov_b32 {vt[1]}, {sT0[1]}")
        e.label(lab)
        e.raw(f"buffer_load_dwordx2 {vt.sub(2, 2)}, {vt[0]}, {sDBG}, s41 offen sc1")
        e.raw("s_waitcnt vmcnt(0)")
        e.raw(f"v_subrev_co_u32 {vt[4]}, vcc, {sT0[0]}, {vt[2]}"); e.raw("s_nop 1")
        e.raw(f"v_subb_co_u32 {vt[5]}, vcc, {vt[3]}, {vt[1]}, vcc")
        e.raw(f"v_lshrrev_b32 {vt[4]}, 24, {vt[4]}"); e.raw(f"v_or_b32 {vt[4]}, {vt[4]}, {vt[5]}")
        e.raw(f"v_cmp_eq_u32 vcc, 0, {vt[4]}"); e.raw("s_nop 4")
        e.raw("s_cmp_eq_u64 vcc, -1"); e.raw(f"s_cbranch_scc1 {lab}_bar")
        e.raw("s_sub_u32 s42, s42, 1"); e.raw("s_cmp_eq_u32 s42, 0"); e.raw(f"s_cbranch_scc1 {lab}_bar")
        e.raw(f"s_sleep {int(opt.sleep)}")
        e.raw(f"s_branch {lab}")
        e.label(f"{lab}_bar")
        e.barrier()

def finish_dump(g):
    e = g.e
    e.wait_lg_all(); e.wait_vm_all(); e.barrier()
    t = V(240); u = V(244, 4)
    g.s2("s_mul_i32", S(38), sW, 20480)
    g.v2("v_lshlrev_b32", t, 4, vL); g.v2("v_add_u32", t, S(38), t)
    a = V(241); g.v2("v_add_u32", a, LDS_A, t)
    for i in range(20):
        e.ds_read("ds_read_b128", u, a, i*1024)
        g.s1("s_mov_b32", sO2, i*1024)
        e.gstore("buffer_store_dwordx4", u, t, sWS, sO2)
        e.wait_vm_all()
    e.label("L_fallback")
    e.label("L_k1_end")
    e.raw("s_endpgm")
    return e

import gen1
DESCR = """;
;   Q   = x @ wq[:, head]          16x16x32 bf16 MFMA, wq / x staged by LDS-DMA, each wave owns 64 of the 256 dh columns
;   out  = sum over the 16 heads   in-kernel hand-off (write-through stores, per-consumer flag lines tagged with this launch's clock)
"""
def assemble(path):
    k1 = build_k1()
    hdr = open("cdna_kernels/" + NAME + ".s.ref").read().split("; Override launch")[0]
    out = hdr
    KD = gen1.KD.replace("next_free_sgpr 96", "next_free_sgpr 102")
    if opt.fused:
        nm = NAME + "_kernel"
        out += f"; @launch grid=(256,1,1) block=(256,1,1) lds={LDS_TOTAL}\n" + DESCR
        out += '.amdgcn_target "amdgcn-amd-amdhsa--gfx950"\n.text\n'
        out += f".globl {nm}\n.p2align 8\n.type {nm},@function\n{nm}:\n" + k1.text()
        out += '.section .rodata,"a"\n.p2align 6\n' + KD.format(name=nm, vgpr=512, acc=256)
    else:
        gen1.opt.k2_flags = opt.k2_flags; gen1.opt.stamps = opt.stamps
        k2 = gen1.build_k2()
        out += f"; @launch kernel=mha_k1_kernel grid=(256,1,1) block=(256,1,1) lds={LDS_TOTAL}\n"
        out += f"; @launch kernel=mha_k2_kernel grid=(560,1,1) block=(256,1,1) lds=0\n"
        out += '.amdgcn_target "amdgcn-amd-amdhsa--gfx950"\n.text\n'
        for nm, k in (("mha_k1_kernel", k1), ("mha_k2_kernel", k2)):
            out += f".globl {nm}\n.p2align 8\n.type {nm},@function\n{nm}:\n" + k.text()
        out += '.section .rodata,"a"\n.p2align 6\n' + KD.format(name="mha_k1_kernel", vgpr=512, acc=256)
        out += '.p2align 6\n' + KD.format(name="mha_k2_kernel", vgpr=96, acc=96)
    open(path, "w").write(out)
    if opt.stamps: print("STAMPS", ",".join(STAMPS))
    print("k1 stats", k1.stats, file=sys.stderr)

if __name__ == "__main__":
    path = sys.argv[1]
    for a in sys.argv[2:]:
        k, v = a.split("=")
        if v in ("True", "False"): v = (v == "True")
        elif v == "None": v = None
        setattr(opt, k, v)
    assemble(path)
```
